```python
import torch

def _softmax(x, axis=-1):
    return torch.softmax(x, dim=axis)
def _gelu(x):
    return torch.nn.functional.gelu(x, approximate="tanh")
def _silu(x):
    return torch.nn.functional.silu(x)
def _sigmoid(x):
    return torch.sigmoid(x)
def _layernorm(x, axis=-1, eps=1e-5):
    m = x.mean(dim=axis, keepdim=True)
    v = x.var(dim=axis, keepdim=True, unbiased=False)
    return (x - m) / torch.sqrt(v + eps)
def _scatter_add(tgt, idx, src, axis=0):
    return tgt.clone().index_add_(axis, idx, src)
def _segment_sum(src, seg, n):
    out = torch.zeros((n,) + src.shape[1:], dtype=src.dtype)
    return out.index_add_(0, seg, src)
def _pad(x, pw):
    flat = tuple(v for pair in reversed(pw) for v in pair)
    return torch.nn.functional.pad(x, flat)

kernel_name = 'recurrent_scan__mha_block__geglu_ffn__prompt'

def setup_inputs():

    _w = (lambda a: (lambda t: t.to(torch.bfloat16) if t.is_floating_point() else t)(torch.as_tensor(a)))
    def _A_setup():
        B, S, D, H = 1, 2048, 576, 32
        return {
            "x": _w((lambda *s: torch.randn(*s, dtype=torch.bfloat16) * 0.05)(B, S, D)),
            "wqkv": _w((lambda *s: torch.randn(*s, dtype=torch.bfloat16) * 0.05)(D, 3 * D)),
            "wo": _w((lambda *s: torch.randn(*s, dtype=torch.bfloat16) * 0.05)(D, D)),
        }
    _A_in = _A_setup()

    def _B_setup():
        B, S, D, F = 1, 2048, 576, 4608
        return {
            "x": _w((lambda *s: torch.randn(*s, dtype=torch.bfloat16) * 0.05)(B, S, D)),
            "w_gate": _w((lambda *s: torch.randn(*s, dtype=torch.bfloat16) * 0.05)(D, F)),
            "w_up": _w((lambda *s: torch.randn(*s, dtype=torch.bfloat16) * 0.05)(D, F)),
            "w_down": _w((lambda *s: torch.randn(*s, dtype=torch.bfloat16) * 0.05)(F, D)),
        }
    _B_in = _B_setup()

    return {
        "A_x": _A_in["x"],
        "A_wqkv": _A_in["wqkv"],
        "A_wo": _A_in["wo"],
        "B_x": _B_in["x"],
        "B_w_gate": _B_in["w_gate"],
        "B_w_up": _B_in["w_up"],
        "B_w_down": _B_in["w_down"],
    }

def reference(A_x, A_wqkv, A_wo, B_x, B_w_gate, B_w_up, B_w_down):
    def _A_ref(x, wqkv, wo):
        B, S, D = x.shape
        H = 32
        Dh = D // H
        qkv = (lambda x, *d: x.permute(*d))((x @ wqkv).reshape(B, S, 3, H, Dh), 2, 0, 3, 1, 4)
        q, k, v = qkv[0], qkv[1], qkv[2]
        scores = torch.einsum("bhqd,bhkd->bhqk", q, k) * (Dh ** -0.5)
        p = _softmax(scores, axis=-1)
        o = torch.einsum("bhqk,bhkd->bhqd", p, v)
        return (lambda x, *d: x.permute(*d))(o, 0, 2, 1, 3).reshape(B, S, D) @ wo

    def _B_ref(x, w_gate, w_up, w_down):
        return (_gelu(x @ w_gate) * (x @ w_up)) @ w_down

    x = A_x
    xn = _layernorm(x, axis=-1)
    s = _A_ref(xn, A_wqkv, A_wo)
    g = _silu(_B_ref(xn, B_w_gate, B_w_up, B_w_down))
    return x + s * g
```

```python
import struct
def f2u(x): return struct.unpack("<I", struct.pack("<f", x))[0]
def hexf(x): return "0x%08x" % f2u(x)

class A:
    def __init__(self): self.l=[]
    def __call__(self, s):
        for x in s.strip("\n").split("\n"):
            self.l.append("  "+x.strip() if not x.strip().endswith(":") else x.strip())
    def text(self): return "\n".join(self.l)+"\n"

def vr(b,n=1,k="v"):
    return f"{k}{b}" if n==1 else f"{k}[{b}:{b+n-1}]"
def sr(b,n=1): return vr(b,n,"s")

def kernel_text(name, body, vgpr, accum, sgpr=102):
    return f""".globl {name}
.p2align 8
.type {name},@function
{name}:
{body}
  s_endpgm
.section .rodata,"a"
.p2align 6
.amdhsa_kernel {name}
  .amdhsa_next_free_vgpr {vgpr}
  .amdhsa_next_free_sgpr {sgpr}
  .amdhsa_accum_offset {accum}
  .amdhsa_group_segment_fixed_size 0
  .amdhsa_kernarg_size 80
  .amdhsa_user_sgpr_count 2
  .amdhsa_user_sgpr_kernarg_segment_ptr 1
  .amdhsa_system_sgpr_workgroup_id_x 1
.end_amdhsa_kernel
.text
"""

def srd(a, d, base, nbytes):
    a(f"s_mov_b32 s{d}, s{base}")
    a(f"s_mov_b32 s{d+1}, s{base+1}")
    a(f"s_mov_b32 s{d+2}, {nbytes}")
    a(f"s_mov_b32 s{d+3}, 0x20000")

class Sched:
    def __init__(self, a):
        self.a=a
        self.ds_issued=0
        self.ds_done=0
    def ds(self, s):
        self.a(s); self.ds_issued+=1
        return self.ds_issued
    def wait_ds(self, tok):
        if tok<=self.ds_done: return
        n=self.ds_issued-tok
        assert n<=15, n
        self.a(f"s_waitcnt lgkmcnt({n})")
        self.ds_done=tok
```

```python
from paths import *
AV_K=2; AV_E=3; AV_V=4
Q0=16; Q1=32; SB=(48,64); PB=(80,88); K0B=(96,100); K1B=(104,108); VB=(112,120); OA=128; MX=192
S_PASS=62; S_IT=63
def attn_path(a, T, label="att", ld="", standalone=False, s_idx=2, KT=4):
    WSR=f"s[{S_WS}:{S_WS+3}]"
    if standalone:
        if T.on: a("s_memrealtime s[94:95]")
        T.stamp()
        common_entry(a,s_idx)
    a(f"""
    s_and_b32 s38, s37, 3
    s_lshl_b32 s50, s36, 2
    s_add_u32 s50, s50, s38
    s_lshr_b32 s38, s37, 2
    s_lshl_b32 s38, s38, 4
    s_lshl_b32 s39, s{S_WAVE}, 2
    s_add_u32 s51, s38, s39
    s_mul_i32 s60, s50, {KVH}
    s_add_u32 s60, s60, {WS_KV}
    s_lshl_b32 s61, s{S_WAVE}, 12
    v_lshlrev_b32 v1, 4, v0
    s_lshl_b32 s38, s50, 16
    s_lshl_b32 s39, s51, 10
    s_add_u32 s38, s38, s39
    s_add_u32 s38, s38, {WS_Q}
    s_lshl_b32 s64, s50, 13
    s_lshl_b32 s39, s51, 7
    s_add_u32 s64, s64, s39
    s_add_u32 s64, s64, {WS_QE}
    v_cmp_lt_u32 vcc, 31, v0
    v_lshlrev_b32 v5, 2, v0
    v_mov_b32 v6, 0x7ff00000
    v_cndmask_b32 v5, v5, v6, vcc
    """)
    for t in range(4):
        a(f"buffer_load_dwordx4 {vr(Q0+4*t,4)}, v1, {WSR}, s38 offen offset:{1024*t} {ld}")
        a(f"buffer_load_dword v{Q1+4*t}, v5, {WSR}, s64 offen offset:{128*t} {ld}")
    for G in range(9):
        a(f"s_add_u32 m0, s61, {G*16384}")
        a(f"s_add_u32 s39, s60, m0")
        for k in range(4):
            a(f"buffer_load_dwordx4 v1, {WSR}, s39 offen offset:{1024*k} {ld} lds")
    a(f"""s_lshl_b32 s38, s{S_WAVE}, 10
    s_add_u32 m0, s38, {9*16384}
    s_add_u32 s39, s60, m0
    buffer_load_dwordx4 v1, {WSR}, s39 offen {ld} lds""")
    a(f"""
    v_and_b32 v7, 31, v0
    v_lshlrev_b32 v8, 2, v7
    v_add_u32 v8, 1024, v8
    v_cmp_lt_u32 vcc, 18, v7
    v_mov_b32 v9, 18
    v_mov_b32 v10, 0
    v_cndmask_b32 v9, v7, v9, vcc
    v_cmp_lt_u32 vcc, 19, v7
    v_mov_b32 v11, 4
    s_nop 0
    v_cndmask_b32 v9, v9, v10, vcc
    v_cmp_lt_u32 vcc, 27, v7
    v_lshrrev_b32 v10, 5, v0
    v_mul_u32_u24 v10, 304, v10
    v_cndmask_b32 v9, v9, v11, vcc
    v_lshlrev_b32 v9, 4, v9
    v_add_u32 v9, v9, v10
    v_add_u32 v9, 1152, v9
    s_mov_b32 s{S_PASS}, 1
    """)
    for b in K1B:
        a(f"v_mov_b32 v{b+1}, 0x3f803f80\n v_mov_b32 v{b+2}, 0x00003f80\n v_mov_b32 v{b+3}, 0")
    for t in range(4): a(f"v_mov_b32 v{Q1+4*t+3}, 0")
    a("s_waitcnt vmcnt(25)\n s_barrier")
    T.stamp()
    a(f".L{label}_maxpass:")
    for t in range(4):
        a(f"v_mov_b32 v{Q1+4*t+1}, 0\n v_mov_b32 v{Q1+4*t+2}, 0\n v_mov_b32 v{MX+t}, 0xff800000")
    a(f"v_mov_b32 v{AV_K}, v1\n v_mov_b32 v{AV_E}, v8\n s_mov_b32 s{S_IT}, s{S_PASS}")
    a(f".L{label}_maxloop:")
    a(f"""ds_read_b128 {vr(K0B[0],4)}, v{AV_K}
    ds_read_b32 v{K1B[0]}, v{AV_E}
    v_add_u32 v{AV_K}, {KVT}, v{AV_K}
    v_add_u32 v{AV_E}, {KVT}, v{AV_E}
    s_waitcnt lgkmcnt(0)""")
    for t in range(4):
        S=OA+16*t
        a(f"v_mfma_f32_32x32x16_bf16 {vr(S,16)}, {vr(K0B[0],4)}, {vr(Q0+4*t,4)}, 0")
        a(f"v_mfma_f32_32x32x16_bf16 {vr(S,16)}, {vr(K1B[0],4)}, {vr(Q1+4*t,4)}, {vr(S,16)}")
    a("s_nop 7\n s_nop 3")
    for i in range(8):
        for t in range(4):
            S=OA+16*t
            a(f"v_max3_f32 v{MX+t}, v{S+2*i}, v{S+2*i+1}, v{MX+t}")
    a(f"""s_sub_u32 s{S_IT}, s{S_IT}, 1
    s_cmp_lg_u32 s{S_IT}, 0
    s_cbranch_scc1 .L{label}_maxloop""")
    a("v_cmp_gt_u32 vcc, 32, v0")
    for t in range(4):
        m=MX+t
        a(f"""v_mov_b32 v10, v{m}
        s_nop 1
        v_permlane32_swap_b32 v10, v{m}
        s_nop 1
        v_max_f32 v10, v10, v{m}
        v_sub_f32 v10, 0, v10
        v_and_b32 v11, 0xffff0000, v10
        v_sub_f32 v10, v10, v11
        v_and_b32 v12, 0xffff0000, v10
        v_sub_f32 v10, v10, v12
        v_lshrrev_b32 v11, 16, v11
        v_or_b32 v11, v11, v12
        v_lshrrev_b32 v10, 16, v10
        v_cndmask_b32 v{Q1+4*t+1}, 0, v11, vcc
        v_cndmask_b32 v{Q1+4*t+2}, 0, v10, vcc""")
    for i in range(64): a(f"v_mov_b32 v{OA+i}, 0")
    for i in range(8): a(f"v_mov_b32 v{PB[1]+i}, 0")
    a(f"""v_mov_b32 v{AV_K}, v1
    v_mov_b32 v{AV_E}, v8
    v_mov_b32 v{AV_V}, v9
    ds_read_b128 {vr(K0B[0],4)}, v{AV_K}
    ds_read_b32 v{K1B[0]}, v{AV_E}
    ds_read_b128 {vr(VB[0],4)}, v{AV_V}
    ds_read_b128 {vr(VB[0]+4,4)}, v{AV_V} offset:608
    ds_read_b128 {vr(VB[1],4)}, v{AV_V}
    ds_read_b128 {vr(VB[1]+4,4)}, v{AV_V} offset:608
    s_mov_b32 s{S_IT}, 0
    s_waitcnt lgkmcnt(0)
    v_mfma_f32_32x32x16_bf16 {vr(SB[0],16)}, {vr(K0B[0],4)}, {vr(Q0,4)}, 0
    v_mfma_f32_32x32x16_bf16 {vr(SB[0],16)}, {vr(K1B[0],4)}, {vr(Q1,4)}, {vr(SB[0],16)}
    s_nop 7
    s_nop 3""")
    NIT=64//KT
    a(f".L{label}_loop:")
    for k in range(KT):
        for t in range(4):
            u=4*k+t; S=SB[u%2]; S2=SB[(u+1)%2]; P=PB[u%2]; Pp=PB[(u+1)%2]
            nk,nt=(k,t+1) if t<3 else (k+1,0)
            pk,pt=(k,t-1) if t>0 else (k-1,3)
            M=[f"v_mfma_f32_32x32x16_bf16 {vr(S2,16)}, {vr(K0B[nk%2],4)}, {vr(Q0+4*nt,4)}, 0",
               f"v_mfma_f32_32x32x16_bf16 {vr(S2,16)}, {vr(K1B[nk%2],4)}, {vr(Q1+4*nt,4)}, {vr(S2,16)}",
               f"v_mfma_f32_32x32x16_bf16 {vr(OA+16*pt,16)}, {vr(VB[pk%2],4)}, {vr(Pp,4)}, {vr(OA+16*pt,16)}",
               f"v_mfma_f32_32x32x16_bf16 {vr(OA+16*pt,16)}, {vr(VB[pk%2]+4,4)}, {vr(Pp+4,4)}, {vr(OA+16*pt,16)}"]
            sh=[[],[],[],[]]
            o=(k+1)*KVT
            if t==0:
                sh[0]=[f"ds_read_b128 {vr(K0B[(k+1)%2],4)}, v{AV_K} offset:{o}"]
                sh[1]=[f"ds_read_b32 v{K1B[(k+1)%2]}, v{AV_E} offset:{o}"]
            if t==1:
                sh[0]=[f"ds_read_b128 {vr(VB[(k+1)%2],4)}, v{AV_V} offset:{o}"]
                sh[1]=[f"ds_read_b128 {vr(VB[(k+1)%2]+4,4)}, v{AV_V} offset:{o+608}"]
            if t==2: sh[3]=["s_waitcnt lgkmcnt(0)"]
            if k==KT-1 and t==3:
                sh[0]=[f"s_add_u32 s{S_IT}, s{S_IT}, 1"]
                sh[1]=[f"s_cmp_eq_u32 s{S_IT}, {(16//KT)}"]
                sh[2]=[f"s_cbranch_scc1 .L{label}_mid", f".L{label}_midret:"]
                sh[3]=[f"s_cmp_lg_u32 s{S_IT}, {NIT}"]
            c=lambda i: f"v_cvt_pk_bf16_f32 v{P+i}, v{S+2*i}, v{S+2*i+1}"
            for q in range(4):
                a(M[q])
                for x in sh[q]: a(x)
                for j in range(4): a(f"v_exp_f32 v{S+4*q+j}, v{S+4*q+j}")
                if q>0: a(c(2*q-2)); a(c(2*q-1))
                if k==KT-1 and t==2 and q<3:
                    rr=(AV_K,AV_E,AV_V)[q]; a(f"v_add_u32 v{rr}, {KT*KVT}, v{rr}")
            a(c(6)); a(c(7))
    a(f"s_cbranch_scc1 .L{label}_loop")
    lk=KT-1
    a(f"""s_nop 1
    v_mfma_f32_32x32x16_bf16 {vr(OA+48,16)}, {vr(VB[lk%2],4)}, {vr(PB[1],4)}, {vr(OA+48,16)}
    v_mfma_f32_32x32x16_bf16 {vr(OA+48,16)}, {vr(VB[lk%2]+4,4)}, {vr(PB[1]+4,4)}, {vr(OA+48,16)}
    s_branch .L{label}_chk
    .L{label}_mid:
    s_cmp_lg_u32 s{S_PASS}, 1
    s_cbranch_scc1 .L{label}_midret
    s_waitcnt vmcnt(0)
    s_barrier
    s_branch .L{label}_midret
    .L{label}_chk:
    s_waitcnt lgkmcnt(0)
    s_nop 7
    s_nop 3
    v_add_f32 v11, v{OA+10}, v{OA+26}
    v_add_f32 v12, v{OA+42}, v{OA+58}
    v_add_f32 v11, v11, v12
    v_mov_b32 v12, {hexf(2.0**60)}
    v_cmp_nlt_f32 vcc, v11, v12
    s_nop 3
    s_and_b32 s38, vcc_lo, vcc_lo
    s_cbranch_scc0 .L{label}_ok
    s_cmp_eq_u32 s{S_PASS}, 1
    s_mov_b32 s{S_PASS}, 64
    s_cbranch_scc1 .L{label}_maxpass
    .L{label}_ok:
    """)
    T.stamp()
    a(f"""
    s_mul_i32 s38, s51, 36864
    s_lshl_b32 s39, s50, 10
    s_add_u32 s60, s38, s39
    s_add_u32 s60, s60, {WS_O}
    s_lshr_b32 s39, s50, 3
    s_lshl_b32 s39, s39, 10
    s_add_u32 s61, s38, s39
    s_bfe_u32 s39, s50, 0x10001
    s_lshl_b32 s39, s39, 9
    s_add_u32 s61, s61, s39
    s_bfe_u32 s39, s50, 0x10002
    s_lshl_b32 s39, s39, 3
    s_add_u32 s61, s61, s39
    s_and_b32 s39, s50, 1
    s_lshl_b32 s39, s39, 2
    s_add_u32 s61, s61, s39
    s_add_u32 s61, s61, {WS_O+32*1024}
    v_cmp_lt_u32 vcc, 31, v0
    v_mov_b32 v6, 0x7ff00000
    s_nop 0
    v_cndmask_b32 v5, v1, v6, vcc
    """)
    for t in range(4):
        O=OA+16*t
        a(f"""v_mov_b32 v10, v{O+10}
        s_nop 1
        v_permlane32_swap_b32 v{O+10}, v10
        s_nop 1
        v_rcp_f32 v10, v{O+10}
        s_nop 0""")
        for i in range(10): a(f"v_mul_f32 v{O+i}, v{O+i}, v10")
        for i in range(5): a(f"v_cvt_pk_bf16_f32 v{O+i}, v{O+2*i}, v{O+2*i+1}")
        a(f"buffer_store_dwordx4 {vr(O,4)}, v1, {WSR}, s60 offen")
        a(f"buffer_store_dword v{O+4}, v5, {WSR}, s61 offen")
        a(f"s_add_u32 s60, s60, 36864\n s_add_u32 s61, s61, 36864")
    T.store()
```

```python
from asmlib import *
import math
SLOT=36864
V_DMA_A=2; V_DMA_B=3; V_RDA=4; V_RDB=5; V_RD=6; V_C12=8
V_T=10
V_AF=16
V_H=40; V_G=48; V_U=64; V_Y16=80; V_X=112
S_WAVE=28; S_SLOT=29; S_DSLOT=30; S_T2=35; S_CNT=34
S_SRD0=16; S_SRD1=20; S_SRD2=24
S_WS=52
S_TABD=40; S_TABG=66; DBIAS=3072

def is_trans(x): return x.startswith(("v_exp","v_rcp","v_rsq","v_sqrt","v_log"))
def is_vmem(x): return x.startswith(("buffer_","global_"))

class Phase:
    def __init__(self, ops, rdbase):
        self.ops=ops
        self.rdbase=rdbase
class Dma:
    def __init__(self, loads, adv):
        self.loads=loads
        self.adv=adv

class Ring:
    def __init__(self, a, NB=6, D=5, wgrp=3, dmacost=4, dmapos=(2,3)):
        self.a=a; self.NB=NB; self.D=D; self.W=wgrp; self.dmacost=dmacost; self.dmapos=dmapos
        self.s=Sched(a); self.fragno=0; self.pending=[]
        self.vm=0; self.dma_tok=[]
        self.maxused=[]
    def emit(self, x):
        self.a(x)
        if is_vmem(x): self.vm+=1
        if x.startswith("ds_"): self.s.ds_issued+=1
    def wait_vm(self, tok):
        n=self.vm-tok
        assert n<=63
        self.a(f"s_waitcnt vmcnt({n})")
    def mk_dma(self, srd_, vaddr, tab, tab0zero, step, slotadv=True):
        L=[]
        for i in range(9):
            pre=[]
            if i==0: pre.append(f"s_mov_b32 m0, s{S_DSLOT}")
            elif i%4==0: pre.append(f"s_add_u32 m0, m0, 4096")
            so = "0" if (i==0 and tab0zero) else f"s{tab+i}"
            L.append((pre,f"buffer_load_dwordx4 v{vaddr}, s[{srd_}:{srd_+3}], {so} offen offset:{1024*(i%4)} lds"))
        adv=[[f"s_add_u32 s{S_DSLOT}, s{S_DSLOT}, {SLOT}",
              f"s_cmp_ge_u32 s{S_DSLOT}, {4*SLOT}",
              f"s_cselect_b32 s{S_T2}, {4*SLOT}, 0",
              f"s_sub_u32 s{S_DSLOT}, s{S_DSLOT}, s{S_T2}"]]
        if step:
            if step>0: adv.append([f"s_add_u32 s{srd_}, s{srd_}, {step}", f"s_addc_u32 s{srd_+1}, s{srd_+1}, 0", f"s_sub_u32 s{srd_+2}, s{srd_+2}, {step}"])
            else: adv.append([f"s_sub_u32 s{srd_}, s{srd_}, {-step}", f"s_subb_u32 s{srd_+1}, s{srd_+1}, 0", f"s_add_u32 s{srd_+2}, s{srd_+2}, {-step}"])
        return Dma(L,adv)
    def issue_dma_now(self, d):
        for pre,x in d.loads:
            for y in pre: self.a(y); self.a("s_nop 0")
            self.emit(x)
        self.dma_tok.append(self.vm)
        for g in d.adv:
            for x in g: self.a(x)
    def start_reads(self, ph):
        a=self.a
        self.wait_vm(self.dma_tok.pop(0))
        a("s_barrier")
        a(f"v_add_u32 v{V_RD}, s{S_SLOT}, v{ph.rdbase}")
    def slot_adv(self):
        return [f"s_add_u32 s{S_SLOT}, s{S_SLOT}, {SLOT}", f"s_cmp_ge_u32 s{S_SLOT}, {4*SLOT}", f"s_cselect_b32 s{S_SLOT}, 0, s{S_SLOT}"]
    def read_frag(self, offs):
        b=V_AF+4*(self.fragno%self.NB); self.fragno+=1
        self.s.ds(f"ds_read_b64_tr_b16 {vr(b,2)}, v{V_RD} offset:{offs[0]}")
        tok=self.s.ds(f"ds_read_b64_tr_b16 {vr(b+2,2)}, v{V_RD} offset:{offs[1]}")
        self.pending.append((tok,b))
    def run(self, ph, nxt, fillers=(), dma=None, first=False, fixed=None):
        a=self.a; D=self.D; W=self.W; ops=ph.ops; N=len(ops)
        if first:
            self.start_reads(ph)
            for x in self.slot_adv(): a(x)
            for g in range(D): self.read_frag(ops[g][1])
        dm = dma.loads if dma else []
        dmpos = {self.dmapos[0]+self.dmapos[1]*i: i for i in range(len(dm))}
        used=[3.0+(1 if g%W==0 else 0) for g in range(N)]
        extra=[[] for g in range(N)]
        for g,i in dmpos.items():
            used[g]+=self.dmacost
            extra[g-1]+=dm[i][0]; used[g-1]+=len(dm[i][0])
        if nxt:
            used[N-D]+=3
            extra[N-D+1]+=self.slot_adv(); used[N-D+1]+=3
        if dma:
            g=max(dmpos)+1
            for grp in dma.adv:
                extra[g]+=grp; used[g]+=len(grp); g+=1
        fill=[[] for g in range(N)]
        if fixed:
            for g,L in fixed.items():
                fill[g]+=L; used[g]+=len(L)
        for (L,g0,g1) in fillers:
            if not L: continue
            cost=[2 if is_trans(x) else (3 if is_vmem(x) else 1) for x in L]
            tot=sum(cost); lo,hi=0,60
            for _ in range(40):
                mid=(lo+hi)/2
                if sum(max(0,mid-used[g]) for g in range(g0,g1))>=tot: hi=mid
                else: lo=mid
            cum=[]; c=0
            for g in range(g0,g1): c+=max(0,hi-used[g]); cum.append(c)
            acc=0; gi=0
            for x,cc in zip(L,cost):
                mid=acc+cc/2
                while gi<len(cum)-1 and cum[gi]<mid: gi+=1
                fill[g0+gi].append(x); used[g0+gi]+=cc; acc+=cc
        self.maxused.append(max(used))
        for g in range(N):
            tok,b=self.pending.pop(0)
            if g%W==0:
                k=min(W-1,len(self.pending))
                self.s.wait_ds(self.pending[k-1][0] if k>0 else tok)
            self.s.wait_ds(tok)
            a(ops[g][0](vr(b,4)))
            n=g+D
            if n<N: self.read_frag(ops[n][1])
            elif nxt:
                if n==N: self.start_reads(nxt)
                self.read_frag(nxt.ops[n-N][1])
            if g in dmpos:
                self.emit(dm[dmpos[g]][1])
                if dmpos[g]==len(dm)-1: self.dma_tok.append(self.vm)
            for x in fill[g]: self.emit(x)
            for x in extra[g]: a(x)
    def state(self):
        return (self.fragno%self.NB, len(self.pending), [self.vm-t for t in self.dma_tok])

def lane_consts(a, rowstride_a):
    a(f"""
    v_lshrrev_b32 v1, 2, v0
    v_and_b32 v9, 3, v0
    v_lshlrev_b32 v9, 4, v9
    s_movk_i32 s38, {rowstride_a}
    v_mul_lo_u32 v{V_DMA_A}, v1, s38
    v_add_u32 v{V_DMA_A}, v{V_DMA_A}, v9
    s_movk_i32 s38, 1152
    v_mul_lo_u32 v{V_DMA_B}, v1, s38
    v_add_u32 v{V_DMA_B}, v{V_DMA_B}, v9
    v_bfe_u32 v1, v0, 2, 2
    v_lshlrev_b32 v1, 6, v1
    v_bfe_u32 v9, v0, 4, 1
    v_lshlrev_b32 v9, 5, v9
    v_add_u32 v1, v1, v9
    v_and_b32 v9, 3, v0
    v_lshlrev_b32 v9, 3, v9
    v_add_u32 v1, v1, v9
    v_lshrrev_b32 v9, 5, v0
    v_lshlrev_b32 v10, 9, v9
    v_add_u32 v{V_RDA}, v1, v10
    v_lshlrev_b32 v10, 8, v9
    v_add_u32 v{V_RDB}, v1, v10
    """)

S_X=56
V_ST=40
XORD=[8,0,1,2,3,4,5,6,7]
def x_lds_base(cb):
    if cb==8: return (32*1024, SLOT)
    return ((cb>>1)*SLOT + (cb&1)*4096, 8192)
def ln_issue(a, r, s_tg):
    a(f"""
    v_lshrrev_b32 v1, 3, v0
    s_movk_i32 s38, 1152
    v_mul_lo_u32 v7, v1, s38
    v_lshrrev_b32 v1, 4, v0
    v_and_b32 v9, 7, v0
    v_xor_b32 v1, v1, v9
    v_lshlrev_b32 v1, 4, v1
    v_add_u32 v7, v7, v1
    v_xor_b32 v1, 64, v1
    v_lshrrev_b32 v9, 3, v0
    v_mul_lo_u32 v9, v9, s38
    v_add_u32 v9, v9, v1
    s_mul_i32 s38, s{s_tg}, {32*1152}
    s_mul_i32 s60, s{S_WAVE}, {SLOT}
    s_lshl_b32 s61, s{S_WAVE}, 13
    """)
    toks={}
    for cb in XORD:
        base,ws=x_lds_base(cb)
        a(f"s_add_u32 m0, s{60 if cb==8 else 61}, {base}")
        for rb in range(4):
            a(f"s_add_u32 s39, s38, {rb*8*1152+cb*128-rb*1024}")
            r.emit(f"buffer_load_dwordx4 v{7 if rb%2==0 else 9}, s[{S_X}:{S_X+3}], s39 offen offset:{rb*1024} lds")
        toks[cb]=r.vm
    return toks
def ln_stats(a, r, toks, after_cb, mid=None):
    VA=V_AF
    a(f"""
    v_and_b32 v1, 31, v0
    v_lshrrev_b32 v10, 3, v1
    v_lshlrev_b32 v10, 10, v10
    v_and_b32 v11, 7, v1
    v_lshlrev_b32 v11, 7, v11
    v_add_u32 v10, v10, v11
    v_bfe_u32 v11, v1, 1, 3
    v_lshrrev_b32 v1, 5, v0
    v_xor_b32 v11, v11, v1
    v_lshlrev_b32 v11, 4, v11
    v_add_u32 v10, v10, v11
    v_add_u32 v{VA}, s61, v10
    v_add_u32 v{VA+8}, s60, v10
    v_add_u32 v{VA+4}, {2*SLOT}, v{VA}
    """)
    for k in range(1,4):
        a(f"v_xor_b32 v{VA+k}, {32*k}, v{VA}")
        a(f"v_xor_b32 v{VA+4+k}, {32*k}, v{VA+4}")
        a(f"v_xor_b32 v{VA+8+k}, {32*k}, v{VA+8}")
    for i in range(8): a(f"v_mov_b32 v{V_ST+i}, 0")
    a("v_mov_b32 v11, 0x3f803f80")
    if mid: mid()
    def dots(cb):
        for s in range(4*cb,4*cb+4):
            for i in range(4):
                a(f"v_dot2c_f32_bf16 v{V_ST+i}, v{V_X+4*s+i}, v11")
            for i in range(4):
                a(f"v_dot2c_f32_bf16 v{V_ST+4+i}, v{V_X+4*s+i}, v{V_X+4*s+i}")
    prev=None
    for cb in XORD:
        r.wait_vm(toks[cb])
        base,_=x_lds_base(cb)
        for k in range(4):
            s=4*cb+k
            if cb==8: reg,off=VA+8+k, base
            elif base<2*SLOT: reg,off=VA+k, base
            else: reg,off=VA+4+k, base-2*SLOT
            r.s.ds(f"ds_read_b128 {vr(V_X+4*s,4)}, v{reg} offset:{off}")
        if prev is not None: dots(prev)
        a("s_waitcnt lgkmcnt(0)"); r.s.ds_done=r.s.ds_issued
        if cb in after_cb:
            a("s_barrier"); after_cb[cb]()
        prev=cb
    dots(prev)
    S=V_ST
    a(f"""
    s_nop 2
    v_add_f32 v{S}, v{S}, v{S+1}
    v_add_f32 v{S+2}, v{S+2}, v{S+3}
    v_add_f32 v{S+4}, v{S+4}, v{S+5}
    v_add_f32 v{S+6}, v{S+6}, v{S+7}
    v_add_f32 v{S}, v{S}, v{S+2}
    v_add_f32 v{S+4}, v{S+4}, v{S+6}
    v_mov_b32 v{S+1}, v{S}
    v_mov_b32 v{S+5}, v{S+4}
    s_nop 1
    v_permlane32_swap_b32 v{S}, v{S+1}
    v_permlane32_swap_b32 v{S+4}, v{S+5}
    s_nop 1
    v_add_f32 v{S}, v{S}, v{S+1}
    v_add_f32 v{S+4}, v{S+4}, v{S+5}
    v_mul_f32 v{S}, {hexf(1/576)}, v{S}
    v_mul_f32 v{S+4}, {hexf(1/576)}, v{S+4}
    v_fma_f32 v{S+4}, -v{S}, v{S}, v{S+4}
    v_max_f32 v{S+4}, 0, v{S+4}
    v_cvt_pk_bf16_f32 v{S+1}, v{S}, v{S+4}
    v_lshlrev_b32 v{S}, 16, v{S+1}
    v_and_b32 v{S+4}, 0xffff0000, v{S+1}
    v_add_f32 v{S+4}, {hexf(1e-5)}, v{S+4}
    v_cvt_pk_bf16_f32 v{S+4}, v{S+4}, v{S+4}
    v_and_b32 v{S+4}, 0xffff0000, v{S+4}
    v_sqrt_f32 v{S+4}, v{S+4}
    s_nop 0
    v_cvt_pk_bf16_f32 v{S+4}, v{S+4}, v{S+4}
    v_and_b32 v{S+4}, 0xffff0000, v{S+4}
    v_rcp_f32 v12, v{S+4}
    s_nop 0
    v_mul_f32 v14, v{S}, v12
    v_sub_f32 v14, 0, v14
    """)
def ln_apply(s):
    L=[]
    for i in range(4):
        x=V_X+4*s+i; t=V_ST+2*i
        L.append(f"v_lshlrev_b32 v{t}, 16, v{x}")
        L.append(f"v_and_b32 v{t+1}, 0xffff0000, v{x}")
    for i in range(4):
        t=V_ST+2*i
        L.append(f"v_pk_fma_f32 v[{t}:{t+1}], v[{t}:{t+1}], v[12:13], v[14:15] op_sel_hi:[1,0,0]")
    for i in range(4):
        x=V_X+4*s+i; t=V_ST+2*i
        L.append(f"v_cvt_pk_bf16_f32 v{x}, v{t}, v{t+1}")
    return L
```

```python
from paths import *
def k3_code(a, timing=False):
    T=Timer(a,timing)
    OF=16
    PT=160
    XR=224
    AC=232
    AF=0
    if timing: a("s_memrealtime s[94:95]")
    T.stamp()
    a(f"""
    s_load_dwordx2 s[4:5], s[0:1], 0
    s_load_dwordx2 s[6:7], s[0:1], 16
    s_load_dwordx2 s[8:9], s[0:1], 56
    s_load_dwordx2 s[14:15], s[0:1], 72
    v_lshrrev_b32 v1, 6, v0
    v_and_b32 v0, 63, v0
    v_readfirstlane_b32 s{S_WAVE}, v1
    s_mul_hi_u32 s37, s2, {(2**32+5)//6}
    s_mul_i32 s36, s37, 6
    s_sub_u32 s36, s2, s36
    s_and_b32 s40, s{S_WAVE}, 1
    s_lshr_b32 s41, s{S_WAVE}, 1
    s_lshl_b32 s51, s37, 1
    s_add_u32 s51, s51, s40
    s_mul_i32 s50, s36, 3
    s_add_u32 s50, s50, s41
    v_lshrrev_b32 v1, 2, v0
    v_and_b32 v2, 3, v0
    v_lshlrev_b32 v2, 4, v2
    s_movk_i32 s38, 1152
    v_mul_lo_u32 v3, v1, s38
    v_add_u32 v3, v3, v2
    v_lshrrev_b32 v4, 1, v1
    v_mul_u32_u24 v4, 18, v4
    v_and_b32 v1, 1, v1
    v_add3_u32 v4, v4, v1, 16
    v_mul_lo_u32 v4, v4, s38
    v_add_u32 v4, v4, v2
    s_cmp_eq_u32 s40, 1
    s_cselect_b64 vcc, -1, 0
    v_cndmask_b32 v4, v3, v4, vcc
    s_waitcnt lgkmcnt(0)
    """)
    srd(a,16,6,576*1152); srd(a,20,4,2048*1152); srd(a,24,8,2048*1152); srd(a,S_WS,14,1<<28)
    WSR=f"s[{S_WS}:{S_WS+3}]"
    a(f"""
    s_mul_i32 s42, s41, 36864
    s_mul_i32 s43, s40, {18*1024}
    s_add_u32 m0, s42, s43
    s_mul_i32 s43, s40, {18*18*1152}
    s_lshl_b32 s44, s50, 6
    s_add_u32 s43, s43, s44
    """)
    for i in range(18):
        if i==14:
            a(f"""s_cmp_eq_u32 s40, 1
            s_cselect_b32 s43, s44, s43
            s_movk_i32 s45, {18*1152}
            s_cselect_b32 s45, {8*18*1152}, s45""")
        a(f"buffer_load_dwordx4 v{3 if i<14 else 4}, s[16:19], s43 offen lds")
        if i<17:
            a(f"s_add_u32 m0, m0, 1024")
            a(f"s_add_u32 s43, s43, {18*1152}" if i<14 else "s_add_u32 s43, s43, s45")
    a(f"""
    v_lshlrev_b32 v5, 4, v0
    s_mul_i32 s43, s51, 36864
    s_add_u32 s43, s43, {WS_O}
    """)
    for s in range(36):
        a(f"buffer_load_dwordx4 {vr(OF+4*s,4)}, v5, {WSR}, s43 offen offset:{1024*(s%4)}")
        if s%4==3: a("s_add_u32 s43, s43, 4096")
    a(f"""
    s_mul_i32 s43, s51, {18*2048}
    s_lshl_b32 s44, s50, 11
    s_add_u32 s43, s43, s44
    s_add_u32 s43, s43, {WS_PART}
    """)
    def pload(sp):
        a(f"buffer_load_dwordx4 {vr(PT+8*sp,4)}, v5, {WSR}, s43 offen")
        a(f"buffer_load_dwordx4 {vr(PT+8*sp+4,4)}, v5, {WSR}, s43 offen offset:1024")
        a(f"s_add_u32 s43, s43, {64*18*2048}")
    for sp in range(4): pload(sp)
    a(f"""
    v_bfe_u32 v1, v0, 2, 2
    v_lshlrev_b32 v1, 6, v1
    v_bfe_u32 v2, v0, 4, 1
    v_lshlrev_b32 v2, 5, v2
    v_add_u32 v1, v1, v2
    v_and_b32 v2, 3, v0
    v_lshlrev_b32 v2, 3, v2
    v_add_u32 v1, v1, v2
    v_lshrrev_b32 v2, 5, v0
    v_lshlrev_b32 v6, 8, v2
    v_add3_u32 v6, v1, v6, s42
    v_and_b32 v1, 31, v0
    s_movk_i32 s38, 1152
    v_mul_lo_u32 v7, v1, s38
    v_lshlrev_b32 v2, 4, v2
    v_add_u32 v7, v7, v2
    s_mul_i32 s46, s51, {32*1152}
    s_lshl_b32 s44, s50, 6
    s_add_u32 s46, s46, s44
    s_waitcnt vmcnt(44)
    s_barrier
    """)
    for sp in range(4,8): pload(sp)
    a(f"buffer_load_dwordx4 {vr(XR,4)}, v7, s[20:23], s46 offen")
    a(f"buffer_load_dwordx4 {vr(XR+4,4)}, v7, s[20:23], s46 offen offset:32")
    T.stamp()
    AFR=[8,12,248,252]
    sc=Sched(a)
    pend=[]
    def rd(s):
        b=AFR[s%4]
        sc.ds(f"ds_read_b64_tr_b16 {vr(b,2)}, v6 offset:{1024*s}")
        pend.append(sc.ds(f"ds_read_b64_tr_b16 {vr(b+2,2)}, v6 offset:{1024*s+512}"))
    for s in range(3): rd(s)
    for s in range(36):
        if s%4==0: a(f"s_waitcnt vmcnt({54-(s+4)})")
        sc.wait_ds(pend.pop(0))
        c="0" if s==0 else vr(AC,16)
        a(f"v_mfma_f32_32x32x16_bf16 {vr(AC,16)}, {vr(AFR[s%4],4)}, {vr(OF+4*s,4)}, {c}")
        if s+3<36: rd(s+3)
    Y=16
    a("v_mov_b32 v1, 0x00003f80\n v_mov_b32 v2, 0x3f800000")
    for i in range(16): a(f"v_mov_b32 v{Y+i}, 0")
    for sp in range(8):
        a(f"s_waitcnt vmcnt({2+2*(7-sp)})")
        for k in range(8):
            a(f"v_dot2c_f32_bf16 v{Y+2*k}, v{PT+8*sp+k}, v1")
            a(f"v_dot2c_f32_bf16 v{Y+2*k+1}, v{PT+8*sp+k}, v2")
    T.stamp()
    E=32
    a("s_nop 2")
    for i in range(16): a(f"v_mul_f32 v{E+i}, {hexf(-math.log2(math.e))}, v{Y+i}")
    for i in range(16): a(f"v_exp_f32 v{E+i}, v{E+i}")
    for i in range(16): a(f"v_add_f32 v{E+i}, 1.0, v{E+i}")
    for i in range(16): a(f"v_rcp_f32 v{E+i}, v{E+i}")
    for i in range(16): a(f"v_mul_f32 v{Y+i}, v{Y+i}, v{AC+i}")
    for i in range(16): a(f"v_mul_f32 v{Y+i}, v{Y+i}, v{E+i}")
    R=48
    for i in range(8): a(f"v_cvt_pk_bf16_f32 v{R+i}, v{Y+2*i}, v{Y+2*i+1}")
    a("s_nop 1")
    for jj in range(2):
        a(f"v_permlane32_swap_b32 v{R+4*jj}, v{R+4*jj+2}")
        a(f"v_permlane32_swap_b32 v{R+4*jj+1}, v{R+4*jj+3}")
    a("s_waitcnt vmcnt(0)")
    for i in range(8):
        a(f"""v_lshlrev_b32 v{E+4*i%16}, 16, v{R+i}
        v_and_b32 v{E+4*i%16+1}, 0xffff0000, v{R+i}
        v_lshlrev_b32 v{E+4*i%16+2}, 16, v{XR+i}
        v_and_b32 v{E+4*i%16+3}, 0xffff0000, v{XR+i}
        v_add_f32 v{E+4*i%16}, v{E+4*i%16}, v{E+4*i%16+2}
        v_add_f32 v{E+4*i%16+1}, v{E+4*i%16+1}, v{E+4*i%16+3}
        v_cvt_pk_bf16_f32 v{R+i}, v{E+4*i%16}, v{E+4*i%16+1}""")
    a(f"buffer_store_dwordx4 {vr(R,4)}, v7, s[24:27], s46 offen")
    a(f"buffer_store_dwordx4 {vr(R+4,4)}, v7, s[24:27], s46 offen offset:32")
    T.store()
```

```python
from engine import *
WS_Q=0
WS_QE=2<<20
WS_KV=3<<20
KVT=2368; KVH=64*KVT
WS_O=8<<20
WS_PART=12<<20
WS_TIME=200<<20
NSPLIT=8; FR=4608//NSPLIT; NC=FR//32
C1 = 2*math.sqrt(2/math.pi)*math.log2(math.e)
C12 = C1*0.044715
QSCALE = math.log2(math.e)/math.sqrt(18.0)
class Timer:
    def __init__(self,a,on): self.a=a; self.on=on; self.n=0
    def stamp(self):
        if self.on:
            self.a(f"s_memrealtime s[{76+2*self.n}:{77+2*self.n}]" if self.n in (0,) and False else f"s_memtime s[{76+2*self.n}:{77+2*self.n}]"); self.n+=1
            assert self.n<=8
    def store(self, s_wg=2):
        if not self.on: return
        a=self.a
        a("s_waitcnt vmcnt(0)"); self.stamp()
        a("s_memrealtime s[92:93]")
        a("s_waitcnt lgkmcnt(0)")
        for i in range(1,self.n): a(f"s_sub_u32 s{76+2*i}, s{76+2*i}, s76")
        a(f"""s_lshl_b32 s38, s{s_wg}, 2
        s_add_u32 s38, s38, s{S_WAVE}
        s_lshl_b32 s38, s38, 6
        s_add_u32 s38, s38, {WS_TIME}
        v_mov_b32 v1, 0""")
        for i in range(8): a(f"v_mov_b32 v{16+i}, s{76+2*min(i,self.n-1)}")
        a("v_mov_b32 v16, s92")
        a("v_mov_b32 v24, s94")
        a(f"buffer_store_dwordx4 v[16:19], v1, s[{S_WS}:{S_WS+3}], s38 offen")
        a(f"buffer_store_dwordx4 v[20:23], v1, s[{S_WS}:{S_WS+3}], s38 offen offset:16")
        a(f"buffer_store_dword v24, v1, s[{S_WS}:{S_WS+3}], s38 offen offset:32")

def ytile(t): return (f"a[{16*t}:{16*t+15}]" if t<16 else f"v[{V_Y16+16*(t-16)}:{V_Y16+16*(t-16)+15}]")
def yreg(t,i): return (f"a{16*t+i}" if t<16 else f"v{V_Y16+16*(t-16)+i}")

def common_entry(a, s_idx):
    a(f"""
    s_load_dwordx2 s[10:11], s[0:1], 0
    s_load_dwordx2 s[14:15], s[0:1], 72
    v_lshrrev_b32 v1, 6, v0
    v_and_b32 v0, 63, v0
    v_readfirstlane_b32 s{S_WAVE}, v1
    s_and_b32 s36, s{s_idx}, 7
    s_lshr_b32 s37, s{s_idx}, 3
    s_lshl_b32 s38, s37, 2
    s_add_u32 s51, s38, s{S_WAVE}
    s_waitcnt lgkmcnt(0)
    """)
    srd(a,S_X,10,2048*1152); srd(a,S_WS,14,1<<28)

def gu_phase(acc, xfirst=False):
    ops=[]
    for s in range(36):
        c = "0" if s==0 else vr(acc,16)
        if xfirst: ops.append((lambda af,s=s,c=c: f"v_mfma_f32_32x32x16_bf16 {vr(acc,16)}, {vr(V_X+4*s,4)}, {af}, {c}", (1024*s,1024*s+256)))
        else: ops.append((lambda af,s=s,c=c: f"v_mfma_f32_32x32x16_bf16 {vr(acc,16)}, {af}, {vr(V_X+4*s,4)}, {c}", (1024*s,1024*s+256)))
    return Phase(ops,V_RDA)
def d_phase(tile_major=False):
    ops=[]
    order=[(j,t) for t in range(18) for j in range(2)] if tile_major else [(j,t) for j in range(2) for t in range(18)]
    for j,t in order:
        o=t*2048+j*1024
        ops.append((lambda af,t=t,j=j: f"v_mfma_f32_32x32x16_bf16 {ytile(t)}, {af}, {vr(V_H+4*j,4)}, {ytile(t)}", (o,o+512)))
    return Phase(ops,V_RDB)
def gelu1():
    L=[]
    for q in range(0,16,4):
        e=list(range(q,q+4)); T=[V_T+i for i in range(4)]
        for i,x in enumerate(e): L.append(f"v_mul_f32 v{T[i]}, v{V_G+x}, v{V_G+x}")
        for i,x in enumerate(e): L.append(f"v_fmaak_f32 v{T[i]}, v{T[i]}, v{V_C12}, {hexf(-C1)}")
        for i,x in enumerate(e): L.append(f"v_mul_f32 v{T[i]}, v{T[i]}, v{V_G+x}")
        for i,x in enumerate(e): L.append(f"v_exp_f32 v{T[i]}, v{T[i]}")
        for i,x in enumerate(e): L.append(f"v_add_f32 v{T[i]}, 1.0, v{T[i]}")
        for i,x in enumerate(e): L.append(f"v_rcp_f32 v{T[i]}, v{T[i]}")
        for i,x in enumerate(e): L.append(f"v_mul_f32 v{V_G+x}, v{V_G+x}, v{T[i]}")
    return L
def gelu2(): return [f"v_mul_f32 v{V_U+x}, v{V_U+x}, v{V_G+x}" for x in range(16)]
def cvt_h(half): return [f"v_cvt_pk_bf16_f32 v{V_H+4*half+i}, v{V_U+8*half+2*i}, v{V_U+8*half+2*i+1}" for i in range(4)]

def first_phase_apply(a):
    for x in ln_apply(0)+ln_apply(1): a(x)
    return {g: ln_apply(g+2) for g in range(34)}

def ffn_path(a, s_idx, timing=False, label="ffn", **kw):
    r=Ring(a,**kw); T=Timer(a,timing)
    if timing: a("s_memrealtime s[94:95]")
    T.stamp()
    a(f"""
    s_load_dwordx4 s[4:7], s[0:1], 32
    s_load_dwordx2 s[8:9], s[0:1], 48
    """)
    common_entry(a,s_idx)
    toks=ln_issue(a,r,51)
    lane_consts(a,9216)
    a(f"v_mov_b32 v{V_C12}, {hexf(-C12)}")
    WG,WU,WD=S_SRD0,S_SRD1,S_SRD2
    srd(a,WG,4,576*4608*2); srd(a,WU,6,576*4608*2); srd(a,WD,8,576*4608*2)
    a(f"""
    s_mul_i32 s{S_DSLOT}, s{S_WAVE}, 9216
    s_mul_i32 s38, s{S_WAVE}, {9*16*9216}
    v_add_u32 v{V_DMA_A}, s38, v{V_DMA_A}
    s_mul_i32 s38, s36, {FR*2}
    s_add_u32 s{WG}, s{WG}, s38
    s_addc_u32 s{WG+1}, s{WG+1}, 0
    s_sub_u32 s{WG+2}, s{WG+2}, s38
    s_add_u32 s{WU}, s{WU}, s38
    s_addc_u32 s{WU+1}, s{WU+1}, 0
    s_sub_u32 s{WU+2}, s{WU+2}, s38
    s_mul_i32 s38, s36, {FR*1152}
    s_add_u32 s{WD}, s{WD}, s38
    s_addc_u32 s{WD+1}, s{WD+1}, 0
    s_sub_u32 s{WD+2}, s{WD+2}, s38
    s_sub_u32 s{WD}, s{WD}, {DBIAS}
    s_subb_u32 s{WD+1}, s{WD+1}, 0
    s_add_u32 s{WD+2}, s{WD+2}, {DBIAS}
    s_mul_i32 s38, s{S_WAVE}, 9
    s_mov_b32 s{S_SLOT}, 0
    """)
    for i in range(9):
        if i: a(f"s_mov_b32 s{S_TABG+i}, {i*16*9216-1024*(i%4)}")
        a(f"""s_add_u32 s39, s38, {i}
        s_and_b32 s50, s39, 1
        s_mul_i32 s50, s50, {16*1152}
        s_lshr_b32 s39, s39, 1
        s_lshl_b32 s39, s39, 6
        s_add_u32 s39, s39, {DBIAS-1024*(i%4)}
        s_add_u32 s{S_TABD+i}, s39, s50""")
    dG=r.mk_dma(WG,V_DMA_A,S_TABG,True,64); dU=r.mk_dma(WU,V_DMA_A,S_TABG,True,64); dD=r.mk_dma(WD,V_DMA_B,S_TABD,False,32*1152)
    def zero_y():
        for t in range(18):
            for i in range(16):
                a(f"v_accvgpr_write_b32 a{16*t+i}, 0" if t<16 else f"v_mov_b32 {yreg(t,i)}, 0")
    ln_stats(a,r,toks,{1:lambda: r.issue_dma_now(dG), 3:lambda: r.issue_dma_now(dU)}, mid=zero_y)
    T.stamp()
    G=gu_phase(V_G); U=gu_phase(V_U); Dp=d_phase()
    fx=first_phase_apply(a)
    r.run(G,U,[],dG,first=True,fixed=fx)
    r.run(U,G,[(gelu1(),3,36)],dU)
    a("s_nop 7")
    for x in gelu2()+cvt_h(0): a(x)
    T.stamp()
    def body(last=False):
        g1=gelu1(); n1=56
        r.run(G,U,[(cvt_h(1),1,4)],dD)
        r.run(U,Dp,[(g1[:n1],3,36)],(dD if last else dG))
        FD=[(g1[n1:]+gelu2(),0,30),(cvt_h(0),30,36)]
        if last: r.run(Dp,d_phase(True),FD,None)
        else: r.run(Dp,G,FD,dU)
    a(f"s_mov_b32 s{S_CNT}, {NC-2}")
    st=r.state()
    a(f".L{label}_loop:")
    body()
    assert st==r.state(), (st,r.state())
    a(f"""s_sub_u32 s{S_CNT}, s{S_CNT}, 1
    s_cmp_lg_u32 s{S_CNT}, 0
    s_cbranch_scc1 .L{label}_loop""")
    T.stamp()
    body(last=True)
    for x in cvt_h(1): a(x)
    a(f"""
    s_mul_i32 s38, s36, {64*18*2048}
    s_mul_i32 s39, s51, {18*2048}
    s_add_u32 s38, s38, s39
    s_add_u32 s38, s38, {WS_PART}
    v_lshlrev_b32 v1, 4, v0
    """)
    def ep(t):
        L=[]; tb = V_X + (t%4)*24
        if t<16:
            for i in range(16): L.append(f"v_accvgpr_read_b32 v{tb+8+i}, a{16*t+i}")
            src=tb+8
        else: src=V_Y16+16*(t-16)
        for i in range(8): L.append(f"v_cvt_pk_bf16_f32 v{tb+i}, v{src+2*i}, v{src+2*i+1}")
        o=(t%2)*2048
        L.append(f"buffer_store_dwordx4 {vr(tb,4)}, v1, s[{S_WS}:{S_WS+3}], s38 offen offset:{o}")
        L.append(f"buffer_store_dwordx4 {vr(tb+4,4)}, v1, s[{S_WS}:{S_WS+3}], s38 offen offset:{o+1024}")
        if t%2: L.append(f"s_add_u32 s38, s38, 4096")
        return L
    NOV=6
    fl=[]
    for t in range(NOV): fl.append((ep(t), 6+5*t, 11+5*t))
    r.run(d_phase(True),None,fl,None)
    T.stamp()
    for t in range(NOV,18):
        if t==16: a("s_nop 7")
        for x in ep(t): r.emit(x)
    T.store()
    return r

V_ACC=None
def qkv_path(a, s_idx, timing=False, sc="", T=None, **kw):
    r=Ring(a,**kw); T=T or Timer(a,timing)
    if T.on: a("s_memrealtime s[94:95]")
    T.stamp()
    a("s_load_dwordx2 s[4:5], s[0:1], 8")
    common_entry(a,s_idx)
    toks=ln_issue(a,r,51)
    lane_consts(a,3456)
    W=S_SRD0
    srd(a,W,4,576*3456)
    coff=[2304,2368,2432,1152+112,1152+48,128,64,0]
    a(f"""
    s_mul_i32 s{S_DSLOT}, s{S_WAVE}, 9216
    s_mul_i32 s38, s{S_WAVE}, {9*16*3456}
    v_add_u32 v{V_DMA_A}, s38, v{V_DMA_A}
    s_mul_i32 s38, s36, 144
    s_add_u32 s38, s38, {coff[0]}
    s_add_u32 s{W}, s{W}, s38
    s_addc_u32 s{W+1}, s{W+1}, 0
    s_sub_u32 s{W+2}, s{W+2}, s38
    s_mov_b32 s{S_SLOT}, 0
    v_and_b32 v1, 3, v0
    v_cmp_eq_u32 vcc, 0, v1
    v_mov_b32 v1, {1152-16-128}
    s_nop 0
    v_cndmask_b32 v1, v1, 0, vcc
    v_add_u32 v{V_DMA_B}, v1, v{V_DMA_A}
    """)
    for i in range(1,9): a(f"s_mov_b32 s{S_TABG+i}, {i*16*3456-1024*(i%4)}")
    dm=[r.mk_dma(W, V_DMA_B if p==5 else V_DMA_A, S_TABG, True, (coff[p+1]-coff[p]) if p<7 else 0) for p in range(8)]
    ln_stats(a,r,toks,{1:lambda: r.issue_dma_now(dm[0]), 3:lambda: r.issue_dma_now(dm[1])})
    T.stamp()
    acc=[48,64,80,96,48,64,80,None]
    phs=[gu_phase(acc[p], xfirst=(p<3)) for p in range(7)]
    acc[7]=96; phs.append(gu_phase(96))
    WSR=f"s[{S_WS}:{S_WS+3}]"
    a(f"""
    s_mul_i32 s62, s36, {4*KVH}
    s_mul_i32 s38, s51, {KVT}
    s_add_u32 s62, s62, s38
    s_add_u32 s62, s62, {WS_KV}
    s_lshl_b32 s63, s36, 18
    s_lshl_b32 s38, s51, 10
    s_add_u32 s63, s63, s38
    s_add_u32 s63, s63, {WS_Q}
    s_lshl_b32 s64, s36, 15
    s_lshl_b32 s38, s51, 7
    s_add_u32 s64, s64, s38
    s_add_u32 s64, s64, {WS_QE}
    """)
    P=40
    def v_addr(i):
        L=[f"v_and_b32 v1, 31, v0", f"v_add_u32 v1, {32*i}, v1",
           f"v_mul_u32_u24 v9, 3641, v1", f"v_lshrrev_b32 v9, 16, v9",
           f"v_mul_u32_u24 v7, 18, v9", f"v_sub_u32 v7, v1, v7"]
        if i==2:
            L+=[f"v_cmp_le_u32 vcc, 72, v1", f"v_subrev_u32 v10, 72, v1", "s_nop 0",
                f"v_cndmask_b32 v9, v9, v10, vcc", f"v_mov_b32 v10, 18", "s_nop 0", f"v_cndmask_b32 v7, v7, v10, vcc"]
        L+=[f"v_lshlrev_b32 v7, 4, v7", f"s_mov_b32 s38, {KVH}", f"v_mul_lo_u32 v9, v9, s38", f"v_add_u32 v7, v7, v9",
            f"v_lshrrev_b32 v9, 5, v0", f"v_mul_u32_u24 v9, 304, v9", f"v_add_u32 v7, v7, v9"]
        if i==2:
            L+=[f"s_movk_i32 s38, 76", f"v_cmp_le_u32 s[32:33], s38, v1", f"v_mov_b32 v10, 0x7ff00000", "s_nop 0", f"v_cndmask_b32 v7, v7, v10, s[32:33]"]
        return L
    def v_ep(i):
        L=v_addr(i); A_=acc[i]
        L+=[f"v_cvt_pk_bf16_f32 v{P+k}, v{A_+2*k}, v{A_+2*k+1}" for k in range(8)]
        if i==2:
            L+=["v_mov_b32 v10, 0x3f803f80"]+[f"v_cndmask_b32 v{P+k}, v{P+k}, v10, vcc" for k in range(8)]
        L+=[f"buffer_store_dwordx4 {vr(P,4)}, v7, {WSR}, s62 offen offset:1152 {sc}",
            f"buffer_store_dwordx4 {vr(P+4,4)}, v7, {WSR}, s62 offen offset:{1152+608} {sc}", "s_nop 1"]
        return L
    def piece_regs(isk):
        R=[]
        for p in range(9):
            gp = p + (9 if isk else 0)
            t=gp//4; j=gp%4
            base={0:acc[7],1:acc[6],2:acc[5],3:acc[4],4:acc[3]}[t]
            R.append(base+4*j)
        return R
    def qk_ep(isk, heads):
        R=piece_regs(isk); L=[]
        need={0:[0,1,2],1:[2,3,4],2:[4,5,6],3:[6,7,8]}
        return R,need
    def pack(R,p,scale):
        L=[]
        if scale: L+=[f"v_mul_f32 v{R[p]+i}, {hexf(QSCALE)}, v{R[p]+i}" for i in range(4)]
        L+=[f"v_cvt_pk_bf16_f32 v{R[p]}, v{R[p]}, v{R[p]+1}", f"v_cvt_pk_bf16_f32 v{R[p]+1}, v{R[p]+2}, v{R[p]+3}"]
        return L
    def qk_store(isk):
        R=piece_regs(isk); L=[]
        L+=["v_cmp_lt_u32 s[32:33], 31, v0", "v_lshlrev_b32 v7, 4, v0"]
        sb = "s62" if isk else "s63"; hs = KVH if isk else 65536
        def mv(d,s): return [f"v_mov_b32 v{d}, v{s}", f"v_mov_b32 v{d+1}, v{s+1}"]
        def sel(d,lo,hi): return [f"v_cndmask_b32 v{d}, v{lo}, v{hi}, s[32:33]", f"v_cndmask_b32 v{d+1}, v{lo+1}, v{hi+1}, s[32:33]"]
        quads=[mv(P,R[0])+mv(P+2,R[1]), mv(P+4,R[3])+sel(P+6,R[4],R[2]), mv(P,R[5])+sel(P+2,R[6],R[4]), mv(P+4,R[7])+mv(P+6,R[8])]
        for h in range(4):
            L+=quads[h]
            L+=[f"s_add_u32 s38, {sb}, {h*hs}", f"buffer_store_dwordx4 {vr(P+4*(h%2),4)}, v7, {WSR}, s38 offen {sc}"]
            if h==1: L+=["s_nop 1"]
        he = KVH if isk else 8192
        L+=sel(10,R[2],R[6])
        L+=["v_and_b32 v7, 31, v0","v_lshlrev_b32 v7, 2, v7","v_lshrrev_b32 v9, 5, v0", f"s_mov_b32 s38, {2*he}", "v_mul_lo_u32 v9, v9, s38", "v_add_u32 v7, v7, v9"]
        eb = "s62" if isk else "s64"; eo = 1024 if isk else 0
        L+=[f"buffer_store_dword v10, v7, {WSR}, {eb} offen offset:{eo} {sc}", f"s_add_u32 s38, {eb}, {he}", f"buffer_store_dword v11, v7, {WSR}, s38 offen offset:{eo} {sc}", "s_nop 1"]
        return L
    Rk=piece_regs(True); Rq=piece_regs(False)
    fx=first_phase_apply(a)
    r.run(phs[0],phs[1],[],dm[2],first=True,fixed=fx)
    r.run(phs[1],phs[2],[(v_ep(0),4,34)],dm[3])
    r.run(phs[2],phs[3],[(v_ep(1),4,34)],dm[4])
    r.run(phs[3],phs[4],[(v_ep(2),4,34)],dm[5])
    r.run(phs[4],phs[5],[(pack(Rk,7,0)+pack(Rk,8,0),4,34)],dm[6])
    r.run(phs[5],phs[6],[(sum([pack(Rk,p,0) for p in (3,4,5,6)],[]),4,34)],dm[7])
    r.run(phs[6],phs[7],[(sum([pack(Rk,p,0) for p in (0,1,2)],[])+qk_store(True)+pack(Rq,8,1),4,34)],None)
    r.run(phs[7],None,[(sum([pack(Rq,p,1) for p in (4,5,6,7)],[]),4,34)],None)
    a("s_nop 7\n s_nop 3")
    for x in sum([pack(Rq,p,1) for p in (0,1,2,3)],[])+qk_store(False): r.emit(x)
    T.stamp()
    return r,T
```

```python
import sys
from attn import *
from k3 import *
timing = "-t" in sys.argv
out = sys.argv[1]
hdr_src=open("recurrent_scan__mha_block__geglu_ffn__prompt.s.ref").read().split("\n")
hdr="\n".join(l for l in hdr_src if l.startswith(";") and "@launch" not in l and "Override" not in l and "grid=ceil" not in l)+"\n"
a=A(); a("s_cmp_ge_u32 s2, 128\n s_cbranch_scc1 .Lk1_end")
r,T=qkv_path(a,2,timing); T.store(); a(".Lk1_end:")
k1=kernel_text("qkv_kernel",a.text(),256,256)
a=A(); a("""s_cmp_ge_u32 s2, 256
 s_cbranch_scc1 .Lk2_end
 s_and_b32 s3, s2, 8
 s_lshr_b32 s65, s2, 4
 s_lshl_b32 s65, s65, 3
 s_and_b32 s38, s2, 7
 s_or_b32 s65, s65, s38
 s_cmp_lg_u32 s3, 0
 s_cbranch_scc1 .Lk2_att""")
r=ffn_path(a,65,timing); print("ffn slots",r.maxused)
a("s_endpgm\n.Lk2_att:")
attn_path(a,Timer(a,timing),standalone=True,s_idx=65)
a(".Lk2_end:")
k2=kernel_text("main_kernel",a.text(),512,256)
a=A(); a("s_cmp_ge_u32 s2, 192\n s_cbranch_scc1 .Lk3_end")
k3_code(a,timing); a(".Lk3_end:")
k3=kernel_text("fin_kernel",a.text(),256,256)
hdr+="; @launch kernel=qkv_kernel grid=(128,1,1) block=(256,1,1) lds=147456\n"
hdr+="; @launch kernel=main_kernel grid=(256,1,1) block=(256,1,1) lds=155648\n"
hdr+="; @launch kernel=fin_kernel grid=(192,1,1) block=(384,1,1) lds=110592\n"
open(out,"w").write(hdr+'.amdgcn_target "amdgcn-amd-amdhsa--gfx950"\n.text\n'+k1+k2+k3)
```

```python
from paths import *
QX=3*SLOT
XL01=4*SLOT; XL2=QX+18432
WOS=(1,2,0)
S_WO=S_SRD1; S_OUT=S_SRD2
V_WO2=8; V_OCB=13
def wo_dma(r, step):
    d=r.mk_dma(S_WO,V_DMA_B,S_TABD,False,step)
    d.loads=[(pre, x.replace(f"v{V_DMA_B},",f"v{V_WO2},") if i>=5 else x) for i,(pre,x) in enumerate(d.loads)]
    return d
def qkv_path(a, s_idx, T, **kw):
    sc="sc1"
    r=Ring(a,**kw)
    if T.on: a("s_memrealtime s[94:95]")
    T.stamp()
    a("s_load_dwordx4 s[4:7], s[0:1], 8\n s_load_dwordx2 s[8:9], s[0:1], 56")
    common_entry(a,s_idx)
    W=S_SRD0
    srd(a,W,4,576*3456); srd(a,S_WO,6,576*1152); srd(a,S_OUT,8,2048*1152)
    coff=[2304,2368,2432,1152+128,1152+64,1152,128,64,0]
    a(f"""s_lshl_b32 s38, s2, 2
    s_add_u32 s38, s38, s{S_WAVE}
    s_cmp_eq_u32 s38, 32
    s_cselect_b32 s49, 0, {OOB}
    v_cmp_gt_u32 vcc, 40, v0
    v_lshlrev_b32 v12, 8, v0
    v_mov_b32 v13, {OOB}
    v_cndmask_b32 v12, v13, v12, vcc
    v_or_b32 v12, s49, v12
    v_mov_b32 v14, 0
    s_mov_b32 s38, {WS_CNT}""")
    r.emit(f"buffer_store_dword v14, v12, s[{S_WS}:{S_WS+3}], s38 offen sc1")
    def flag():
        a(f"v_lshlrev_b32 v12, 8, v0\n v_or_b32 v12, s49, v12\n v_mov_b32 v14, 1")
        r.emit(f"buffer_store_dword v14, v12, s[{S_DBG}:{S_DBG+3}], 0 offen sc1")
    if PF:
        a("s_mov_b32 s38, s51"); pf_calc(a,3456,128,18,0,12)
        a(f"""s_mul_i32 s64, s36, 144
        s_andn2_b32 s64, s64, 127
        s_add_u32 s39, s39, s64
        s_add_u32 s39, s39, 2304""")
        r.emit(f"buffer_load_dword a255, v12, s[{W}:{W+3}], s39 offen")
    def setup(a):
        lane_consts(a,3456)
        a(f"""
        s_mul_i32 s{S_DSLOT}, s{S_WAVE}, 9216
        s_mul_i32 s38, s{S_WAVE}, {9*16*3456}
        v_add_u32 v{V_DMA_A}, s38, v{V_DMA_A}
        s_mov_b32 s{S_SLOT}, 0
        s_mul_i32 s38, s36, 144
        s_and_b32 s38, s38, 63
        v_bfe_u32 v1, v0, 4, 1
        v_lshlrev_b32 v1, 5, v1
        v_and_b32 v10, 3, v0
        v_lshl_add_u32 v1, v10, 3, v1
        v_sub_u32 v{V_RDA}, v{V_RDA}, v1
        v_add_u32 v{V_OCB}, s38, v1
        v_bfe_u32 v1, v0, 3, 1
        v_bfe_u32 v10, v0, 4, 1
        v_lshl_add_u32 v1, v10, 2, v1
        v_lshrrev_b32 v10, 5, v0
        v_lshl_add_u32 v1, v10, 1, v1
        v_mul_u32_u24 v10, 18, v1
        v_bfe_u32 v1, v0, 2, 1
        v_add3_u32 v10, v10, v1, 16
        s_movk_i32 s38, 1152
        v_mul_lo_u32 v10, v10, s38
        v_and_b32 v1, 3, v0
        v_lshlrev_b32 v1, 4, v1
        v_add_u32 v10, v10, v1
        s_cmp_eq_u32 s{S_WAVE}, 3
        s_cselect_b64 vcc, -1, 0
        v_cndmask_b32 v{V_WO2}, v{V_DMA_B}, v10, vcc
        s_mul_i32 s38, s{S_WAVE}, {9*18*1152}
        """)
        for i in range(1,9): a(f"s_mov_b32 s{S_TABG+i}, {i*16*3456-1024*(i%4)}")
        for i in range(9):
            a(f"s_add_u32 s{S_TABD+i}, s38, {i*18*1152+DBIAS-1024*(i%4)}")
            if i>=5: a(f"s_cmp_eq_u32 s{S_WAVE}, 3\n s_cselect_b32 s{S_TABD+i}, {(i-5)*8*18*1152+DBIAS-1024*(i%4)}, s{S_TABD+i}")
        ln_stats_setup(a)
    toks=ln_issue(a,r,51,capture(setup),LEAD,flag)
    T.stamp("issued")
    if PF:
        a("s_mov_b32 s38, s51"); pf_calc(a,3456,128,36,0,12)
        a(f"""s_movk_i32 s50, -256
        s_cmp_lt_u32 s51, 18
        s_cselect_b32 s38, 1152, s50
        s_add_u32 s39, s39, s64
        s_cmp_lt_u32 s51, 36
        s_cselect_b32 s38, s38, 0
        s_add_u32 s39, s39, s38""")
        r.emit(f"buffer_load_dword a255, v12, s[{W}:{W+3}], s39 offen")
        a("s_mov_b32 s38, s51"); pf_calc(a,1152,0,18,0,12)
        a(f"""s_lshl_b32 s38, s36, 7
        s_cmp_lt_u32 s51, 9
        s_cselect_b32 s38, s38, 1024
        s_add_u32 s39, s39, s38""")
        r.emit(f"buffer_load_dword a255, v12, s[{S_WO}:{S_WO+3}], s39 offen")
    a(f"""
    s_mul_i32 s38, s36, 144
    s_andn2_b32 s38, s38, 63
    s_add_u32 s38, s38, {coff[0]}
    s_add_u32 s{W}, s{W}, s38
    s_addc_u32 s{W+1}, s{W+1}, 0
    s_sub_u32 s{W+2}, s{W+2}, s38
    s_lshl_b32 s38, s36, 7
    s_add_u32 s{S_WO}, s{S_WO}, s38
    s_addc_u32 s{S_WO+1}, s{S_WO+1}, 0
    s_sub_u32 s{S_WO+2}, s{S_WO+2}, s38
    s_sub_u32 s{S_WO}, s{S_WO}, {DBIAS}
    s_subb_u32 s{S_WO+1}, s{S_WO+1}, 0
    s_add_u32 s{S_WO+2}, s{S_WO+2}, {DBIAS}
    """)
    dm=[r.mk_dma(W, V_DMA_A, S_TABG, True, (coff[p+1]-coff[p]) if p<8 else 0) for p in range(9)]
    ln_stats(a,r,toks,{1:dm[0], 3:dm[1]},T,LEAD)
    T.stamp(); T.stamp("stats")
    acc=[48,64,80,96,48,64,80,None]
    phs=[gu_phase(acc[p], xfirst=(p<3)) for p in range(7)]
    acc[7]=96; phs.append(gu_phase(96))
    WSR=f"s[{S_WS}:{S_WS+3}]"
    a(f"""
    s_mul_i32 s62, s36, {4*KVH}
    s_mul_i32 s38, s51, {KVT}
    s_add_u32 s62, s62, s38
    s_add_u32 s62, s62, {WS_KV}
    """)
    P=40
    def v_addr(i):
        L=[f"v_and_b32 v1, 31, v0", f"v_add_u32 v1, {32*i}, v1",
           f"v_mul_u32_u24 v9, 3641, v1", f"v_lshrrev_b32 v9, 16, v9",
           f"v_mul_u32_u24 v7, 18, v9", f"v_sub_u32 v7, v1, v7"]
        if i==2:
            L+=[f"v_cmp_le_u32 vcc, 72, v1", f"v_subrev_u32 v10, 72, v1", "s_nop 0",
                f"v_cndmask_b32 v9, v9, v10, vcc", f"v_mov_b32 v10, 18", "s_nop 0", f"v_cndmask_b32 v7, v7, v10, vcc"]
        L+=[f"v_lshlrev_b32 v7, 4, v7", f"s_mov_b32 s38, {KVH}", f"v_mul_lo_u32 v9, v9, s38", f"v_add_u32 v7, v7, v9",
            f"v_lshrrev_b32 v9, 5, v0", f"v_mul_u32_u24 v9, {VS}, v9", f"v_add_u32 v7, v7, v9"]
        if i==2:
            L+=[f"s_movk_i32 s38, 76", f"v_cmp_le_u32 s[32:33], s38, v1", f"v_mov_b32 v10, 0x7ff00000", "s_nop 0", f"v_cndmask_b32 v7, v7, v10, s[32:33]"]
        return L
    def v_pack(i):
        A_=acc[i]; L=[]
        if i==2: L+=["v_and_b32 v1, 31, v0", "v_cmp_le_u32 vcc, 8, v1", "v_mov_b32 v10, 0x3f803f80"]
        L+=[f"v_cvt_pk_bf16_f32 v{P+k}, v{A_+2*k}, v{A_+2*k+1}" for k in range(8)]
        if i==2: L+=[f"v_cndmask_b32 v{P+k}, v{P+k}, v10, vcc" for k in range(8)]
        L+=[f"v_accvgpr_write_b32 a{8*i+k}, v{P+k}" for k in range(8)]
        return L
    def v_st(i):
        return v_addr(i)+[f"buffer_store_dwordx4 a[{8*i}:{8*i+3}], v7, {WSR}, s62 offen offset:1152 {sc}",
            f"buffer_store_dwordx4 a[{8*i+4}:{8*i+7}], v7, {WSR}, s62 offen offset:{1152+2*VS} {sc}"]
    def piece_regs(isk):
        R=[]
        for p in range(9):
            gp = p + (9 if isk else 0)
            t=gp//4; j=gp%4
            base={0:acc[7],1:acc[6],2:acc[5],3:acc[4],4:acc[3]}[t]
            R.append(base+4*j)
        return R
    def qk_ep(isk, heads):
        R=piece_regs(isk); L=[]
        need={0:[0,1,2],1:[2,3,4],2:[4,5,6],3:[6,7,8]}
        return R,need
    def pack(R,p,scale):
        L=[]
        if scale: L+=[f"v_mul_f32 v{R[p]+i}, {hexf(QSCALE)}, v{R[p]+i}" for i in range(4)]
        L+=[f"v_cvt_pk_bf16_f32 v{R[p]}, v{R[p]}, v{R[p]+1}", f"v_cvt_pk_bf16_f32 v{R[p]+1}, v{R[p]+2}, v{R[p]+3}"]
        return L
    def qk_store(isk):
        R=piece_regs(isk); L=[]
        L+=["v_cmp_lt_u32 s[32:33], 31, v0", "v_lshlrev_b32 v7, 4, v0"]
        if not isk: L+=[f"s_lshl_b32 s38, s{S_WAVE}, 10", f"s_add_u32 s38, s38, {QX}", "v_add_u32 v7, s38, v7"]
        def mv(d,s): return [f"v_mov_b32 v{d}, v{s}", f"v_mov_b32 v{d+1}, v{s+1}"]
        def sel(d,lo,hi): return [f"v_cndmask_b32 v{d}, v{lo}, v{hi}, s[32:33]", f"v_cndmask_b32 v{d+1}, v{lo+1}, v{hi+1}, s[32:33]"]
        quads=[mv(P,R[0])+mv(P+2,R[1]), mv(P+4,R[3])+sel(P+6,R[4],R[2]), mv(P,R[5])+sel(P+2,R[6],R[4]), mv(P+4,R[7])+mv(P+6,R[8])]
        for h in range(4):
            L+=quads[h]
            if isk: L+=[f"s_add_u32 s38, s62, {h*KVH}", f"buffer_store_dwordx4 {vr(P+4*(h%2),4)}, v7, {WSR}, s38 offen {sc}"]
            else: L+=[f"ds_write_b128 v7, {vr(P+4*(h%2),4)} offset:{h*4096}"]
            if h==1: L+=["s_nop 1"]
        he = KVH if isk else 512
        L+=sel(10,R[2],R[6])
        L+=["v_and_b32 v7, 31, v0","v_lshlrev_b32 v7, 2, v7","v_lshrrev_b32 v9, 5, v0", f"s_mov_b32 s38, {2*he}", "v_mul_lo_u32 v9, v9, s38", "v_add_u32 v7, v7, v9"]
        if isk: L+=[f"buffer_store_dword v10, v7, {WSR}, s62 offen offset:1024 {sc}", f"s_add_u32 s38, s62, {he}", f"buffer_store_dword v11, v7, {WSR}, s38 offen offset:1024 {sc}", "s_nop 1"]
        else: L+=[f"s_lshl_b32 s38, s{S_WAVE}, 7", f"s_add_u32 s38, s38, {QX+16384}", "v_add_u32 v7, s38, v7", "ds_write_b32 v7, v10", "ds_write_b32 v7, v11 offset:512"]
        return L
    Rk=piece_regs(True); Rq=piece_regs(False)
    RN=15
    def rdcalc(p, t=10):
        L=[]
        if p==5:
            L+=["v_and_b32 v1, 0x12, v0", "v_cmp_eq_u32 vcc, 0, v1", f"v_add_u32 v{t}, 128, v{V_OCB}", f"v_add_u32 v1, -16, v{V_OCB}",
                f"v_cndmask_b32 v{t}, v1, v{t}, vcc", f"v_cndmask_b32 v1, 1, 0, vcc", f"v_lshrrev_b32 v{RN}, 6, v{t}", f"v_sub_u32 v{RN}, v1, v{RN}"]
        else:
            tb=[0,64,128,112,48,None,64,0][p]
            L+=[f"v_add_u32 v{t}, {tb}, v{V_OCB}", f"v_lshrrev_b32 v{RN}, 6, v{t}"]
            if p>=3: L+=[f"v_sub_u32 v{RN}, {1 if p<5 else 0}, v{RN}"]
        L+=[f"v_and_b32 v{RN}, 3, v{RN}", f"v_mul_u32_u24 v{RN}, {SLOT}, v{RN}", f"v_and_b32 v{t}, 63, v{t}", f"v_add3_u32 v{RN}, v{RN}, v{t}, v{V_RDA}"]
        return L
    for p,nw in enumerate([2,1,0,2,1,1,1,1]): phs[p].rdreg=RN; phs[p].nwait=nw
    for x in rdcalc(0): a(x)
    fx=first_phase_apply(a)
    woA=wo_dma(r,64); woB=wo_dma(r,0); woC=wo_dma(r,0)
    t=A(); t(f"s_lshl_b32 s39, s36, 8\n s_add_u32 s39, s39, {CNT_KV}"); publish(t,39,True)
    r.run(phs[0],phs[1],[(rdcalc(1),20,30)],[(dm[2],(1,2),True),(dm[3],(19,2),True)],first=True,fixed=fx)
    T.stamp("p0")
    r.run(phs[1],phs[2],[(v_pack(0),4,24),(rdcalc(2),24,31)],dm[4])
    T.stamp("p1")
    r.run(phs[2],phs[3],[(v_pack(1),4,24),(rdcalc(3),24,31)],dm[5])
    T.stamp("p2")
    r.run(phs[3],phs[4],[(v_pack(2),4,24),(rdcalc(4),24,31)],dm[6])
    T.stamp("p3")
    r.run(phs[4],phs[5],[(init_load()+pack(Rk,7,0)+pack(Rk,8,0),4,20),(rdcalc(5),20,31)],None)
    T.stamp("p4")
    r.run(phs[5],phs[6],[(sum([pack(Rk,p,0) for p in (3,4,5,6)],[])+rdcalc(6),2,31)],[(dm[7],(1,2),True)])
    T.stamp("p5")
    r.run(phs[6],phs[7],[(sum([pack(Rk,p,0) for p in (0,1,2)],[])+rdcalc(7,14 if False else 11),2,18),(qk_store(True)+v_st(0),18,36)],[(dm[8],(1,2),True),(woA,(19,2),False)])
    T.stamp("p6")
    r.run(phs[7],None,[(v_st(1)+v_st(2),0,8),(pack(Rq,8,1)+sum([pack(Rq,p,1) for p in (4,5,6,7)],[]),8,PUBG)],[(woB,(1,2),False)],fixed={PUBG:[x.strip() for x in t.l]})
    T.stamp(); T.stamp("qkv")
    qfin=["s_nop 7"]+sum([pack(Rq,p,1) for p in (0,1,2,3)],[])+qk_store(False)
    return r,qfin,woB,woC
PUBG=30

Q0=16; Q1=32; SB=(48,64); PB=(80,88); K0B=(96,100,104,108); K1B=(112,116,120,124); VB=(128,136,144,152); OA=160; MX=224
S_PASS=62; S_IT=63; S_KVO=61; S_KVB=60
XRAW=192
def attn_path(a, r, T, qfin, woB, woC, label="att"):
    WSR=f"s[{S_WS}:{S_WS+3}]"; KT=4
    VK,VE,VV=4,5,6
    def ld_tile(b, so):
        return [f"buffer_load_dwordx4 {vr(K0B[b],4)}, v{VK}, {WSR}, s{so} offen sc1",
                f"buffer_load_dword v{K1B[b]}, v{VE}, {WSR}, s{so} offen sc1",
                f"buffer_load_dwordx4 {vr(VB[b],4)}, v{VV}, {WSR}, s{so} offen sc1",
                f"buffer_load_dwordx4 {vr(VB[b]+4,4)}, v{VV}, {WSR}, s{so} offen offset:{2*VS} sc1"]
    a(f"""
    v_mov_b32 v2, v{V_RDB}
    s_lshl_b32 s50, s36, 2
    s_add_u32 s50, s50, s{S_WAVE}
    s_mul_i32 s{S_KVB}, s50, {KVH}
    s_add_u32 s{S_KVB}, s{S_KVB}, {WS_KV}
    v_lshlrev_b32 v{VK}, 4, v0
    v_and_b32 v7, 31, v0
    v_lshlrev_b32 v{VE}, 2, v7
    v_add_u32 v{VE}, 1024, v{VE}
    v_cmp_lt_u32 vcc, 15, v7
    v_and_b32 v9, 19, v7
    v_lshrrev_b32 v10, 5, v0
    v_cndmask_b32 v9, v7, v9, vcc
    v_mul_u32_u24 v10, {VS}, v10
    v_lshlrev_b32 v9, 4, v9
    v_add_u32 v9, v9, v10
    v_add_u32 v{VV}, 1152, v9
    s_lshl_b32 s39, s36, 8
    s_add_u32 s39, s39, {CNT_KV}
    """)
    poll(a,39,16)
    T.stamp(); T.stamp("polled")
    a(f"s_mov_b32 s{S_KVO}, s{S_KVB}")
    nq=0
    pk=[x for x in qfin if x.startswith(("v_mul_f32","v_cvt_pk","s_nop 7"))]; rest=[x for x in qfin if x not in pk]
    for b in range(3):
        L=ld_tile(b,38); a(f"s_add_u32 s38, s{S_KVB}, {b*KVT}")
        for x in L[1:]: a(x)
    for x in pk+rest: a(x)
    for b in range(3):
        a(f"s_add_u32 s38, s{S_KVB}, {b*KVT}"); a(ld_tile(b,38)[0])
    a(f"""s_mul_i32 s38, s37, {76*128}
    s_add_u32 s38, s38, s{S_KVB}
    v_lshlrev_b32 v12, 7, v0
    v_cmp_gt_u32 vcc, 12, v0
    v_mov_b32 v13, {OOB}
    buffer_load_dword v15, v12, {WSR}, s38 offen sc1
    v_cndmask_b32 v13, v13, v12, vcc
    s_add_u32 s38, s38, {64*128}
    buffer_load_dword v15, v13, {WSR}, s38 offen sc1""")
    a(f"""s_waitcnt lgkmcnt(0)
    s_barrier
    s_lshl_b32 s38, s{S_WAVE}, 12
    s_add_u32 s38, s38, {QX}
    v_add_u32 v10, s38, v{VK}
    s_lshl_b32 s38, s{S_WAVE}, 9
    s_add_u32 s38, s38, {QX+16384-1024}
    v_add_u32 v11, s38, v{VE}""")
    for t in range(4):
        a(f"ds_read_b128 {vr(Q0+4*t,4)}, v10 offset:{1024*t}")
        a(f"ds_read_b32 v{Q1+4*t}, v11 offset:{128*t}")
    a(f"""s_and_b32 s38, s36, 1
    s_lshl_b32 s38, s38, 6
    s_lshl_b32 s39, s36, 7
    s_sub_u32 s38, s38, s39
    s_add_u32 s38, s38, {1024-64}
    s_add_u32 s{S_WO}, s{S_WO}, s38
    s_addc_u32 s{S_WO+1}, s{S_WO+1}, 0
    s_sub_u32 s{S_WO+2}, s{S_WO+2}, s38
    s_mul_i32 s{S_DSLOT}, s{S_WAVE}, 9216""")
    r.issue_dma_now(woC)
    a(f"""s_mul_i32 s46, s51, {32*1152}
    s_and_b32 s38, s36, 1
    s_lshl_b32 s38, s38, 6
    s_add_u32 s47, s46, s38
    s_add_u32 s47, s47, 1024
    s_lshl_b32 s38, s36, 7
    s_add_u32 s46, s46, s38
    v_and_b32 v7, 31, v0
    s_movk_i32 s38, 1152
    v_mul_lo_u32 v7, v7, s38
    v_lshrrev_b32 v9, 5, v0
    v_lshl_add_u32 v12, v9, 4, v7
    s_lshr_b32 s38, s36, 1
    s_cmp_eq_u32 s38, s{S_WAVE}
    s_cselect_b32 s45, 0, {OOB}
    v_or_b32 v13, s45, v{V_DMA_B}
    s_lshl_b32 s38, s{S_WAVE}, 12
    s_add_u32 m0, s38, {XL01}
    s_add_u32 s39, s46, {16*1152-1024}
    """)
    XS=f"s[{S_X}:{S_X+3}]"
    a(f"""buffer_load_dwordx4 v{V_DMA_B}, {XS}, s46 offen lds
    buffer_load_dwordx4 v{V_DMA_B}, {XS}, s39 offen offset:1024 lds
    s_add_u32 m0, m0, 2048
    s_add_u32 s44, s46, 64
    s_add_u32 s39, s39, 64
    buffer_load_dwordx4 v{V_DMA_B}, {XS}, s44 offen lds
    buffer_load_dwordx4 v{V_DMA_B}, {XS}, s39 offen offset:1024 lds
    s_lshl_b32 s38, s{S_WAVE}, 11
    s_add_u32 m0, s38, {XL2}
    s_add_u32 s39, s47, {16*1152-1024}
    buffer_load_dwordx4 v13, {XS}, s47 offen lds
    buffer_load_dwordx4 v13, {XS}, s39 offen offset:1024 lds
    v_mov_b32 v3, v12
    v_or_b32 v8, s45, v12""")
    NE=2+9+6
    for b in K1B:
        a(f"v_mov_b32 v{b+1}, 0x3f803f80\n v_mov_b32 v{b+2}, 0x00003f80\n v_mov_b32 v{b+3}, 0")
    a(f"v_cmp_gt_u32 vcc, 32, v0\n s_mov_b32 s{S_PASS}, 1\n s_waitcnt lgkmcnt(0)")
    for t in range(4): a(f"v_cndmask_b32 v{Q1+4*t}, 0, v{Q1+4*t}, vcc\n v_mov_b32 v{Q1+4*t+3}, 0")
    a(f"s_waitcnt vmcnt({NE+2})")
    T.stamp("kv0")
    a(f".L{label}_maxpass:")
    for t in range(4):
        a(f"v_mov_b32 v{Q1+4*t+1}, 0\n v_mov_b32 v{Q1+4*t+2}, 0\n v_mov_b32 v{MX+t}, 0xff800000")
    a(f"s_mov_b32 s{S_IT}, s{S_PASS}")
    a(f".L{label}_maxloop:")
    for t in range(4):
        S=OA+16*t
        a(f"v_mfma_f32_32x32x16_bf16 {vr(S,16)}, {vr(K0B[0],4)}, {vr(Q0+4*t,4)}, 0")
    for t in range(4):
        S=OA+16*t
        a(f"v_mfma_f32_32x32x16_bf16 {vr(S,16)}, {vr(K1B[0],4)}, {vr(Q1+4*t,4)}, {vr(S,16)}")
    a("s_nop 3")
    for t in range(4):
        S=OA+16*t
        if t==3: a("s_nop 3")
        for i in range(8): a(f"v_max3_f32 v{MX+t}, v{S+2*i}, v{S+2*i+1}, v{MX+t}")
    a(f"""s_sub_u32 s{S_IT}, s{S_IT}, 1
    s_cmp_lg_u32 s{S_IT}, 0
    s_cbranch_scc1 .L{label}_maxnext
    s_cmp_lg_u32 s{S_PASS}, 1
    s_cbranch_scc1 .L{label}_reload
    .L{label}_fold:""")
    a("v_cmp_gt_u32 vcc, 32, v0")
    for t in range(4): a(f"v_mov_b32 v{10+t}, v{MX+t}")
    a("s_nop 0")
    for t in range(4): a(f"v_permlane32_swap_b32 v{10+t}, v{MX+t}")
    for i in range(8): a(f"v_mov_b32 v{PB[1]+i}, 0\n v_mov_b32 v{VB[3]+i}, 0")
    for t in range(4):
        m=MX+t; x=10+t
        a(f"""v_max_f32 v{x}, v{x}, v{m}
        v_sub_f32 v{x}, 0, v{x}
        v_and_b32 v7, 0xffff0000, v{x}
        v_sub_f32 v{x}, v{x}, v7
        v_and_b32 v9, 0xffff0000, v{x}
        v_sub_f32 v{x}, v{x}, v9
        v_lshrrev_b32 v7, 16, v7
        v_or_b32 v7, v7, v9
        v_lshrrev_b32 v{x}, 16, v{x}
        v_cndmask_b32 v{Q1+4*t+1}, 0, v7, vcc
        v_cndmask_b32 v{Q1+4*t+2}, 0, v{x}, vcc""")
        if t==0:
            a(f"""s_nop 1
            v_mfma_f32_32x32x16_bf16 {vr(SB[0],16)}, {vr(K0B[0],4)}, {vr(Q0,4)}, 0
            v_mfma_f32_32x32x16_bf16 {vr(SB[0],16)}, {vr(K1B[0],4)}, {vr(Q1,4)}, {vr(SB[0],16)}""")
    for i in range(64): a(f"v_mov_b32 v{OA+i}, 0")
    a(f"""s_add_u32 s{S_KVO}, s{S_KVB}, {3*KVT}
    s_mov_b32 s{S_IT}, 0
    s_nop 0""")
    NIT=64//KT
    a(f".L{label}_loop:")
    for k in range(KT):
        for t in range(4):
            u=4*k+t; S=SB[u%2]; S2=SB[(u+1)%2]; P=PB[u%2]; Pp=PB[(u+1)%2]
            nk,nt=(k,t+1) if t<3 else (k+1,0)
            pk_,pt=(k,t-1) if t>0 else (k-1,3)
            M=[f"v_mfma_f32_32x32x16_bf16 {vr(S2,16)}, {vr(K0B[nk%4],4)}, {vr(Q0+4*nt,4)}, 0",
               f"v_mfma_f32_32x32x16_bf16 {vr(S2,16)}, {vr(K1B[nk%4],4)}, {vr(Q1+4*nt,4)}, {vr(S2,16)}",
               f"v_mfma_f32_32x32x16_bf16 {vr(OA+16*pt,16)}, {vr(VB[pk_%4],4)}, {vr(Pp,4)}, {vr(OA+16*pt,16)}",
               f"v_mfma_f32_32x32x16_bf16 {vr(OA+16*pt,16)}, {vr(VB[pk_%4]+4,4)}, {vr(Pp+4,4)}, {vr(OA+16*pt,16)}"]
            sh=[[],[],[],[]]
            L=ld_tile((k+3)%4,S_KVO)
            if t==0: sh[0]=[L[0]]; sh[2]=[L[1]]
            if t==1: sh[0]=[L[2]]; sh[2]=[L[3]]
            if t==2: sh[0]=[f"s_add_u32 s{S_KVO}, s{S_KVO}, {KVT}"]; sh[3]=["s_waitcnt vmcnt(8)"]
            if k==KT-1 and t==3:
                sh[0]=[f"s_add_u32 s{S_IT}, s{S_IT}, 1"]
                sh[3]=[f"s_cmp_lg_u32 s{S_IT}, {NIT}"]
            c=lambda i: f"v_cvt_pk_bf16_f32 v{P+i}, v{S+2*i}, v{S+2*i+1}"
            for q in range(4):
                a(M[q])
                for x in sh[q]: a(x)
                for j in range(4): a(f"v_exp_f32 v{S+4*q+j}, v{S+4*q+j}")
                if q>0: a(c(2*q-2)); a(c(2*q-1))
            a(c(6)); a(c(7))
    a(f"s_cbranch_scc1 .L{label}_loop")
    lk=KT-1
    a(f"""s_nop 1
    v_mfma_f32_32x32x16_bf16 {vr(OA+48,16)}, {vr(VB[lk%4],4)}, {vr(PB[1],4)}, {vr(OA+48,16)}
    v_mfma_f32_32x32x16_bf16 {vr(OA+48,16)}, {vr(VB[lk%4]+4,4)}, {vr(PB[1]+4,4)}, {vr(OA+48,16)}
    s_branch .L{label}_chk
    .L{label}_maxnext:
    s_add_u32 s{S_KVO}, s{S_KVO}, {KVT}
    .L{label}_maxld:""")
    for x in ld_tile(0,S_KVO)[:2]: a(x)
    a(f"""s_waitcnt vmcnt(0)
    s_cmp_eq_u32 s{S_KVO}, s{S_KVB}
    s_cbranch_scc1 .L{label}_maxpass
    s_branch .L{label}_maxloop
    .L{label}_reload:""")
    for b in range(3):
        a(f"s_add_u32 s38, s{S_KVB}, {b*KVT}")
        for x in ld_tile(b,38): a(x)
    a(f"""s_waitcnt vmcnt(0)
    s_branch .L{label}_fold
    .L{label}_chk:
    s_nop 7
    s_nop 3
    v_add_f32 v11, v{OA+10}, v{OA+26}
    v_add_f32 v12, v{OA+42}, v{OA+58}
    v_add_f32 v11, v11, v12
    v_mov_b32 v12, {hexf(2.0**60)}
    v_cmp_nlt_f32 vcc, v11, v12
    s_nop 3
    s_and_b32 s38, vcc_lo, vcc_lo
    s_cbranch_scc0 .L{label}_ok
    s_cmp_lg_u32 s{S_PASS}, 1
    s_cbranch_scc1 .L{label}_ok
    s_mov_b32 s{S_PASS}, 64
    s_mov_b32 s{S_KVO}, s{S_KVB}
    s_waitcnt vmcnt(0)
    s_branch .L{label}_maxld
    .L{label}_ok:
    """)
    T.stamp(); T.stamp("loop")
    a(f"""
    s_mul_i32 s38, s37, {4*36864}
    s_lshl_b32 s39, s50, 10
    s_add_u32 s60, s38, s39
    s_add_u32 s60, s60, {WS_O}
    s_mul_i32 s61, s51, 36864
    s_lshl_b32 s39, s36, 9
    s_add_u32 s61, s61, s39
    s_add_u32 s61, s61, {WS_O+32*1024}
    s_lshl_b32 s39, s{S_WAVE}, 2
    s_add_u32 s39, s39, {QX}
    v_add_u32 v7, s39, v{VK}
    s_lshl_b32 s39, s{S_WAVE}, 10
    s_add_u32 s39, s39, {QX}
    v_add_u32 v9, s39, v{VK}
    v_cmp_lt_u32 vcc, 31, v0
    v_mov_b32 v6, {OOB}
    """)
    for t in range(4): a(f"v_mov_b32 v{10+t}, v{OA+16*t+10}")
    a(f"v_cndmask_b32 v5, v{VK}, v6, vcc")
    for t in range(4): a(f"v_permlane32_swap_b32 v{OA+16*t+10}, v{10+t}")
    a("s_nop 0")
    for t in range(4): a(f"v_rcp_f32 v{10+t}, v{OA+16*t+10}")
    for t in range(4):
        O=OA+16*t
        for i in range(10): a(f"v_mul_f32 v{O+i}, v{O+i}, v{10+t}")
        for i in range(5): a(f"v_cvt_pk_bf16_f32 v{O+i}, v{O+2*i}, v{O+2*i+1}")
        a(f"buffer_store_dwordx4 {vr(O,4)}, v{VK}, {WSR}, s60 offen sc1")
        a(f"ds_write_b32 v7, v{O+4} offset:{1024*t}")
        if t<3: a(f"s_add_u32 s60, s60, 36864")
    a(f"""s_waitcnt lgkmcnt(0)
    s_barrier
    ds_read_b128 v[10:13], v9
    s_waitcnt lgkmcnt(0)
    buffer_store_dwordx4 v[10:13], v5, {WSR}, s61 offen sc1""")
    fin_part(a,r,T)

def fin_part(a, r, T):
    WSR=f"s[{S_WS}:{S_WS+3}]"; VK=4
    AFR=[16,20,24,28]; SA=32; XF=80; YA=128; SEL=176; E=184; R=216
    a(f"s_lshl_b32 s39, s37, 8\n s_add_u32 s39, s39, {CNT_O}")
    a("s_waitcnt vmcnt(5)")
    a(f"""v_and_b32 v7, 31, v0
    v_lshrrev_b32 v9, 5, v0
    v_lshlrev_b32 v7, 6, v7
    v_lshl_add_u32 v7, v9, 3, v7
    s_lshl_b32 s38, s{S_WAVE}, 12
    s_add_u32 s38, s38, {XL01}
    v_add_u32 v9, s38, v7
    s_lshl_b32 s38, s{S_WAVE}, 11
    s_add_u32 s38, s38, {XL2}
    v_add_u32 v7, s38, v7""")
    for u in range(3):
        for j in range(4): a(f"ds_read_b64 v[{E+8*u+2*j}:{E+8*u+2*j+1}], v{9 if u<2 else 7} offset:{(2048*u if u<2 else 0)+16*j}")
    a("s_waitcnt lgkmcnt(0)")
    for i in range(24):
        a(f"v_lshlrev_b32 v{XF+2*i}, 16, v{E+i}\n v_and_b32 v{XF+2*i+1}, 0xffff0000, v{E+i}")
    a(f"""v_and_b32 v7, 31, v0
    v_lshrrev_b32 v9, 5, v0
    v_lshlrev_b32 v9, 2, v9
    v_sub_u32 v7, v7, v9
    v_mov_b32 v10, 0x3f80
    v_mov_b32 v11, 0x3f800000""")
    for j in range(2):
        for q in range(4):
            r0=16*j+8*(q>>1)+2*(q&1)
            a(f"""v_cmp_eq_u32 vcc, {r0}, v7
            v_cmp_eq_u32 s[32:33], {r0+1}, v7
            s_nop 1
            v_cndmask_b32 v12, 0, v10, vcc
            v_cndmask_b32 v{SEL+4*j+q}, v12, v11, s[32:33]""")
    a(f"v_add_u32 v5, {WOS[0]*SLOT}, v2\n v_add_u32 v6, {WOS[1]*SLOT}, v2")
    publish(a,39)
    T.stamp("opub")
    poll(a,39,8)
    T.stamp(); T.stamp("opoll")
    a(f"s_mul_i32 s43, s51, 36864\n s_add_u32 s43, s43, {WS_O}")
    for s in range(36):
        a(f"buffer_load_dwordx4 a[{4*s}:{4*s+3}], v{VK}, {WSR}, s43 offen offset:{1024*(s%4)} sc1")
        if s%4==3 and s<35: a("s_add_u32 s43, s43, 4096")
    sc=Sched(a); pend=[]; base=[5,6,2]
    def rd(n):
        s,u=divmod(n,3); b=AFR[n%4]
        sc.ds(f"ds_read_b64_tr_b16 {vr(b,2)}, v{base[u]} offset:{1024*s}")
        pend.append(sc.ds(f"ds_read_b64_tr_b16 {vr(b+2,2)}, v{base[u]} offset:{1024*s+512}"))
    for n in range(3): rd(n)
    for n in range(108):
        s,u=divmod(n,3)
        if n%6==0: a(f"s_waitcnt vmcnt({36-(s+2)})")
        sc.wait_ds(pend.pop(0))
        c="0" if s==0 else vr(SA+16*u,16)
        a(f"v_mfma_f32_32x32x16_bf16 {vr(SA+16*u,16)}, {vr(AFR[n%4],4)}, a[{4*s}:{4*s+3}], {c}")
        if n+3<108: rd(n+3)
    T.stamp("sgemm")
    a(f"""s_lshl_b32 s39, s37, 8
    s_add_u32 s39, s39, {CNT_P}
    s_mul_i32 s43, s51, {18*2048}
    s_add_u32 s43, s43, {WS_PART}
    s_and_b32 s44, s36, 1
    s_lshl_b32 s44, s44, 11
    s_add_u32 s44, s44, s43
    s_add_u32 s44, s44, {16*2048}
    s_lshl_b32 s38, s36, 12
    s_add_u32 s43, s43, s38
    v_or_b32 v13, s45, v{VK}
    s_mov_b32 s40, {hexf(-math.log2(math.e))}""")
    poll(a,39,8)
    T.stamp(); T.stamp("ppoll")
    for u in range(3):
        if u<2: a(f"s_mov_b32 s42, s43")
        for sp in range(8):
            for j in range(2):
                d=64*u+8*sp+4*j
                a(f"buffer_load_dwordx4 a[{d}:{d+3}], v{VK if u<2 else 13}, {WSR}, s{42 if u<2 else 44} offen offset:{(2048*u if u<2 else 0)+1024*j} sc1")
            if sp<7: a(f"s_add_u32 s{42 if u<2 else 44}, s{42 if u<2 else 44}, {64*18*2048}")
    def ysum(u, nst):
        L=[]
        for sp in range(8):
            if sp%2==0: L.append(f"s_waitcnt vmcnt({48-16*u-2*sp-4+nst})")
            for j in range(2):
                d=64*u+8*sp+4*j; c="0" if sp==0 and j==0 else vr(YA+16*u,16)
                L.append(f"v_mfma_f32_32x32x16_bf16 {vr(YA+16*u,16)}, {vr(SEL+4*j,4)}, a[{d}:{d+3}], {c}")
        return L
    def comb(u):
        Y=YA+16*u; S=SA+16*u; X=XF+16*u; L=[]
        p=lambda b,i: f"v[{b+2*i}:{b+2*i+1}]"
        for i in range(8): L.append(f"v_pk_mul_f32 {p(E,i)}, {p(Y,i)}, s[40:41] op_sel_hi:[1,0]")
        for i in range(16): L.append(f"v_exp_f32 v{E+i}, v{E+i}")
        for i in range(8): L.append(f"v_pk_mul_f32 {p(Y,i)}, {p(Y,i)}, {p(S,i)}")
        for i in range(8): L.append(f"v_pk_add_f32 {p(E,i)}, {p(E,i)}, 1.0 op_sel_hi:[1,0]")
        for i in range(16): L.append(f"v_rcp_f32 v{E+i}, v{E+i}")
        L.append("s_nop 0")
        for i in range(8): L.append(f"v_pk_fma_f32 {p(Y,i)}, {p(Y,i)}, {p(E,i)}, {p(X,i)}")
        RR=R+8*(u%2)
        for i in range(8): L.append(f"v_cvt_pk_bf16_f32 v{RR+i}, v{Y+2*i}, v{Y+2*i+1}")
        L.append("s_nop 1")
        for jj in range(2):
            L.append(f"v_permlane32_swap_b32 v{RR+4*jj}, v{RR+4*jj+2}")
            L.append(f"v_permlane32_swap_b32 v{RR+4*jj+1}, v{RR+4*jj+3}")
        o=64*u if u<2 else 0
        L.append(f"buffer_store_dwordx4 {vr(RR,4)}, v{3 if u<2 else 8}, s[{S_OUT}:{S_OUT+3}], s{46 if u<2 else 47} offen offset:{o}")
        L.append(f"buffer_store_dwordx4 {vr(RR+4,4)}, v{3 if u<2 else 8}, s[{S_OUT}:{S_OUT+3}], s{46 if u<2 else 47} offen offset:{o+32}")
        return L
    for x in ysum(0,0)+ysum(1,0): a(x)
    for x in comb(0): a(x)
    for x in ysum(2,2): a(x)
    for x in comb(1): a(x)
    for x in comb(2): a(x)
    T.store()
```

```python
from asmlib import *
import math
SLOT=36864
V_DMA_A=2; V_DMA_B=3; V_RDA=4; V_RDB=5; V_RD=6; V_C12=8
V_T=10
V_AF=16
V_H=40; V_G=48; V_U=64; V_Y16=80; V_X=112
S_WAVE=28; S_SLOT=29; S_DSLOT=30; S_T2=35; S_CNT=34
S_SRD0=16; S_SRD1=20; S_SRD2=24
S_WS=52
S_TABD=40; S_TABG=66; DBIAS=3072

def is_trans(x): return x.startswith(("v_exp","v_rcp","v_rsq","v_sqrt","v_log"))
def is_vmem(x): return x.startswith(("buffer_","global_"))

class Phase:
    def __init__(self, ops, rdbase):
        self.ops=ops
        self.rdbase=rdbase
        self.rdreg=None
        self.nwait=1
class Dma:
    def __init__(self, loads, adv):
        self.loads=loads
        self.adv=adv

class Ring:
    def __init__(self, a, NB=6, D=5, wgrp=3, dmacost=4, dmapos=(2,3)):
        self.a=a; self.NB=NB; self.D=D; self.W=wgrp; self.dmacost=dmacost; self.dmapos=dmapos
        self.s=Sched(a); self.fragno=0; self.pending=[]
        self.vm=0; self.dma_tok=[]
        self.maxused=[]
    def emit(self, x):
        self.a(x)
        if is_vmem(x): self.vm+=1
        if x.startswith("ds_"): self.s.ds_issued+=1
    def wait_vm(self, tok):
        n=self.vm-tok
        assert n<=63
        self.a(f"s_waitcnt vmcnt({n})")
    def mk_dma(self, srd_, vaddr, tab, tab0zero, step, slotadv=True):
        L=[]
        for i in range(9):
            pre=[]
            if i==0: pre.append(f"s_mov_b32 m0, s{S_DSLOT}")
            elif i%4==0: pre.append(f"s_add_u32 m0, m0, 4096")
            so = "0" if (i==0 and tab0zero) else f"s{tab+i}"
            L.append((pre,f"buffer_load_dwordx4 v{vaddr}, s[{srd_}:{srd_+3}], {so} offen offset:{1024*(i%4)} lds"))
        adv=[[f"s_add_u32 s{S_DSLOT}, s{S_DSLOT}, {SLOT}",
              f"s_cmp_ge_u32 s{S_DSLOT}, {4*SLOT}",
              f"s_cselect_b32 s{S_T2}, {4*SLOT}, 0",
              f"s_sub_u32 s{S_DSLOT}, s{S_DSLOT}, s{S_T2}"]]
        if step:
            if step>0: adv.append([f"s_add_u32 s{srd_}, s{srd_}, {step}", f"s_addc_u32 s{srd_+1}, s{srd_+1}, 0", f"s_sub_u32 s{srd_+2}, s{srd_+2}, {step}"])
            else: adv.append([f"s_sub_u32 s{srd_}, s{srd_}, {-step}", f"s_subb_u32 s{srd_+1}, s{srd_+1}, 0", f"s_add_u32 s{srd_+2}, s{srd_+2}, {-step}"])
        return Dma(L,adv)
    def issue_dma_now(self, d):
        for pre,x in d.loads:
            for y in pre: self.a(y); self.a("s_nop 0")
            self.emit(x)
        self.dma_tok.append(self.vm)
        for g in d.adv:
            for x in g: self.a(x)
    def start_reads(self, ph):
        a=self.a
        tok=None
        for _ in range(ph.nwait): tok=self.dma_tok.pop(0)
        if tok is not None:
            self.wait_vm(tok)
        a("s_barrier")
        if ph.rdreg is not None: a(f"v_mov_b32 v{V_RD}, v{ph.rdreg}")
        else: a(f"v_add_u32 v{V_RD}, s{S_SLOT}, v{ph.rdbase}")
    def slot_adv(self):
        return [f"s_add_u32 s{S_SLOT}, s{S_SLOT}, {SLOT}", f"s_cmp_ge_u32 s{S_SLOT}, {4*SLOT}", f"s_cselect_b32 s{S_SLOT}, 0, s{S_SLOT}"]
    def read_frag(self, offs):
        b=V_AF+4*(self.fragno%self.NB); self.fragno+=1
        self.s.ds(f"ds_read_b64_tr_b16 {vr(b,2)}, v{V_RD} offset:{offs[0]}")
        tok=self.s.ds(f"ds_read_b64_tr_b16 {vr(b+2,2)}, v{V_RD} offset:{offs[1]}")
        self.pending.append((tok,b))
    def run(self, ph, nxt, fillers=(), dma=None, first=False, fixed=None, track=True):
        a=self.a; D=self.D; W=self.W; ops=ph.ops; N=len(ops)
        if first:
            self.start_reads(ph)
            if ph.rdreg is None:
                for x in self.slot_adv(): a(x)
            for g in range(D): self.read_frag(ops[g][1])
        dmas = [] if dma is None else (dma if isinstance(dma,list) else [(dma,self.dmapos,track)])
        used=[3.0+(1 if g%W==0 else 0) for g in range(N)]
        extra=[[] for g in range(N)]
        dmpos={}
        for d,pos,trk in dmas:
            for i,(pre,x) in enumerate(d.loads):
                g=pos[0]+pos[1]*i
                assert g not in dmpos
                dmpos[g]=(x, trk and i==len(d.loads)-1)
                used[g]+=self.dmacost
                extra[g-1]+=pre; used[g-1]+=len(pre)
            for grp in d.adv:
                if len(dmas)==1 and g+1<N: g+=1
                extra[g]+=grp; used[g]+=len(grp)
        if nxt:
            used[N-D]+=3
            if nxt.rdreg is None: extra[N-D+1]+=self.slot_adv(); used[N-D+1]+=3
        fill=[[] for g in range(N)]
        if fixed:
            for g,L in fixed.items():
                fill[g]+=L; used[g]+=len(L)
        for (L,g0,g1) in fillers:
            if not L: continue
            cost=[2 if is_trans(x) else (3 if is_vmem(x) else 1) for x in L]
            tot=sum(cost); lo,hi=0,60
            for _ in range(40):
                mid=(lo+hi)/2
                if sum(max(0,mid-used[g]) for g in range(g0,g1))>=tot: hi=mid
                else: lo=mid
            cum=[]; c=0
            for g in range(g0,g1): c+=max(0,hi-used[g]); cum.append(c)
            acc=0; gi=0
            for x,cc in zip(L,cost):
                mid=acc+cc/2
                while gi<len(cum)-1 and cum[gi]<mid: gi+=1
                fill[g0+gi].append(x); used[g0+gi]+=cc; acc+=cc
        self.maxused.append(max(used))
        for g in range(N):
            tok,b=self.pending.pop(0)
            if g%W==0:
                k=min(W-1,len(self.pending))
                self.s.wait_ds(self.pending[k-1][0] if k>0 else tok)
            self.s.wait_ds(tok)
            a(ops[g][0](vr(b,4)))
            n=g+D
            if n<N: self.read_frag(ops[n][1])
            elif nxt:
                if n==N: self.start_reads(nxt)
                self.read_frag(nxt.ops[n-N][1])
            if g in dmpos:
                if extra[g-1] and "m0" in extra[g-1][-1] and n>=N+D: a("s_nop 0")
                self.emit(dmpos[g][0])
                if dmpos[g][1]: self.dma_tok.append(self.vm)
            for x in fill[g]: self.emit(x)
            for x in extra[g]: a(x)
    def state(self):
        return (self.fragno%self.NB, len(self.pending), [self.vm-t for t in self.dma_tok])

def lane_consts(a, rowstride_a):
    a(f"""
    v_lshrrev_b32 v1, 2, v0
    v_and_b32 v10, 3, v0
    v_lshlrev_b32 v10, 4, v10
    s_movk_i32 s38, {rowstride_a}
    v_mul_lo_u32 v{V_DMA_A}, v1, s38
    v_add_u32 v{V_DMA_A}, v{V_DMA_A}, v10
    s_movk_i32 s38, 1152
    v_mul_lo_u32 v{V_DMA_B}, v1, s38
    v_add_u32 v{V_DMA_B}, v{V_DMA_B}, v10
    v_bfe_u32 v1, v0, 2, 2
    v_lshlrev_b32 v1, 6, v1
    v_bfe_u32 v10, v0, 4, 1
    v_lshlrev_b32 v10, 5, v10
    v_add_u32 v1, v1, v10
    v_and_b32 v10, 3, v0
    v_lshlrev_b32 v10, 3, v10
    v_add_u32 v1, v1, v10
    v_lshrrev_b32 v10, 5, v0
    v_lshlrev_b32 v11, 9, v10
    v_add_u32 v{V_RDA}, v1, v11
    v_lshlrev_b32 v11, 8, v10
    v_add_u32 v{V_RDB}, v1, v11
    """)

S_X=56
V_ST=40
XORD=[8,0,1,2,3,4,5,6,7]
def x_lds_base(cb):
    if cb==8: return (32*1024, SLOT)
    return ((cb>>1)*SLOT + (cb&1)*4096, 8192)
def groups(lines):
    G=[]
    for x in lines:
        x=x.strip()
        if not x: continue
        if x.startswith(("s_addc","s_subb","s_cselect")) and G: G[-1].append(x)
        else: G.append([x])
    return G
def capture(fn):
    t=A(); fn(t); return groups(t.l)
def x_dots(cb):
    L=[]
    for s in range(4*cb,4*cb+4):
        for i in range(4): L.append(f"v_dot2c_f32_bf16 v{V_ST+i}, v{V_X+4*s+i}, v11")
        for i in range(4): L.append(f"v_dot2c_f32_bf16 v{V_ST+4+i}, v{V_X+4*s+i}, v{V_X+4*s+i}")
    return L
def x_rd(r, toks, cb):
    VA=V_AF
    r.wait_vm(toks[cb])
    base,_=x_lds_base(cb)
    for k in range(4):
        s=4*cb+k
        if cb==8: reg,off=VA+8+k, base
        elif base<2*SLOT: reg,off=VA+k, base
        else: reg,off=VA+4+k, base-2*SLOT
        r.s.ds(f"ds_read_b128 {vr(V_X+4*s,4)}, v{reg} offset:{off}")
def ln_issue(a, r, s_tg, fill=(), lead=9, hook=None):
    a(f"""
    v_lshrrev_b32 v1, 3, v0
    s_movk_i32 s62, 1152
    v_mul_lo_u32 v7, v1, s62
    v_lshrrev_b32 v1, 4, v0
    v_and_b32 v9, 7, v0
    v_xor_b32 v1, v1, v9
    v_lshlrev_b32 v1, 4, v1
    v_add_u32 v7, v7, v1
    v_xor_b32 v9, 64, v7
    s_mul_i32 s62, s{s_tg}, {32*1152}
    s_mul_i32 s60, s{S_WAVE}, {SLOT}
    s_lshl_b32 s61, s{S_WAVE}, 13
    """)
    toks={}; fill=list(fill); n=0; k=0
    for ci,cb in enumerate(XORD):
        base,ws=x_lds_base(cb)
        D=[]
        if ci>=lead:
            if ci>lead: a("s_waitcnt lgkmcnt(0)"); r.s.ds_done=r.s.ds_issued; D=x_dots(XORD[ci-lead-1])
            x_rd(r,toks,XORD[ci-lead])
            if ci==lead and hook: hook()
        a(f"s_add_u32 m0, s{60 if cb==8 else 61}, {base}")
        for rb in range(4):
            a(f"s_add_u32 s63, s62, {rb*8*1152+cb*128-rb*1024}")
            r.emit(f"buffer_load_dwordx4 v{7 if rb%2==0 else 9}, s[{S_X}:{S_X+3}], s63 offen offset:{rb*1024} lds")
            n+=1
            while k < min(len(fill),len(fill)*n//(4*lead)):
                for x in fill[k]: a(x)
                k+=1
            for x in D[8*rb:8*rb+8]: a(x)
        toks[cb]=r.vm
    return toks
def ln_stats_setup(a):
    VA=V_AF
    a(f"""
    v_and_b32 v1, 31, v0
    v_lshrrev_b32 v10, 3, v1
    v_lshlrev_b32 v10, 10, v10
    v_and_b32 v11, 7, v1
    v_lshlrev_b32 v11, 7, v11
    v_add_u32 v10, v10, v11
    v_bfe_u32 v11, v1, 1, 3
    v_lshrrev_b32 v1, 5, v0
    v_xor_b32 v11, v11, v1
    v_lshlrev_b32 v11, 4, v11
    v_add_u32 v10, v10, v11
    v_add_u32 v{VA}, s61, v10
    v_add_u32 v{VA+8}, s60, v10
    v_add_u32 v{VA+4}, {2*SLOT}, v{VA}
    """)
    for k in range(1,4):
        a(f"v_xor_b32 v{VA+k}, {32*k}, v{VA}")
        a(f"v_xor_b32 v{VA+4+k}, {32*k}, v{VA+4}")
        a(f"v_xor_b32 v{VA+8+k}, {32*k}, v{VA+8}")
    for i in range(8): a(f"v_mov_b32 v{V_ST+i}, 0")
    a("v_mov_b32 v11, 0x3f803f80")
def ln_stats(a, r, toks, after_cb, T=None, lead=9):
    def dots(cb, d=None):
        L=x_dots(cb)
        if d is None:
            for x in L: a(x)
            return
        for i,(pre,x) in enumerate(d.loads):
            for y in pre: a(y)
            for y in L[(32*i)//9:(32*(i+1))//9]: a(y)
            r.emit(x)
        r.dma_tok.append(r.vm)
        for g in d.adv:
            for x in g: a(x)
    nd=9-lead
    prev=XORD[nd-1] if nd>0 else None
    pend=[]
    if nd>0:
        a("s_waitcnt lgkmcnt(0)"); r.s.ds_done=r.s.ds_issued
        pend=[after_cb[c] for c in XORD[:nd] if c in after_cb]
        if pend: a("s_barrier")
        if T: T.stamp("cbx")
    for cb in XORD[nd:]:
        x_rd(r,toks,cb)
        if prev is not None: dots(prev,pend.pop(0) if pend else None)
        a("s_waitcnt lgkmcnt(0)"); r.s.ds_done=r.s.ds_issued
        if cb in after_cb:
            a("s_barrier"); pend.append(after_cb[cb])
            if T: T.stamp(f"cb{cb}")
        prev=cb
    dots(prev,pend.pop(0) if pend else None)
    assert not pend
    S=V_ST
    a(f"""
    s_nop 2
    v_add_f32 v{S}, v{S}, v{S+1}
    v_add_f32 v{S+2}, v{S+2}, v{S+3}
    v_add_f32 v{S+4}, v{S+4}, v{S+5}
    v_add_f32 v{S+6}, v{S+6}, v{S+7}
    v_add_f32 v{S}, v{S}, v{S+2}
    v_add_f32 v{S+4}, v{S+4}, v{S+6}
    v_mov_b32 v{S+1}, v{S}
    v_mov_b32 v{S+5}, v{S+4}
    s_nop 1
    v_permlane32_swap_b32 v{S}, v{S+1}
    v_permlane32_swap_b32 v{S+4}, v{S+5}
    s_nop 1
    v_add_f32 v{S}, v{S}, v{S+1}
    v_add_f32 v{S+4}, v{S+4}, v{S+5}
    v_mul_f32 v{S}, {hexf(1/576)}, v{S}
    v_mul_f32 v{S+4}, {hexf(1/576)}, v{S+4}
    v_fma_f32 v{S+4}, -v{S}, v{S}, v{S+4}
    v_max_f32 v{S+4}, 0, v{S+4}
    v_cvt_pk_bf16_f32 v{S+1}, v{S}, v{S+4}
    v_lshlrev_b32 v{S}, 16, v{S+1}
    v_and_b32 v{S+4}, 0xffff0000, v{S+1}
    v_add_f32 v{S+4}, {hexf(1e-5)}, v{S+4}
    v_cvt_pk_bf16_f32 v{S+4}, v{S+4}, v{S+4}
    v_and_b32 v{S+4}, 0xffff0000, v{S+4}
    v_sqrt_f32 v{S+4}, v{S+4}
    s_nop 0
    v_cvt_pk_bf16_f32 v{S+4}, v{S+4}, v{S+4}
    v_and_b32 v{S+4}, 0xffff0000, v{S+4}
    v_rcp_f32 v12, v{S+4}
    s_nop 0
    v_mul_f32 v14, v{S}, v12
    v_sub_f32 v14, 0, v14
    """)
def ln_apply(s):
    L=[]
    for i in range(4):
        x=V_X+4*s+i; t=V_ST+2*i
        L.append(f"v_lshlrev_b32 v{t}, 16, v{x}")
        L.append(f"v_and_b32 v{t+1}, 0xffff0000, v{x}")
    for i in range(4):
        t=V_ST+2*i
        L.append(f"v_pk_fma_f32 v[{t}:{t+1}], v[{t}:{t+1}], v[12:13], v[14:15] op_sel_hi:[1,0,0]")
    for i in range(4):
        x=V_X+4*s+i; t=V_ST+2*i
        L.append(f"v_cvt_pk_bf16_f32 v{x}, v{t}, v{t+1}")
    return L
```

```python
from engine import *
WS_KV=0
KVT=2432; KVH=68*KVT; VS=320
S_DBG=96
WS_CNT=11<<20
CNT_KV=WS_CNT; CNT_O=WS_CNT+8*256; CNT_P=WS_CNT+24*256
OOB=0x7ff00000
WS_O=8<<20
WS_PART=12<<20
WS_TIME=200<<20
NSPLIT=8; FR=4608//NSPLIT; NC=FR//32
C1 = 2*math.sqrt(2/math.pi)*math.log2(math.e)
C12 = C1*0.044715
QSCALE = math.log2(math.e)/math.sqrt(18.0)
class Timer:
    def __init__(self,a,on,slot=0): self.a=a; self.on=on; self.n=0; self.slot=slot
    sel=None
    def stamp(self, name=None):
        if name is not None and (Timer.sel is None or name not in Timer.sel): return
        if name is None and Timer.sel is not None and self.n>0 and not getattr(self,"final",False): return
        if self.on:
            self.a(f"s_memrealtime s[{76+2*self.n}:{77+2*self.n}]" if self.n in (0,) and False else f"s_memtime s[{76+2*self.n}:{77+2*self.n}]"); self.n+=1
            assert self.n<=8
    def store(self, s_wg=2):
        if not self.on: return
        a=self.a
        a("s_waitcnt vmcnt(0)"); self.final=True; self.stamp()
        a("s_memrealtime s[92:93]")
        a("s_waitcnt lgkmcnt(0)")
        for i in range(1,self.n): a(f"s_sub_u32 s{76+2*i}, s{76+2*i}, s76")
        a(f"""s_lshl_b32 s38, s{s_wg}, 3
        s_add_u32 s38, s38, s{S_WAVE}
        s_lshl_b32 s38, s38, 6
        s_add_u32 s38, s38, {WS_TIME+self.slot*(1<<20)}
        v_mov_b32 v1, 0""")
        for i in range(8): a(f"v_mov_b32 v{16+i}, s{76+2*min(i,self.n-1)}")
        a("v_mov_b32 v16, s92")
        a("v_mov_b32 v24, s94\n v_mov_b32 v25, s2")
        a(f"buffer_store_dwordx4 v[16:19], v1, s[{S_WS}:{S_WS+3}], s38 offen")
        a(f"buffer_store_dwordx4 v[20:23], v1, s[{S_WS}:{S_WS+3}], s38 offen offset:16")
        a(f"buffer_store_dwordx2 v[24:25], v1, s[{S_WS}:{S_WS+3}], s38 offen offset:32")

def ytile(t): return (f"a[{16*t}:{16*t+15}]" if t<16 else f"v[{V_Y16+16*(t-16)}:{V_Y16+16*(t-16)+15}]")
def yreg(t,i): return (f"a{16*t+i}" if t<16 else f"v{V_Y16+16*(t-16)+i}")

def common_entry(a, s_idx):
    a(f"""
    s_load_dwordx2 s[10:11], s[0:1], 0
    s_load_dwordx4 s[12:15], s[0:1], 64
    v_lshrrev_b32 v1, 6, v0
    v_and_b32 v0, 63, v0
    v_readfirstlane_b32 s{S_WAVE}, v1
    s_and_b32 s36, s{s_idx}, 7
    s_lshr_b32 s37, s{s_idx}, 3
    s_lshl_b32 s38, s37, 2
    s_add_u32 s51, s38, s{S_WAVE}
    s_waitcnt lgkmcnt(0)
    """)
    srd(a,S_X,10,2048*1152); srd(a,S_WS,14,1<<28); srd(a,S_DBG,12,256)

def gu_phase(acc, xfirst=False):
    ops=[]
    for s in range(36):
        c = "0" if s==0 else vr(acc,16)
        if xfirst: ops.append((lambda af,s=s,c=c: f"v_mfma_f32_32x32x16_bf16 {vr(acc,16)}, {vr(V_X+4*s,4)}, {af}, {c}", (1024*s,1024*s+256)))
        else: ops.append((lambda af,s=s,c=c: f"v_mfma_f32_32x32x16_bf16 {vr(acc,16)}, {af}, {vr(V_X+4*s,4)}, {c}", (1024*s,1024*s+256)))
    return Phase(ops,V_RDA)
def d_phase(tile_major=False):
    ops=[]
    order=[(j,t) for t in range(18) for j in range(2)] if tile_major else [(j,t) for j in range(2) for t in range(18)]
    for j,t in order:
        o=t*2048+j*1024
        ops.append((lambda af,t=t,j=j: f"v_mfma_f32_32x32x16_bf16 {ytile(t)}, {af}, {vr(V_H+4*j,4)}, {ytile(t)}", (o,o+512)))
    return Phase(ops,V_RDB)
def gelu1():
    L=[]
    for q in range(0,16,4):
        e=list(range(q,q+4)); T=[V_T+i for i in range(4)]
        for i,x in enumerate(e): L.append(f"v_mul_f32 v{T[i]}, v{V_G+x}, v{V_G+x}")
        for i,x in enumerate(e): L.append(f"v_fmaak_f32 v{T[i]}, v{T[i]}, v{V_C12}, {hexf(-C1)}")
        for i,x in enumerate(e): L.append(f"v_mul_f32 v{T[i]}, v{T[i]}, v{V_G+x}")
        for i,x in enumerate(e): L.append(f"v_exp_f32 v{T[i]}, v{T[i]}")
        for i,x in enumerate(e): L.append(f"v_add_f32 v{T[i]}, 1.0, v{T[i]}")
        for i,x in enumerate(e): L.append(f"v_rcp_f32 v{T[i]}, v{T[i]}")
        for i,x in enumerate(e): L.append(f"v_mul_f32 v{V_G+x}, v{V_G+x}, v{T[i]}")
    return L
def gelu2(): return [f"v_mul_f32 v{V_U+x}, v{V_U+x}, v{V_G+x}" for x in range(16)]
def cvt_h(half): return [f"v_cvt_pk_bf16_f32 v{V_H+4*half+i}, v{V_U+8*half+2*i}, v{V_U+8*half+2*i+1}" for i in range(4)]

PF=True
PFF=True
LA=3
PFG=29
LEAD=4
def pf_calc(a, rowstride, colstride, nmax, base, vd):
    a(f"""s_mul_i32 s39, s38, 57
    s_lshr_b32 s39, s39, 9
    s_cmp_lt_u32 s38, {nmax}
    s_cselect_b32 s50, 0, {OOB}
    s_cselect_b32 s39, s39, 0
    s_cselect_b32 s38, s38, 0
    v_mov_b32 v{vd}, s50
    s_movk_i32 s50, {rowstride}
    v_mad_u32_u24 v{vd}, v0, s50, v{vd}
    s_mul_i32 s50, s39, 9
    s_sub_u32 s38, s38, s50
    s_mul_i32 s38, s38, {64*rowstride}
    s_mul_i32 s39, s39, {colstride}
    s_add_u32 s39, s39, s38""")
    if base: a(f"s_add_u32 s39, s39, {base}")
def init_load(): return [f"buffer_load_dword v14, off, s[{S_DBG}:{S_DBG+3}], 0"]
def publish(a, soff, chk=False):
    a(f"""s_waitcnt vmcnt(0)
    s_barrier
    s_cmp_lg_u32 s{S_WAVE}, 0
    s_cbranch_scc1 1f""")
    if chk:
        a(f"""s_mov_b32 s31, 0x40000
        3:
        v_readfirstlane_b32 s38, v14
        s_cmp_lg_u32 s38, 0
        s_cbranch_scc1 4f
        buffer_load_dword v14, off, s[{S_DBG}:{S_DBG+3}], 0 sc1
        s_waitcnt vmcnt(0)
        s_sub_u32 s31, s31, 1
        s_cbranch_scc0 3b
        4:""")
    a(f"""s_mov_b64 exec, 1
    v_mov_b32 v15, 1
    buffer_atomic_add v15, off, s[{S_WS}:{S_WS+3}], s{soff} sc1
    s_mov_b64 exec, -1
    1:""")
def poll(a, soff, n, sleep=2):
    a(f"""s_cmp_lg_u32 s{S_WAVE}, 0
    s_cbranch_scc1 2f
    s_mov_b32 s31, 0x40000
    1:
    buffer_load_dword v15, off, s[{S_WS}:{S_WS+3}], s{soff} sc1
    s_waitcnt vmcnt(0)
    v_readfirstlane_b32 s38, v15
    s_cmp_ge_u32 s38, {n}
    s_cbranch_scc1 2f
    s_sleep {sleep}
    s_sub_u32 s31, s31, 1
    s_cbranch_scc0 1b
    2:
    s_barrier""")
def first_phase_apply(a):
    for x in ln_apply(0)+ln_apply(1): a(x)
    return {g: ln_apply(g+2) for g in range(34)}

def ffn_path(a, s_idx, timing=False, label="ffn", tslot=1, **kw):
    r=Ring(a,**kw); T=Timer(a,timing,tslot)
    if timing: a("s_memrealtime s[94:95]")
    T.stamp()
    a(f"""
    s_load_dwordx4 s[4:7], s[0:1], 32
    s_load_dwordx2 s[8:9], s[0:1], 48
    """)
    common_entry(a,s_idx)
    T.stamp("karg")
    WG,WU,WD=S_SRD0,S_SRD1,S_SRD2
    srd(a,WG,4,576*4608*2); srd(a,WU,6,576*4608*2); srd(a,WD,8,576*4608*2)
    a(f"""
    s_mul_i32 s38, s36, {FR*2}
    s_add_u32 s{WG}, s{WG}, s38
    s_addc_u32 s{WG+1}, s{WG+1}, 0
    s_sub_u32 s{WG+2}, s{WG+2}, s38
    s_add_u32 s{WU}, s{WU}, s38
    s_addc_u32 s{WU+1}, s{WU+1}, 0
    s_sub_u32 s{WU+2}, s{WU+2}, s38
    """)
    def setup(a):
        lane_consts(a,9216)
        a(f"v_mov_b32 v{V_C12}, {hexf(-C12)}")
        a(f"""
        s_mul_i32 s{S_DSLOT}, s{S_WAVE}, 9216
        s_mul_i32 s38, s{S_WAVE}, {9*16*9216}
        v_add_u32 v{V_DMA_A}, s38, v{V_DMA_A}
        s_mul_i32 s38, s36, {FR*1152}
        s_add_u32 s{WD}, s{WD}, s38
        s_addc_u32 s{WD+1}, s{WD+1}, 0
        s_sub_u32 s{WD+2}, s{WD+2}, s38
        s_sub_u32 s{WD}, s{WD}, {DBIAS}
        s_subb_u32 s{WD+1}, s{WD+1}, 0
        s_add_u32 s{WD+2}, s{WD+2}, {DBIAS}
        s_mul_i32 s38, s{S_WAVE}, 9
        s_mov_b32 s{S_SLOT}, 0
        """)
        for i in range(9):
            if i: a(f"s_mov_b32 s{S_TABG+i}, {i*16*9216-1024*(i%4)}")
            a(f"""s_add_u32 s39, s38, {i}
            s_and_b32 s50, s39, 1
            s_mul_i32 s50, s50, {16*1152}
            s_lshr_b32 s39, s39, 1
            s_lshl_b32 s39, s39, 6
            s_add_u32 s39, s39, {DBIAS-1024*(i%4)}
            s_add_u32 s{S_TABD+i}, s39, s50""")
        ln_stats_setup(a)
        for t in range(18):
            for i in range(16):
                a(f"v_accvgpr_write_b32 a{16*t+i}, 0" if t<16 else f"v_mov_b32 {yreg(t,i)}, 0")
    toks=ln_issue(a,r,51,capture(setup),LEAD)
    T.stamp("issued")
    def pf(m, la):
        if not PFF: return []
        if m==2: return [f"s_mov_b32 s3, {DBIAS+la*32*1152}", f"buffer_load_dword v15, v9, s[{WD}:{WD+3}], s3 offen"]
        return [f"buffer_load_dword v15, v7, s[{(WG,WU)[m]}:{(WG,WU)[m]+3}], 0 offen offset:{64*la}"]
    if PFF:
        a(f"""s_mul_i32 s38, s51, 9
        v_add_u32 v7, s38, v0
        s_movk_i32 s38, 9216
        v_mul_lo_u32 v7, v7, s38
        s_mul_i32 s38, s51, 5
        v_add_u32 v9, s38, v0
        v_cmp_gt_u32 vcc, 9, v0
        v_cmp_gt_u32 s[32:33], 5, v0
        v_mov_b32 v1, {OOB}
        v_cndmask_b32 v7, v1, v7, vcc
        s_movk_i32 s38, 288
        v_cmp_gt_u32 vcc, s38, v9
        v_lshlrev_b32 v9, 7, v9
        v_cndmask_b32 v9, v1, v9, s[32:33]
        v_cndmask_b32 v9, v1, v9, vcc""")
        for x in pf(0,0)+pf(1,0)+pf(2,0)+pf(0,2)+pf(1,2)+pf(2,1)+pf(2,2): r.emit(x)
    dG=r.mk_dma(WG,V_DMA_A,S_TABG,True,64); dU=r.mk_dma(WU,V_DMA_A,S_TABG,True,64); dD=r.mk_dma(WD,V_DMA_B,S_TABD,False,32*1152)
    ln_stats(a,r,toks,{1:dG, 3:dU},T,LEAD)
    T.stamp(); T.stamp("stats")
    G=gu_phase(V_G); U=gu_phase(V_U); Dp=d_phase()
    fx=first_phase_apply(a)
    fx[PFG]=fx[PFG]+pf(0,LA)
    r.run(G,U,[],dG,first=True,fixed=fx)
    T.stamp("g0")
    r.run(U,G,[(gelu1(),3,36)],dU,fixed={PFG:pf(1,LA)})
    a("s_nop 7")
    for x in gelu2()+cvt_h(0): a(x)
    T.stamp()
    def body(last=False):
        g1=gelu1(); n1=56
        r.run(G,U,[(cvt_h(1),1,4)],dD,fixed=None if last else {PFG:pf(2,LA)})
        r.run(U,Dp,[(g1[:n1],3,36)],(dD if last else dG),fixed=None if last else {PFG:pf(0,LA)})
        FD=[(g1[n1:]+gelu2(),0,30),(cvt_h(0),30,36)]
        if last: r.run(Dp,d_phase(True),FD,None)
        else: r.run(Dp,G,FD,dU,fixed={PFG:pf(1,LA)})
    a(f"s_mov_b32 s{S_CNT}, {NC-2}")
    st=r.state()
    a(f".L{label}_loop:")
    body()
    assert st==r.state(), (st,r.state())
    a(f"""s_sub_u32 s{S_CNT}, s{S_CNT}, 1
    s_cmp_lg_u32 s{S_CNT}, 0
    s_cbranch_scc1 .L{label}_loop""")
    T.stamp()
    body(last=True)
    for x in cvt_h(1): a(x)
    for x in init_load(): r.emit(x)
    a(f"""
    s_mul_i32 s38, s36, {64*18*2048}
    s_mul_i32 s39, s51, {18*2048}
    s_add_u32 s38, s38, s39
    s_add_u32 s38, s38, {WS_PART}
    v_lshlrev_b32 v1, 4, v0
    """)
    def ep(t):
        L=[]; tb = V_X + (t%4)*24
        if t<16:
            for i in range(16): L.append(f"v_accvgpr_read_b32 v{tb+8+i}, a{16*t+i}")
            src=tb+8
        else: src=V_Y16+16*(t-16)
        for i in range(8): L.append(f"v_cvt_pk_bf16_f32 v{tb+i}, v{src+2*i}, v{src+2*i+1}")
        o=(t%2)*2048
        L.append(f"buffer_store_dwordx4 {vr(tb,4)}, v1, s[{S_WS}:{S_WS+3}], s38 offen offset:{o} sc1")
        L.append(f"buffer_store_dwordx4 {vr(tb+4,4)}, v1, s[{S_WS}:{S_WS+3}], s38 offen offset:{o+1024} sc1")
        if t%2: L.append(f"s_add_u32 s38, s38, 4096")
        return L
    NOV=6
    fl=[]
    for t in range(NOV): fl.append((ep(t), 6+5*t, 11+5*t))
    r.run(d_phase(True),None,fl,None)
    T.stamp()
    for t in range(NOV,18):
        if t==16: a("s_nop 7")
        for x in ep(t): r.emit(x)
    T.stamp("epi")
    a(f"s_lshl_b32 s39, s37, 8\n s_add_u32 s39, s39, {CNT_P}")
    publish(a,39,True)
    T.store()
    return r
```

```python
import sys
from att2 import *
import paths, att2
timing = "-t" in sys.argv
out = sys.argv[1]
if "-s" in sys.argv: Timer.sel=sys.argv[sys.argv.index("-s")+1].split(",")
if "-nopf" in sys.argv: paths.PF=False; att2.PF=False
if "-nopff" in sys.argv: paths.PFF=False
if "-la" in sys.argv: paths.LA=int(sys.argv[sys.argv.index("-la")+1])
NAME="recurrent_scan__mha_block__geglu_ffn__prompt_kernel"
hdr_src=open("recurrent_scan__mha_block__geglu_ffn__prompt.s.ref").read().split("\n")
hdr="\n".join(l for l in hdr_src if l.startswith(";") and "@launch" not in l and "Override" not in l and "grid=ceil" not in l)+"\n"
a=A(); a("""s_cmp_ge_u32 s2, 256
 s_cbranch_scc1 .Lk2_end
 s_and_b32 s3, s2, 8
""")
NMG=int(sys.argv[sys.argv.index("-nmg")+1]) if "-nmg" in sys.argv else 1
LG=NMG.bit_length()-1
a(f"""s_lshr_b32 s65, s2, 4
 s_and_b32 s38, s2, 7
 s_and_b32 s39, s65, {NMG-1}
 s_lshr_b32 s65, s65, {LG}
 s_and_b32 s36, s38, {NMG-1}
 s_lshl_b32 s36, s36, {4-LG}
 s_add_u32 s65, s65, s36
 s_lshl_b32 s65, s65, 3
 s_andn2_b32 s38, s38, {NMG-1}
 s_add_u32 s65, s65, s38
 s_add_u32 s65, s65, s39
 s_cmp_lg_u32 s3, 0
 s_cbranch_scc1 .Lk2_att""")
r=ffn_path(a,65,timing,tslot=0); print("ffn slots",r.maxused)
a("s_endpgm\n.Lk2_att:")
T=Timer(a,timing,0)
r,qfin,woB,woC=qkv_path(a,65,T); print("qkv slots",r.maxused)
attn_path(a,r,T,qfin,woB,woC)
a(".Lk2_end:")
k2=kernel_text(NAME,a.text(),512,256)
hdr+=f"; @launch kernel={NAME} grid=(256,1,1) block=(256,1,1) lds=163840\n" if "-list" in sys.argv else "; @launch grid=(256,1,1) block=(256,1,1) lds=163840\n"
open(out,"w").write(hdr+'.amdgcn_target "amdgcn-amd-amdhsa--gfx950"\n.text\n'+k2)
```

```python
from paths import *
QX=3*SLOT
KL=4*SLOT; KEL=QX+18432; VL=0
XL01=4*SLOT; XL2=QX+20480
WOS=(0,1,2)
S_WO=S_SRD1; S_OUT=S_SRD2
V_WO2=8; V_OCB=13; NMG=1
def wo_dma(r, step):
    d=r.mk_dma(S_WO,V_DMA_B,S_TABD,False,step)
    d.loads=[(pre, x.replace(f"v{V_DMA_B},",f"v{V_WO2},") if i>=5 else x) for i,(pre,x) in enumerate(d.loads)]
    return d
def qkv_path(a, s_idx, T, **kw):
    sc="sc1"
    r=Ring(a,**kw)
    if T.on: a("s_memrealtime s[94:95]")
    T.stamp()
    a("s_load_dwordx4 s[4:7], s[0:1], 8\n s_load_dwordx2 s[8:9], s[0:1], 56")
    common_entry(a,s_idx)
    W=S_SRD0
    srd(a,W,4,576*3456); srd(a,S_WO,6,576*1152); srd(a,S_OUT,8,2048*1152)
    coff=[2304,2368,2432,1152+128,1152+64,1152,128,64,0]
    a(f"""s_lshl_b32 s38, s2, 2
    s_add_u32 s38, s38, s{S_WAVE}
    s_cmp_eq_u32 s38, 32
    s_cselect_b32 s49, 0, {OOB}
    v_cmp_gt_u32 vcc, 40, v0
    v_lshlrev_b32 v12, 8, v0
    v_mov_b32 v13, {OOB}
    v_cndmask_b32 v12, v13, v12, vcc
    v_or_b32 v12, s49, v12
    v_mov_b32 v14, 0
    s_mov_b32 s38, {WS_CNT}""")
    r.emit(f"buffer_store_dword v14, v12, s[{S_WS}:{S_WS+3}], s38 offen sc1")
    r.emit(f"buffer_store_dword v14, v12, s[{S_WS}:{S_WS+3}], s38 offen offset:128 sc1")
    def flag():
        a(f"v_lshlrev_b32 v12, 8, v0\n v_or_b32 v12, s49, v12\n v_mov_b32 v14, 1")
        r.emit(f"buffer_store_dword v14, v12, s[{S_DBG}:{S_DBG+3}], 0 offen sc1")
    NW=64//NMG
    if PF:
        a(f"""s_lshr_b32 s75, s2, {4+NMG.bit_length()-1}
        s_lshl_b32 s75, s75, 2
        s_add_u32 s75, s75, s{S_WAVE}
        s_mul_i32 s64, s36, 144
        s_andn2_b32 s64, s64, 127""")
        for k in range((18+NW-1)//NW):
            a(f"s_add_u32 s38, s75, {k*NW}"); pf_calc(a,3456,128,18,2304,12)
            a("s_add_u32 s39, s39, s64")
            r.emit(f"buffer_load_dword a255, v12, s[{W}:{W+3}], s39 offen")
    def setup(a):
        lane_consts(a,3456)
        a(f"""
        s_mul_i32 s{S_DSLOT}, s{S_WAVE}, 9216
        s_mul_i32 s38, s{S_WAVE}, {9*16*3456}
        v_add_u32 v{V_DMA_A}, s38, v{V_DMA_A}
        s_mov_b32 s{S_SLOT}, 0
        s_mul_i32 s38, s36, 144
        s_and_b32 s38, s38, 63
        v_bfe_u32 v1, v0, 4, 1
        v_lshlrev_b32 v1, 5, v1
        v_and_b32 v10, 3, v0
        v_lshl_add_u32 v1, v10, 3, v1
        v_sub_u32 v{V_RDA}, v{V_RDA}, v1
        v_add_u32 v{V_OCB}, s38, v1
        v_bfe_u32 v1, v0, 3, 1
        v_bfe_u32 v10, v0, 4, 1
        v_lshl_add_u32 v1, v10, 2, v1
        v_lshrrev_b32 v10, 5, v0
        v_lshl_add_u32 v1, v10, 1, v1
        v_mul_u32_u24 v10, 18, v1
        v_bfe_u32 v1, v0, 2, 1
        v_add3_u32 v10, v10, v1, 16
        s_movk_i32 s38, 1152
        v_mul_lo_u32 v10, v10, s38
        v_and_b32 v1, 3, v0
        v_lshlrev_b32 v1, 4, v1
        v_add_u32 v10, v10, v1
        v_mov_b32 v{V_WO2}, v10
        """)
        for i in range(1,9): a(f"s_mov_b32 s{S_TABG+i}, {i*16*3456-1024*(i%4)}")
        ln_stats_setup(a)
    toks=ln_issue(a,r,51,capture(setup),LEAD,flag)
    T.stamp("issued")
    if PF:
        for base in (1152,0):
            for k in range((18+NW-1)//NW):
                a(f"s_add_u32 s38, s75, {k*NW}"); pf_calc(a,3456,128,18,base,12)
                a("s_add_u32 s39, s39, s64")
                r.emit(f"buffer_load_dword a255, v12, s[{W}:{W+3}], s39 offen")
        for k in range((18+NW-1)//NW):
            a(f"s_add_u32 s38, s75, {k*NW}\n s_lshl_b32 s3, s36, 7\n s_cmp_lt_u32 s38, 9\n s_cselect_b32 s3, s3, 1024"); pf_calc(a,1152,0,18,0,12)
            a("s_add_u32 s39, s39, s3")
            r.emit(f"buffer_load_dword a255, v12, s[{S_WO}:{S_WO+3}], s39 offen")
    a(f"""
    s_mul_i32 s38, s36, 144
    s_andn2_b32 s38, s38, 63
    s_add_u32 s38, s38, {coff[0]}
    s_add_u32 s{W}, s{W}, s38
    s_addc_u32 s{W+1}, s{W+1}, 0
    s_sub_u32 s{W+2}, s{W+2}, s38
    """)
    dm=[r.mk_dma(W, V_DMA_A, S_TABG, True, (coff[p+1]-coff[p]) if p<8 else 0) for p in range(9)]
    ln_stats(a,r,toks,{1:dm[0], 3:dm[1]},T,LEAD)
    T.stamp(); T.stamp("stats")
    acc=[48,64,80,96,48,64,80,None]
    phs=[gu_phase(acc[p], xfirst=(p<3)) for p in range(7)]
    acc[7]=96; phs.append(gu_phase(96))
    WSR=f"s[{S_WS}:{S_WS+3}]"
    a(f"""
    s_mul_i32 s62, s36, {4*KVH}
    s_mul_i32 s38, s51, {KVT}
    s_add_u32 s62, s62, s38
    s_add_u32 s62, s62, {WS_KV}
    """)
    P=40
    def v_addr(i):
        L=[f"v_and_b32 v1, 31, v0", f"v_add_u32 v1, {32*i}, v1",
           f"v_mul_u32_u24 v9, 3641, v1", f"v_lshrrev_b32 v9, 16, v9",
           f"v_mul_u32_u24 v7, 18, v9", f"v_sub_u32 v7, v1, v7"]
        if i==2:
            L+=[f"v_cmp_le_u32 vcc, 72, v1", f"v_subrev_u32 v10, 72, v1", "s_nop 0",
                f"v_cndmask_b32 v9, v9, v10, vcc", f"v_mov_b32 v10, 18", "s_nop 0", f"v_cndmask_b32 v7, v7, v10, vcc"]
        L+=[f"v_lshlrev_b32 v7, 4, v7", f"v_lshrrev_b32 v10, 5, v0", f"v_mul_u32_u24 v10, {VS}, v10", f"v_add_u32 v7, v7, v10",
            f"s_mul_i32 s38, s{S_WAVE}, {4*VS}", f"v_mul_u32_u24 v11, {16*VS}, v9", f"v_add3_u32 v11, v11, v7, s38",
            f"s_mov_b32 s38, {KVH}", f"v_mul_lo_u32 v9, v9, s38", f"v_add_u32 v7, v7, v9"]
        if i==2:
            L+=[f"s_movk_i32 s38, 76", f"v_cmp_le_u32 s[32:33], s38, v1", f"v_mov_b32 v10, {OOB}", f"v_mov_b32 v9, {19*16}", f"v_cndmask_b32 v7, v7, v10, s[32:33]", f"v_cndmask_b32 v11, v11, v9, s[32:33]"]
        L+=[f"v_accvgpr_write_b32 a{26+i}, v11"]
        return L
    def v_pack(i):
        A_=acc[i]; L=[]
        if i==2: L+=["v_and_b32 v1, 31, v0", "v_cmp_le_u32 vcc, 8, v1", "v_mov_b32 v10, 0x3f803f80"]
        L+=[f"v_cvt_pk_bf16_f32 v{P+k}, v{A_+2*k}, v{A_+2*k+1}" for k in range(8)]
        if i==2: L+=[f"v_cndmask_b32 v{P+k}, v{P+k}, v10, vcc" for k in range(8)]
        L+=[f"v_accvgpr_write_b32 a{8*i+k}, v{P+k}" for k in range(8)]
        return L
    def v_st(i):
        return v_addr(i)+[f"buffer_store_dwordx4 a[{8*i}:{8*i+3}], v7, {WSR}, s62 offen offset:1152 {sc}",
            f"buffer_store_dwordx4 a[{8*i+4}:{8*i+7}], v7, {WSR}, s62 offen offset:{1152+2*VS} {sc}"]
    def piece_regs(isk):
        R=[]
        for p in range(9):
            gp = p + (9 if isk else 0)
            t=gp//4; j=gp%4
            base={0:acc[7],1:acc[6],2:acc[5],3:acc[4],4:acc[3]}[t]
            R.append(base+4*j)
        return R
    def qk_ep(isk, heads):
        R=piece_regs(isk); L=[]
        need={0:[0,1,2],1:[2,3,4],2:[4,5,6],3:[6,7,8]}
        return R,need
    def pack(R,p,scale):
        L=[]
        if scale: L+=[f"v_mul_f32 v{R[p]+i}, {hexf(QSCALE)}, v{R[p]+i}" for i in range(4)]
        L+=[f"v_cvt_pk_bf16_f32 v{R[p]}, v{R[p]}, v{R[p]+1}", f"v_cvt_pk_bf16_f32 v{R[p]+1}, v{R[p]+2}, v{R[p]+3}"]
        return L
    def mv(d,s): return [f"v_mov_b32 v{d}, v{s}", f"v_mov_b32 v{d+1}, v{s+1}"]
    def sel(d,lo,hi): return [f"v_cndmask_b32 v{d}, v{lo}, v{hi}, s[32:33]", f"v_cndmask_b32 v{d+1}, v{lo+1}, v{hi+1}, s[32:33]"]
    def quads(R): return [mv(P,R[0])+mv(P+2,R[1]), mv(P+4,R[3])+sel(P+6,R[4],R[2]), mv(P,R[5])+sel(P+2,R[6],R[4]), mv(P+4,R[7])+mv(P+6,R[8])]
    def ext_addr(he): return ["v_and_b32 v7, 31, v0","v_lshlrev_b32 v7, 2, v7","v_lshrrev_b32 v9, 5, v0", f"s_mov_b32 s38, {2*he}", "v_mul_lo_u32 v9, v9, s38", "v_add_u32 v7, v7, v9"]
    def k_store(heads):
        R=piece_regs(True)
        L=["v_cmp_lt_u32 s[32:33], 31, v0", "v_lshlrev_b32 v7, 4, v0", f"s_lshl_b32 s38, s{S_WAVE}, 10", f"s_add_u32 s38, s38, {KL}", "v_add_u32 v9, s38, v7"]
        for h in heads:
            L+=quads(R)[h]
            L+=[f"s_add_u32 s38, s62, {h*KVH}", f"buffer_store_dwordx4 {vr(P+4*(h%2),4)}, v7, {WSR}, s38 offen {sc}", f"ds_write_b128 v9, {vr(P+4*(h%2),4)} offset:{h*4096}"]
        if 0 in heads:
            L+=sel(10,R[2],R[6])+ext_addr(KVH)
            L+=[f"buffer_store_dword v10, v7, {WSR}, s62 offen offset:1024 {sc}", f"s_add_u32 s38, s62, {KVH}", f"buffer_store_dword v11, v7, {WSR}, s38 offen offset:1024 {sc}",
                "v_accvgpr_write_b32 a24, v10", "v_accvgpr_write_b32 a25, v11"]
        return L+["s_nop 1"]
    def own_lds():
        L=[f"v_accvgpr_read_b32 v{9+i}, a{26+i}" for i in range(3)]
        for i in range(3): L+=[f"ds_write_b128 v{9+i}, a[{8*i}:{8*i+3}]", f"ds_write_b128 v{9+i}, a[{8*i+4}:{8*i+7}] offset:{2*VS}"]
        L+=ext_addr(512)+[f"s_lshl_b32 s38, s{S_WAVE}, 7", f"s_add_u32 s38, s38, {QX+16384}", "v_add_u32 v12, s38, v7", "ds_write_b32 v12, a24 offset:2048", "ds_write_b32 v12, a25 offset:2560"]
        return L
    def q_store():
        R=piece_regs(False)
        L=["v_cmp_lt_u32 s[32:33], 31, v0", "v_lshlrev_b32 v7, 4, v0", f"s_lshl_b32 s38, s{S_WAVE}, 10", f"s_add_u32 s38, s38, {QX}", "v_add_u32 v7, s38, v7"]
        L+=sel(10,R[2],R[6])+["ds_write_b32 v12, v10", "ds_write_b32 v12, v11 offset:512"]
        for h in (3,2,1,0):
            L+=quads(R)[h]+[f"ds_write_b128 v7, {vr(P+4*(h%2),4)} offset:{h*4096}"]
        return L
    Rk=piece_regs(True); Rq=piece_regs(False)
    RN=15
    def rdcalc(p, t=10):
        L=[]
        if p==5:
            L+=["v_and_b32 v1, 0x12, v0", "v_cmp_eq_u32 vcc, 0, v1", f"v_add_u32 v{t}, 128, v{V_OCB}", f"v_add_u32 v1, -16, v{V_OCB}",
                f"v_cndmask_b32 v{t}, v1, v{t}, vcc", f"v_cndmask_b32 v1, 1, 0, vcc", f"v_lshrrev_b32 v{RN}, 6, v{t}", f"v_sub_u32 v{RN}, v1, v{RN}"]
        else:
            tb=[0,64,128,112,48,None,64,0][p]
            L+=[f"v_add_u32 v{t}, {tb}, v{V_OCB}", f"v_lshrrev_b32 v{RN}, 6, v{t}"]
            if p>=3: L+=[f"v_sub_u32 v{RN}, {1 if p<5 else 0}, v{RN}"]
        L+=[f"v_and_b32 v{RN}, 3, v{RN}", f"v_mul_u32_u24 v{RN}, {SLOT}, v{RN}", f"v_and_b32 v{t}, 63, v{t}", f"v_add3_u32 v{RN}, v{RN}, v{t}, v{V_RDA}"]
        return L
    for p,nw in enumerate([2,1,0,2,1,1,1,1]): phs[p].rdreg=RN; phs[p].nwait=nw
    for x in rdcalc(0): a(x)
    fx=first_phase_apply(a)
    t=A(); t(f"s_lshl_b32 s39, s36, 8\n s_add_u32 s39, s39, {CNT_KV}"); publish(t,39,True)
    r.run(phs[0],phs[1],[(rdcalc(1),20,30)],[(dm[2],(1,2),True),(dm[3],(19,2),True)],first=True,fixed=fx)
    T.stamp("p0")
    r.run(phs[1],phs[2],[(v_pack(0),4,24),(rdcalc(2),24,31)],dm[4])
    T.stamp("p1")
    r.run(phs[2],phs[3],[(v_pack(1),4,24),(rdcalc(3),24,31)],dm[5])
    T.stamp("p2")
    r.run(phs[3],phs[4],[(v_pack(2),4,24),(rdcalc(4),24,31)],dm[6])
    T.stamp("p3")
    r.run(phs[4],phs[5],[(v_st(0)+v_st(1)+v_st(2)+init_load(),0,20),(pack(Rk,7,0)+pack(Rk,8,0)+rdcalc(5),20,31)],None)
    T.stamp("p4")
    r.run(phs[5],phs[6],[(sum([pack(Rk,p,0) for p in (3,4,5,6)],[])+rdcalc(6),2,18),(k_store((2,3)),18,30)],[(dm[7],(1,2),True)])
    T.stamp("p5")
    r.run(phs[6],phs[7],[(sum([pack(Rk,p,0) for p in (0,1,2)],[]),2,10),(k_store((0,1)),10,22),(rdcalc(7)+pack(Rq,8,1),22,31)],[(dm[8],(1,1),True)])
    T.stamp("p6")
    r.run(phs[7],None,[(sum([pack(Rq,p,1) for p in (4,5,6,7)],[]),2,PUBG),(own_lds(),PUBG+1,36)],None,fixed={PUBG:["s_waitcnt lgkmcnt(0)"]+[x.strip() for x in t.l]})
    T.stamp(); T.stamp("qkv")
    qfin=["s_nop 7"]+sum([pack(Rq,p,1) for p in (0,1,2,3)],[])+q_store()
    return r,qfin
PUBG=30
OSC=''

Q0=16; Q1=32; SB=(48,64); PB=(80,88); K0B=(96,100,104,108); K1B=(112,116,120,124); VB=(128,136,144,152); OA=160; MX=224
S_PASS=62; S_IT=63; S_KVO=61; S_KVB=60
XRAW=192
def attn_path(a, r, T, qfin, label="att"):
    WSR=f"s[{S_WS}:{S_WS+3}]"; KT=4
    VK,VE,VV=4,5,6
    def ld_tile(b, so):
        return [f"buffer_load_dwordx4 {vr(K0B[b],4)}, v{VK}, {WSR}, s{so} offen sc1",
                f"buffer_load_dword v{K1B[b]}, v{VE}, {WSR}, s{so} offen sc1",
                f"buffer_load_dwordx4 {vr(VB[b],4)}, v{VV}, {WSR}, s{so} offen sc1",
                f"buffer_load_dwordx4 {vr(VB[b]+4,4)}, v{VV}, {WSR}, s{so} offen offset:{2*VS} sc1"]
    a(f"""
    v_mov_b32 v2, v{V_RDB}
    s_lshl_b32 s50, s36, 2
    s_add_u32 s50, s50, s{S_WAVE}
    s_mul_i32 s{S_KVB}, s50, {KVH}
    s_add_u32 s{S_KVB}, s{S_KVB}, {WS_KV}
    v_lshlrev_b32 v{VK}, 4, v0
    v_and_b32 v7, 31, v0
    v_lshlrev_b32 v{VE}, 2, v7
    v_add_u32 v{VE}, 1024, v{VE}
    v_cmp_lt_u32 vcc, 15, v7
    v_and_b32 v9, 19, v7
    v_lshrrev_b32 v10, 5, v0
    v_cndmask_b32 v9, v7, v9, vcc
    v_mul_u32_u24 v10, {VS}, v10
    v_lshlrev_b32 v9, 4, v9
    v_add_u32 v9, v9, v10
    v_add_u32 v{VV}, 1152, v9
    s_lshl_b32 s39, s36, 8
    s_add_u32 s39, s39, {CNT_KV}
    s_cmp_eq_u32 s{S_WAVE}, 0
    s_cselect_b32 s38, 0, {OOB}
    v_mov_b32 v1, s38
    """)
    for x in qfin: a(x)
    a(f"""s_waitcnt lgkmcnt(0)
    s_barrier
    s_lshl_b32 s38, s{S_WAVE}, 12
    s_add_u32 s38, s38, {QX}
    v_add_u32 v10, s38, v{VK}
    v_add_u32 v9, {KL-QX}, v10
    s_lshl_b32 s38, s{S_WAVE}, 9
    s_add_u32 s38, s38, {QX+16384-1024}
    v_add_u32 v11, s38, v{VE}
    s_mul_i32 s38, s{S_WAVE}, {16*VS}
    s_sub_u32 s38, s38, {1152-VL}
    v_add_u32 v12, s38, v{VV}
    ds_read_b128 {vr(K0B[0],4)}, v9
    ds_read_b32 v{K1B[0]}, v11 offset:2048""")
    for t in range(4):
        a(f"ds_read_b128 {vr(Q0+4*t,4)}, v10 offset:{1024*t}")
        a(f"ds_read_b32 v{Q1+4*t}, v11 offset:{128*t}")
    for b in K1B:
        a(f"v_mov_b32 v{b+1}, 0x3f803f80\n v_mov_b32 v{b+2}, 0x00003f80\n v_mov_b32 v{b+3}, 0")
    a(f"v_cmp_gt_u32 vcc, 32, v0\n s_mov_b32 s{S_PASS}, 1")
    for t in range(4):
        if t: a(f"ds_read_b128 {vr(K0B[t],4)}, v9 offset:{1024*t}\n ds_read_b32 v{K1B[t]}, v11 offset:{2048+128*t}")
    a("s_waitcnt lgkmcnt(6)")
    for t in range(4):
        a(f"ds_read_b128 {vr(VB[t],4)}, v12 offset:{4*VS*t}\n ds_read_b128 {vr(VB[t]+4,4)}, v12 offset:{4*VS*t+2*VS}")
    for t in range(4): a(f"v_cndmask_b32 v{Q1+4*t}, 0, v{Q1+4*t}, vcc\n v_mov_b32 v{Q1+4*t+3}, 0")
    a(f"""s_lshl_b32 s64, s36, 7
    s_mul_i32 s66, s51, {32*1152}
    s_and_b32 s38, s36, 1
    s_lshl_b32 s38, s38, 6
    s_add_u32 s67, s66, s38
    s_add_u32 s67, s67, 1024
    s_add_u32 s66, s66, s64
    s_lshr_b32 s38, s36, 1
    s_cmp_eq_u32 s38, s{S_WAVE}
    s_cselect_b32 s68, 0, {OOB}
    v_or_b32 v14, s68, v{V_DMA_B}
    s_lshl_b32 s69, s{S_WAVE}, 12
    s_add_u32 s69, s69, {XL01}
    s_lshl_b32 s70, s{S_WAVE}, 11
    s_add_u32 s70, s70, {XL2}
    s_add_u32 s71, s66, {16*1152-1024}
    s_add_u32 s72, s66, 64
    s_add_u32 s73, s71, 64
    s_add_u32 s74, s67, {16*1152-1024}
    s_mul_i32 s64, s37, {4*KVT}
    s_add_u32 s64, s64, s{S_KVB}
    s_add_u32 s49, s{S_KVB}, {64*KVT}""")
    XS=f"s[{S_X}:{S_X+3}]"
    EX=[]
    EX+=["s_mov_b32 m0, s69", f"buffer_load_dwordx4 v{V_DMA_B}, {XS}, s66 offen lds", f"buffer_load_dwordx4 v{V_DMA_B}, {XS}, s71 offen offset:1024 lds",
         "s_add_u32 m0, m0, 2048", f"buffer_load_dwordx4 v{V_DMA_B}, {XS}, s72 offen lds", f"buffer_load_dwordx4 v{V_DMA_B}, {XS}, s73 offen offset:1024 lds",
         "s_mov_b32 m0, s70", f"buffer_load_dwordx4 v14, {XS}, s67 offen lds", f"buffer_load_dwordx4 v14, {XS}, s74 offen offset:1024 lds"]
    T.stamp("kv0")
    a(f".L{label}_maxpass:")
    for t in range(4):
        a(f"v_mov_b32 v{Q1+4*t+1}, 0\n v_mov_b32 v{Q1+4*t+2}, 0\n v_mov_b32 v{MX+t}, 0xff800000")
    a(f"s_mov_b32 s{S_IT}, s{S_PASS}")
    a(f".L{label}_maxloop:")
    for t in range(4):
        S=OA+16*t
        a(f"v_mfma_f32_32x32x16_bf16 {vr(S,16)}, {vr(K0B[0],4)}, {vr(Q0+4*t,4)}, 0")
    for t in range(4):
        S=OA+16*t
        a(f"v_mfma_f32_32x32x16_bf16 {vr(S,16)}, {vr(K1B[0],4)}, {vr(Q1+4*t,4)}, {vr(S,16)}")
    a("s_nop 3")
    for t in range(4):
        S=OA+16*t
        if t==3: a("s_nop 3")
        for i in range(8): a(f"v_max3_f32 v{MX+t}, v{S+2*i}, v{S+2*i+1}, v{MX+t}")
    a(f"""s_sub_u32 s{S_IT}, s{S_IT}, 1
    s_cmp_lg_u32 s{S_IT}, 0
    s_cbranch_scc1 .L{label}_maxnext
    s_cmp_lg_u32 s{S_PASS}, 1
    s_cbranch_scc1 .L{label}_reload
    .L{label}_fold:""")
    a("v_cmp_gt_u32 vcc, 32, v0")
    for t in range(4): a(f"v_mov_b32 v{10+t}, v{MX+t}")
    a("s_nop 0")
    for t in range(4): a(f"v_permlane32_swap_b32 v{10+t}, v{MX+t}")
    for i in range(8): a(f"v_mov_b32 v{PB[1]+i}, 0")
    for t in range(4):
        m=MX+t; x=10+t
        a(f"""v_max_f32 v{x}, v{x}, v{m}
        v_sub_f32 v{x}, 0, v{x}
        v_and_b32 v7, 0xffff0000, v{x}
        v_sub_f32 v{x}, v{x}, v7
        v_and_b32 v9, 0xffff0000, v{x}
        v_sub_f32 v{x}, v{x}, v9
        v_lshrrev_b32 v7, 16, v7
        v_or_b32 v7, v7, v9
        v_lshrrev_b32 v{x}, 16, v{x}
        v_cndmask_b32 v{Q1+4*t+1}, 0, v7, vcc
        v_cndmask_b32 v{Q1+4*t+2}, 0, v{x}, vcc""")
        if t==0:
            a(f"""s_nop 1
            v_mfma_f32_32x32x16_bf16 {vr(SB[0],16)}, {vr(K0B[0],4)}, {vr(Q0,4)}, 0
            v_mfma_f32_32x32x16_bf16 {vr(SB[0],16)}, {vr(K1B[0],4)}, {vr(Q1,4)}, {vr(SB[0],16)}""")
    for i in range(64): a(f"v_mov_b32 v{OA+i}, 0")
    NIT=64//KT
    a(f"""s_add_u32 s{S_KVO}, s64, {3*KVT}
    s_mov_b32 s{S_IT}, 0
    s_waitcnt lgkmcnt(0)
    s_cmp_lg_u32 s{S_PASS}, 1
    s_cbranch_scc1 .L{label}_loop""")
    def iteration(first):
        ex=list(EX); vm=[]
        for k in range(KT):
            for t in range(4):
                u=4*k+t; S=SB[u%2]; S2=SB[(u+1)%2]; P=PB[u%2]; Pp=PB[(u+1)%2]
                nk,nt=(k,t+1) if t<3 else (k+1,0)
                pk_,pt=(k,t-1) if t>0 else (k-1,3)
                M=[f"v_mfma_f32_32x32x16_bf16 {vr(S2,16)}, {vr(K0B[nk%4],4)}, {vr(Q0+4*nt,4)}, 0",
                   f"v_mfma_f32_32x32x16_bf16 {vr(S2,16)}, {vr(K1B[nk%4],4)}, {vr(Q1+4*nt,4)}, {vr(S2,16)}",
                   f"v_mfma_f32_32x32x16_bf16 {vr(OA+16*pt,16)}, {vr(VB[pk_%4],4)}, {vr(Pp,4)}, {vr(OA+16*pt,16)}",
                   f"v_mfma_f32_32x32x16_bf16 {vr(OA+16*pt,16)}, {vr(VB[pk_%4]+4,4)}, {vr(Pp+4,4)}, {vr(OA+16*pt,16)}"]
                sh=[[],[],[],[]]
                L=ld_tile((k+3)%4,S_KVO)
                if first and k==0:
                    if t==0: M=M[:2]+[None,None]; sh[0]=[f"buffer_load_dword v15, v1, {WSR}, s39 offen sc1"]
                else:
                    if t==0: sh[0]=[L[0]]; sh[2]=[L[1]]
                    if t==1: sh[0]=[L[2]]; sh[2]=[L[3]]
                if t==2:
                    sh[0]=[f"s_add_u32 s{S_KVO}, s{S_KVO}, {KVT}"]
                    if k==0: sh[1]=[f"s_cmp_eq_u32 s{S_KVO}, s49"]; sh[2]=[f"s_cselect_b32 s{S_KVO}, s{S_KVB}, s{S_KVO}"]
                    if not first: sh[3]=["s_waitcnt vmcnt(8)"]
                    elif k==3: sh[3]=["W"]
                if k==KT-1 and t==3:
                    sh[0]=[f"s_add_u32 s{S_IT}, s{S_IT}, 1"]
                    if not first: sh[3]=[f"s_cmp_lg_u32 s{S_IT}, {NIT}"]
                if first and k>=1:
                    for q in range(4):
                        while ex and len(sh[q])<1 and not (sh[q] and "m0" in sh[q][-1] and is_vmem(ex[0])): sh[q].append(ex.pop(0))
                c=lambda i: f"v_cvt_pk_bf16_f32 v{P+i}, v{S+2*i}, v{S+2*i+1}"
                if first and (k,t)==(1,0):
                    a(f"""s_cmp_lg_u32 s{S_WAVE}, 0
                    s_cbranch_scc1 2f
                    s_mov_b32 s31, 0x40000
                    1:
                    s_waitcnt vmcnt(0)
                    v_readfirstlane_b32 s38, v15
                    s_cmp_ge_u32 s38, 16
                    s_cbranch_scc1 2f
                    s_sleep 2
                    buffer_load_dword v15, v1, {WSR}, s39 offen sc1
                    s_sub_u32 s31, s31, 1
                    s_cbranch_scc0 1b
                    2:
                    s_barrier""")
                    T.stamp(); T.stamp("polled")
                for q in range(4):
                    if M[q]: a(M[q])
                    for x in sh[q]:
                        if x=="W": x=f"s_waitcnt vmcnt({len(vm)-1-vm.index('t4')})"
                        a(x)
                        if is_vmem(x): vm.append('t4' if (k==1 and x==L[3]) else '')
                    for j in range(4): a(f"v_exp_f32 v{S+4*q+j}, v{S+4*q+j}")
                    if q>0: a(c(2*q-2)); a(c(2*q-1))
                a(c(6)); a(c(7))
        assert not (first and ex), ex
    iteration(True)
    a(f".L{label}_loop:")
    iteration(False)
    a(f"s_cbranch_scc1 .L{label}_loop")
    lk=KT-1
    a(f"""s_nop 1
    v_mfma_f32_32x32x16_bf16 {vr(OA+48,16)}, {vr(VB[lk%4],4)}, {vr(PB[1],4)}, {vr(OA+48,16)}
    v_mfma_f32_32x32x16_bf16 {vr(OA+48,16)}, {vr(VB[lk%4]+4,4)}, {vr(PB[1]+4,4)}, {vr(OA+48,16)}
    s_branch .L{label}_chk
    .L{label}_maxnext:
    s_add_u32 s{S_KVO}, s{S_KVO}, {KVT}
    .L{label}_maxld:""")
    for x in ld_tile(0,S_KVO)[:2]: a(x)
    a(f"""s_waitcnt vmcnt(0)
    s_cmp_eq_u32 s{S_KVO}, s{S_KVB}
    s_cbranch_scc1 .L{label}_maxpass
    s_branch .L{label}_maxloop
    .L{label}_reload:""")
    for b in range(3):
        a(f"s_add_u32 s38, s64, {b*KVT}")
        for x in ld_tile(b,38): a(x)
    for i in range(8): a(f"v_mov_b32 v{VB[3]+i}, 0")
    a(f"""s_waitcnt vmcnt(0)
    s_branch .L{label}_fold
    .L{label}_chk:
    s_nop 7
    s_nop 3
    v_add_f32 v11, v{OA+10}, v{OA+26}
    v_add_f32 v12, v{OA+42}, v{OA+58}
    v_add_f32 v11, v11, v12
    v_mov_b32 v12, {hexf(2.0**60)}
    v_cmp_nlt_f32 vcc, v11, v12
    s_nop 3
    s_and_b32 s38, vcc_lo, vcc_lo
    s_cbranch_scc0 .L{label}_ok
    s_cmp_lg_u32 s{S_PASS}, 1
    s_cbranch_scc1 .L{label}_ok
    s_mov_b32 s{S_PASS}, 64
    s_mov_b32 s{S_KVO}, s{S_KVB}
    s_waitcnt vmcnt(0)
    s_branch .L{label}_maxld
    .L{label}_ok:
    """)
    T.stamp(); T.stamp("loop")
    a(f"""
    s_mul_i32 s38, s37, {4*36864}
    s_lshl_b32 s39, s50, 10
    s_add_u32 s60, s38, s39
    s_add_u32 s60, s60, {WS_O}
    s_mul_i32 s61, s51, 36864
    s_lshl_b32 s39, s36, 9
    s_add_u32 s61, s61, s39
    s_add_u32 s61, s61, {WS_O+32*1024}
    s_lshl_b32 s39, s{S_WAVE}, 2
    s_add_u32 s39, s39, {QX}
    v_add_u32 v7, s39, v{VK}
    s_lshl_b32 s39, s{S_WAVE}, 10
    s_add_u32 s39, s39, {QX}
    v_add_u32 v9, s39, v{VK}
    v_cmp_lt_u32 vcc, 31, v0
    v_mov_b32 v6, {OOB}
    """)
    for t in range(4): a(f"v_mov_b32 v{10+t}, v{OA+16*t+10}")
    a(f"v_cndmask_b32 v5, v{VK}, v6, vcc")
    for t in range(4): a(f"v_permlane32_swap_b32 v{OA+16*t+10}, v{10+t}")
    a("s_nop 0")
    for t in range(4): a(f"v_rcp_f32 v{10+t}, v{OA+16*t+10}")
    for t in range(4):
        O=OA+16*t
        for i in range(10): a(f"v_mul_f32 v{O+i}, v{O+i}, v{10+t}")
        for i in range(5): a(f"v_cvt_pk_bf16_f32 v{O+i}, v{O+2*i}, v{O+2*i+1}")
        a(f"buffer_store_dwordx4 {vr(O,4)}, v{VK}, {WSR}, s60 offen sc1")
        a(f"ds_write_b32 v7, v{O+4} offset:{1024*t}")
        if t<3: a(f"s_add_u32 s60, s60, 36864")
    a(f"""s_waitcnt lgkmcnt(0)
    s_barrier
    ds_read_b128 v[10:13], v9
    s_waitcnt lgkmcnt(0)
    buffer_store_dwordx4 v[10:13], v5, {WSR}, s61 offen sc1""")
    fin_part(a,r,T)

def fin_part(a, r, T):
    WSR=f"s[{S_WS}:{S_WS+3}]"; VK=4
    AFR=[16,20,24,28,232,236,240,244]; SA=32; XF=80; YA=128; SEL=176; E=184; R=216
    a(f"s_lshl_b32 s39, s37, 8\n s_add_u32 s39, s39, {CNT_O}")
    a("s_waitcnt vmcnt(5)")
    a(f"""v_and_b32 v7, 31, v0
    v_lshrrev_b32 v9, 5, v0
    s_movk_i32 s38, 1152
    v_mul_lo_u32 v248, v7, s38
    v_lshl_add_u32 v248, v9, 4, v248
    v_or_b32 v249, s68, v248
    v_lshlrev_b32 v7, 6, v7
    v_lshl_add_u32 v7, v9, 3, v7
    s_lshl_b32 s38, s{S_WAVE}, 12
    s_add_u32 s38, s38, {XL01}
    v_add_u32 v9, s38, v7
    s_lshl_b32 s38, s{S_WAVE}, 11
    s_add_u32 s38, s38, {XL2}
    v_add_u32 v7, s38, v7""")
    for u in range(3):
        for j in range(4): a(f"ds_read_b64 v[{E+8*u+2*j}:{E+8*u+2*j+1}], v{9 if u<2 else 7} offset:{(2048*u if u<2 else 0)+16*j}")
    a("s_waitcnt lgkmcnt(0)")
    for i in range(24):
        a(f"v_lshlrev_b32 v{XF+2*i}, 16, v{E+i}\n v_and_b32 v{XF+2*i+1}, 0xffff0000, v{E+i}")
    a(f"""v_and_b32 v7, 31, v0
    v_lshrrev_b32 v9, 5, v0
    v_lshlrev_b32 v9, 2, v9
    v_sub_u32 v7, v7, v9
    v_mov_b32 v10, 0x3f80
    v_mov_b32 v11, 0x3f800000""")
    for j in range(2):
        for q in range(4):
            r0=16*j+8*(q>>1)+2*(q&1)
            a(f"""v_cmp_eq_u32 vcc, {r0}, v7
            v_cmp_eq_u32 s[32:33], {r0+1}, v7
            s_nop 1
            v_cndmask_b32 v12, 0, v10, vcc
            v_cndmask_b32 v{SEL+4*j+q}, v12, v11, s[32:33]""")
    a(f"v_add_u32 v5, {SLOT}, v2\n v_add_u32 v6, {2*SLOT}, v2")
    a(f"s_mul_i32 s43, s51, 36864\n s_add_u32 s43, s43, {WS_O}")
    a(f"""s_lshl_b32 s44, s36, 7
    s_lshl_b32 s38, s{S_WAVE}, 6
    s_add_u32 s44, s44, s38
    s_sub_u32 s44, s44, 64
    s_and_b32 s38, s36, 1
    s_lshl_b32 s38, s38, 6
    s_add_u32 s38, s38, 1024
    s_cmp_eq_u32 s{S_WAVE}, 3
    s_cselect_b32 s44, s38, s44
    s_mul_i32 s45, s{S_WAVE}, {SLOT}
    s_sub_u32 s45, s45, {SLOT}""")
    publish(a,39)
    T.stamp("opub")
    a(f"s_cmp_eq_u32 s{S_WAVE}, 0\n s_cbranch_scc1 .Lfin_wo\n s_mov_b32 m0, s45\n s_mov_b32 s46, s44")
    for i in range(36):
        if i==32: a(f"s_mov_b32 s46, s44")
        a(f"buffer_load_dwordx4 v{V_DMA_B if i<32 else V_WO2}, s[{S_WO}:{S_WO+3}], s46 offen lds")
        a(f"s_add_u32 m0, m0, 1024\n s_add_u32 s46, s46, {18*1152 if i<32 else 8*18*1152}")
    a("s_waitcnt vmcnt(0)\n .Lfin_wo:")
    a(f"""s_mul_i32 s47, s51, {18*2048}
    s_add_u32 s47, s47, {WS_PART}
    s_and_b32 s44, s36, 1
    s_lshl_b32 s44, s44, 11
    s_add_u32 s44, s44, s47
    s_add_u32 s44, s44, {16*2048}
    s_lshl_b32 s38, s36, 12
    s_add_u32 s47, s47, s38
    s_mov_b32 s42, s47
    v_or_b32 v13, s68, v{VK}
    s_mov_b32 s40, {hexf(-math.log2(math.e))}""")
    poll(a,39,8,also=CNT_P-CNT_O)
    PB_=[144,0,64]
    def pload(u):
        so=(42,47,44)[u]
        for sp in range(8):
            for j in range(2):
                d=PB_[u]+8*sp+4*j
                a(f"buffer_load_dwordx4 a[{d}:{d+3}], v{VK if u<2 else 13}, {WSR}, s{so} offen offset:{(2048*u if u<2 else 0)+1024*j} sc1")
            if sp<7: a(f"s_add_u32 s{so}, s{so}, {64*18*2048}")
    T.stamp(); T.stamp("opoll")
    for s in range(36):
        a(f"buffer_load_dwordx4 a[{4*s}:{4*s+3}], v{VK}, {WSR}, s43 offen offset:{1024*(s%4)} sc1")
        if s%4==3 and s<35: a("s_add_u32 s43, s43, 4096")
    pload(0)
    sc=Sched(a); pend=[]; base=[2,5,6]
    def rd(n):
        s,u=divmod(n,3); b=AFR[n%8]
        sc.ds(f"ds_read_b64_tr_b16 {vr(b,2)}, v{base[u]} offset:{1024*s}")
        pend.append(sc.ds(f"ds_read_b64_tr_b16 {vr(b+2,2)}, v{base[u]} offset:{1024*s+512}"))
    for n in range(6): rd(n)
    for n in range(108):
        s,u=divmod(n,3)
        if n%6==0: a(f"s_waitcnt vmcnt({16+36-(s+2)})")
        sc.wait_ds(pend.pop(0))
        c="0" if s==0 else vr(SA+16*u,16)
        a(f"v_mfma_f32_32x32x16_bf16 {vr(SA+16*u,16)}, {vr(AFR[n%8],4)}, a[{4*s}:{4*s+3}], {c}")
        if n+6<108: rd(n+6)
    T.stamp("sgemm")
    a(f"s_add_u32 s39, s39, {CNT_P+128-CNT_O}")
    poll(a,39,8)
    T.stamp(); T.stamp("ppoll")
    pload(1); pload(2)
    def ysum(u, later):
        L=[]
        for sp in range(8):
            if sp%2==0: L.append(f"s_waitcnt vmcnt({16-2*sp-4+later})")
            for j in range(2):
                d=PB_[u]+8*sp+4*j; c="0" if sp==0 and j==0 else vr(YA+16*u,16)
                L.append(f"v_mfma_f32_32x32x16_bf16 {vr(YA+16*u,16)}, {vr(SEL+4*j,4)}, a[{d}:{d+3}], {c}")
        return L
    def comb(u):
        Y=YA+16*u; S=SA+16*u; X=XF+16*u; L=[]
        p=lambda b,i: f"v[{b+2*i}:{b+2*i+1}]"
        for i in range(8): L.append(f"v_pk_mul_f32 {p(E,i)}, {p(Y,i)}, s[40:41] op_sel_hi:[1,0]")
        for i in range(16): L.append(f"v_exp_f32 v{E+i}, v{E+i}")
        for i in range(8): L.append(f"v_pk_mul_f32 {p(Y,i)}, {p(Y,i)}, {p(S,i)}")
        for i in range(8): L.append(f"v_pk_add_f32 {p(E,i)}, {p(E,i)}, 1.0 op_sel_hi:[1,0]")
        for i in range(16): L.append(f"v_rcp_f32 v{E+i}, v{E+i}")
        L.append("s_nop 0")
        for i in range(8): L.append(f"v_pk_fma_f32 {p(Y,i)}, {p(Y,i)}, {p(E,i)}, {p(X,i)}")
        RR=R+8*(u%2)
        for i in range(8): L.append(f"v_cvt_pk_bf16_f32 v{RR+i}, v{Y+2*i}, v{Y+2*i+1}")
        L.append("s_nop 1")
        for jj in range(2):
            L.append(f"v_permlane32_swap_b32 v{RR+4*jj}, v{RR+4*jj+2}")
            L.append(f"v_permlane32_swap_b32 v{RR+4*jj+1}, v{RR+4*jj+3}")
        o=64*u if u<2 else 0
        L.append(f"buffer_store_dwordx4 {vr(RR,4)}, v{248 if u<2 else 249}, s[{S_OUT}:{S_OUT+3}], s{66 if u<2 else 67} offen offset:{o}{OSC}")
        L.append(f"buffer_store_dwordx4 {vr(RR+4,4)}, v{248 if u<2 else 249}, s[{S_OUT}:{S_OUT+3}], s{66 if u<2 else 67} offen offset:{o+32}{OSC}")
        return L
    for x in ysum(0,32)+["s_nop 7","s_nop 3"]+comb(0)+ysum(1,18)+["s_nop 7","s_nop 3"]+comb(1): a(x)
    a(f"s_cmp_lg_u32 s68, 0\n s_cbranch_scc1 .Lfin_done")
    for x in ysum(2,4)+["s_nop 7","s_nop 3"]+comb(2): a(x)
    a(".Lfin_done:")
    T.store()
```

```python
from asmlib import *
import math
SLOT=36864
USE_PK=True
V_DMA_A=2; V_DMA_B=3; V_RDA=4; V_RDB=5; V_RD=6; V_C12=8
V_T=10
V_AF=16
V_H=40; V_G=48; V_U=64; V_Y16=80; V_X=112
S_WAVE=28; S_SLOT=29; S_DSLOT=30; S_T2=35; S_CNT=34
S_SRD0=16; S_SRD1=20; S_SRD2=24
S_WS=52
S_TABD=40; S_TABG=66; DBIAS=3072

def is_trans(x): return x.startswith(("v_exp","v_rcp","v_rsq","v_sqrt","v_log"))
def is_vmem(x): return x.startswith(("buffer_","global_"))

class Phase:
    def __init__(self, ops, rdbase):
        self.ops=ops
        self.rdbase=rdbase
        self.rdreg=None
        self.nwait=1
class Dma:
    def __init__(self, loads, adv):
        self.loads=loads
        self.adv=adv

class Ring:
    def __init__(self, a, NB=6, D=5, wgrp=3, dmacost=4, dmapos=(2,3), stagger=0, dmafirst=False, static=False):
        self.a=a; self.NB=NB; self.D=D; self.W=wgrp; self.dmacost=dmacost; self.dmapos=dmapos
        self.s=Sched(a); self.fragno=0; self.pending=[]
        self.vm=0; self.dma_tok=[]
        self.maxused=[]; self.stagger=stagger; self.dmafirst=dmafirst; self.static=static; self.rslot=0; self.wslot=0
    def emit(self, x):
        self.a(x)
        if is_vmem(x): self.vm+=1
        if x.startswith("ds_"): self.s.ds_issued+=1
    def wait_vm(self, tok):
        n=self.vm-tok
        assert n<=63
        self.a(f"s_waitcnt vmcnt({n})")
    def mk_dma(self, srd_, vaddr, tab, tab0zero, step, slotadv=True):
        L=[]
        for i in range(9):
            pre=[]
            if i==0: pre.append(f"s_mov_b32 m0, s{S_DSLOT}")
            elif i%4==0: pre.append(f"s_add_u32 m0, m0, 4096")
            so = "0" if (i==0 and tab0zero) else f"s{tab+i}"
            L.append((pre,f"buffer_load_dwordx4 v{vaddr}, s[{srd_}:{srd_+3}], {so} offen offset:{1024*(i%4)} lds"))
        adv=[[f"s_add_u32 s{S_DSLOT}, s{S_DSLOT}, {SLOT}",
              f"s_cmp_ge_u32 s{S_DSLOT}, {4*SLOT}",
              f"s_cselect_b32 s{S_T2}, {4*SLOT}, 0",
              f"s_sub_u32 s{S_DSLOT}, s{S_DSLOT}, s{S_T2}"]]
        if step:
            if step>0: adv.append([f"s_add_u32 s{srd_}, s{srd_}, {step}", f"s_addc_u32 s{srd_+1}, s{srd_+1}, 0", f"s_sub_u32 s{srd_+2}, s{srd_+2}, {step}"])
            else: adv.append([f"s_sub_u32 s{srd_}, s{srd_}, {-step}", f"s_subb_u32 s{srd_+1}, s{srd_+1}, 0", f"s_add_u32 s{srd_+2}, s{srd_+2}, {-step}"])
        return Dma(L,adv)
    def mk_dma_static(self, srd_, vaddr, tab, vstep):
        L=[]; sl=self.wslot; self.wslot=(sl+1)%4
        for i in range(9):
            pre=[f"s_add_u32 m0, s{S_DSLOT}, {sl*SLOT+1024*i}"] if i%4==0 else []
            so = "0" if i==0 else f"s{tab+i}"
            L.append((pre,f"buffer_load_dwordx4 v{vaddr}, s[{srd_}:{srd_+3}], {so} offen offset:{1024*(i%4)} lds"))
        return Dma(L,[[f"v_add_u32 v{vaddr}, {vstep}, v{vaddr}"]] if vstep else [])
    def issue_dma_now(self, d):
        for pre,x in d.loads:
            for y in pre: self.a(y); self.a("s_nop 0")
            self.emit(x)
        self.dma_tok.append(self.vm)
        for g in d.adv:
            for x in g: self.a(x)
    def start_reads(self, ph):
        a=self.a
        tok=None
        for _ in range(ph.nwait): tok=self.dma_tok.pop(0)
        if tok is not None:
            self.wait_vm(tok)
        a("s_barrier")
        if self.stagger:
            for w in (1,2,3): a(f"s_cmp_lt_u32 s{S_WAVE}, {w}\n s_cbranch_scc1 9f\n s_nop {self.stagger-1}")
            a("9:")
        if ph.rdreg is not None: a(f"v_mov_b32 v{V_RD}, v{ph.rdreg}")
        elif self.static:
            a(f"v_add_u32 v{V_RD}, {self.rslot*SLOT}, v{ph.rdbase}"); self.rslot=(self.rslot+1)%4
        else: a(f"v_add_u32 v{V_RD}, s{S_SLOT}, v{ph.rdbase}")
    def slot_adv(self):
        if self.static: return []
        return [f"s_add_u32 s{S_SLOT}, s{S_SLOT}, {SLOT}", f"s_cmp_ge_u32 s{S_SLOT}, {4*SLOT}", f"s_cselect_b32 s{S_SLOT}, 0, s{S_SLOT}"]
    def read_frag(self, offs):
        b=V_AF+4*(self.fragno%self.NB); self.fragno+=1
        self.s.ds(f"ds_read_b64_tr_b16 {vr(b,2)}, v{V_RD} offset:{offs[0]}")
        tok=self.s.ds(f"ds_read_b64_tr_b16 {vr(b+2,2)}, v{V_RD} offset:{offs[1]}")
        self.pending.append((tok,b))
    def run(self, ph, nxt, fillers=(), dma=None, first=False, fixed=None, track=True):
        a=self.a; D=self.D; W=self.W; ops=ph.ops; N=len(ops)
        if first:
            self.start_reads(ph)
            if ph.rdreg is None:
                for x in self.slot_adv(): a(x)
            for g in range(D): self.read_frag(ops[g][1])
        dmas = [] if dma is None else (dma if isinstance(dma,list) else [(dma,self.dmapos,track)])
        used=[3.0+(1 if g%W==0 else 0) for g in range(N)]
        extra=[[] for g in range(N)]
        dmpos={}
        for d,pos,trk in dmas:
            for i,(pre,x) in enumerate(d.loads):
                g=pos[0]+pos[1]*i
                assert g not in dmpos
                dmpos[g]=(x, trk and i==len(d.loads)-1)
                used[g]+=self.dmacost
                extra[g-1]+=pre; used[g-1]+=len(pre)
            for grp in d.adv:
                if len(dmas)==1 and g+1<N: g+=1
                extra[g]+=grp; used[g]+=len(grp)
        if nxt:
            used[N-D]+=3
            if nxt.rdreg is None: extra[N-D+1]+=self.slot_adv(); used[N-D+1]+=len(self.slot_adv())
        fill=[[] for g in range(N)]
        if fixed:
            for g,L in fixed.items():
                fill[g]+=L; used[g]+=len(L)
        for (L,g0,g1) in fillers:
            if not L: continue
            cost=[2 if is_trans(x) else (3 if is_vmem(x) else 1) for x in L]
            tot=sum(cost); lo,hi=0,60
            for _ in range(40):
                mid=(lo+hi)/2
                if sum(max(0,mid-used[g]) for g in range(g0,g1))>=tot: hi=mid
                else: lo=mid
            cum=[]; c=0
            for g in range(g0,g1): c+=max(0,hi-used[g]); cum.append(c)
            acc=0; gi=0
            for x,cc in zip(L,cost):
                mid=acc+cc/2
                while gi<len(cum)-1 and cum[gi]<mid: gi+=1
                fill[g0+gi].append(x); used[g0+gi]+=cc; acc+=cc
        self.maxused.append(max(used))
        for g in range(N):
            tok,b=self.pending.pop(0)
            if g%W==0:
                k=min(W-1,len(self.pending))
                self.s.wait_ds(self.pending[k-1][0] if k>0 else tok)
            self.s.wait_ds(tok)
            a(ops[g][0](vr(b,4)))
            n=g+D
            if g in dmpos and self.dmafirst:
                self.emit(dmpos[g][0])
                if dmpos[g][1]: self.dma_tok.append(self.vm)
            if n<N: self.read_frag(ops[n][1])
            elif nxt:
                if n==N: self.start_reads(nxt)
                self.read_frag(nxt.ops[n-N][1])
            if g in dmpos and not self.dmafirst:
                self.emit(dmpos[g][0])
                if dmpos[g][1]: self.dma_tok.append(self.vm)
            for x in fill[g]: self.emit(x)
            for x in extra[g]: a(x)
    def state(self):
        return (self.fragno%self.NB, len(self.pending), [self.vm-t for t in self.dma_tok])

def lane_consts(a, rowstride_a):
    a(f"""
    v_lshrrev_b32 v1, 2, v0
    v_and_b32 v10, 3, v0
    v_lshlrev_b32 v10, 4, v10
    s_movk_i32 s38, {rowstride_a}
    v_mul_lo_u32 v{V_DMA_A}, v1, s38
    v_add_u32 v{V_DMA_A}, v{V_DMA_A}, v10
    s_movk_i32 s38, 1152
    v_mul_lo_u32 v{V_DMA_B}, v1, s38
    v_add_u32 v{V_DMA_B}, v{V_DMA_B}, v10
    v_bfe_u32 v1, v0, 2, 2
    v_lshlrev_b32 v1, 6, v1
    v_bfe_u32 v10, v0, 4, 1
    v_lshlrev_b32 v10, 5, v10
    v_add_u32 v1, v1, v10
    v_and_b32 v10, 3, v0
    v_lshlrev_b32 v10, 3, v10
    v_add_u32 v1, v1, v10
    v_lshrrev_b32 v10, 5, v0
    v_lshlrev_b32 v11, 9, v10
    v_add_u32 v{V_RDA}, v1, v11
    v_lshlrev_b32 v11, 8, v10
    v_add_u32 v{V_RDB}, v1, v11
    """)

S_X=56
V_ST=40
XORD=[8,0,1,2,3,4,5,6,7]
def x_lds_base(cb):
    if cb==8: return (32*1024, SLOT)
    return ((cb>>1)*SLOT + (cb&1)*4096, 8192)
def groups(lines):
    G=[]
    for x in lines:
        x=x.strip()
        if not x: continue
        if x.startswith(("s_addc","s_subb","s_cselect")) and G: G[-1].append(x)
        else: G.append([x])
    return G
def capture(fn):
    t=A(); fn(t); return groups(t.l)
def x_dots(cb):
    L=[]
    for s in range(4*cb,4*cb+4):
        for i in range(4): L.append(f"v_dot2c_f32_bf16 v{V_ST+i}, v{V_X+4*s+i}, v11")
        for i in range(4): L.append(f"v_dot2c_f32_bf16 v{V_ST+4+i}, v{V_X+4*s+i}, v{V_X+4*s+i}")
    return L
def x_rd(r, toks, cb):
    VA=V_AF
    r.wait_vm(toks[cb])
    base,_=x_lds_base(cb)
    for k in range(4):
        s=4*cb+k
        if cb==8: reg,off=VA+8+k, base
        elif base<2*SLOT: reg,off=VA+k, base
        else: reg,off=VA+4+k, base-2*SLOT
        r.s.ds(f"ds_read_b128 {vr(V_X+4*s,4)}, v{reg} offset:{off}")
def ln_issue(a, r, s_tg, fill=(), lead=9, hook=None):
    a(f"""
    v_lshrrev_b32 v1, 3, v0
    s_movk_i32 s62, 1152
    v_mul_lo_u32 v7, v1, s62
    v_lshrrev_b32 v1, 4, v0
    v_and_b32 v9, 7, v0
    v_xor_b32 v1, v1, v9
    v_lshlrev_b32 v1, 4, v1
    v_add_u32 v7, v7, v1
    v_xor_b32 v9, 64, v7
    s_mul_i32 s62, s{s_tg}, {32*1152}
    s_mul_i32 s60, s{S_WAVE}, {SLOT}
    s_lshl_b32 s61, s{S_WAVE}, 13
    """)
    toks={}; fill=list(fill); n=0; k=0
    for ci,cb in enumerate(XORD):
        base,ws=x_lds_base(cb)
        D=[]
        if ci>=lead:
            if ci>lead: a("s_waitcnt lgkmcnt(0)"); r.s.ds_done=r.s.ds_issued; D=x_dots(XORD[ci-lead-1])
            x_rd(r,toks,XORD[ci-lead])
            if ci==lead and hook: hook()
        a(f"s_add_u32 m0, s{60 if cb==8 else 61}, {base}")
        for rb in range(4):
            a(f"s_add_u32 s63, s62, {rb*8*1152+cb*128-rb*1024}")
            r.emit(f"buffer_load_dwordx4 v{7 if rb%2==0 else 9}, s[{S_X}:{S_X+3}], s63 offen offset:{rb*1024} lds")
            n+=1
            while k < min(len(fill),len(fill)*n//(4*lead)):
                for x in fill[k]: a(x)
                k+=1
            for x in D[8*rb:8*rb+8]: a(x)
        toks[cb]=r.vm
    return toks
def ln_stats_setup(a):
    VA=V_AF
    a(f"""
    v_and_b32 v1, 31, v0
    v_lshrrev_b32 v10, 3, v1
    v_lshlrev_b32 v10, 10, v10
    v_and_b32 v11, 7, v1
    v_lshlrev_b32 v11, 7, v11
    v_add_u32 v10, v10, v11
    v_bfe_u32 v11, v1, 1, 3
    v_lshrrev_b32 v1, 5, v0
    v_xor_b32 v11, v11, v1
    v_lshlrev_b32 v11, 4, v11
    v_add_u32 v10, v10, v11
    v_add_u32 v{VA}, s61, v10
    v_add_u32 v{VA+8}, s60, v10
    v_add_u32 v{VA+4}, {2*SLOT}, v{VA}
    """)
    for k in range(1,4):
        a(f"v_xor_b32 v{VA+k}, {32*k}, v{VA}")
        a(f"v_xor_b32 v{VA+4+k}, {32*k}, v{VA+4}")
        a(f"v_xor_b32 v{VA+8+k}, {32*k}, v{VA+8}")
    for i in range(8): a(f"v_mov_b32 v{V_ST+i}, 0")
    a("v_mov_b32 v11, 0x3f803f80")
def ln_stats(a, r, toks, after_cb, T=None, lead=9):
    def dots(cb, d=None):
        L=x_dots(cb)
        if d is None:
            for x in L: a(x)
            return
        for i,(pre,x) in enumerate(d.loads):
            for y in pre: a(y)
            for y in L[(32*i)//9:(32*(i+1))//9]: a(y)
            r.emit(x)
        r.dma_tok.append(r.vm)
        for g in d.adv:
            for x in g: a(x)
    nd=9-lead
    prev=XORD[nd-1] if nd>0 else None
    pend=[]
    if nd>0:
        a("s_waitcnt lgkmcnt(0)"); r.s.ds_done=r.s.ds_issued
        pend=[after_cb[c] for c in XORD[:nd] if c in after_cb]
        if pend: a("s_barrier")
        if T: T.stamp("cbx")
    for cb in XORD[nd:]:
        x_rd(r,toks,cb)
        if prev is not None: dots(prev,pend.pop(0) if pend else None)
        a("s_waitcnt lgkmcnt(0)"); r.s.ds_done=r.s.ds_issued
        if cb in after_cb:
            a("s_barrier"); pend.append(after_cb[cb])
            if T: T.stamp(f"cb{cb}")
        prev=cb
    dots(prev,pend.pop(0) if pend else None)
    assert not pend
    S=V_ST
    a(f"""
    s_nop 2
    v_add_f32 v{S}, v{S}, v{S+1}
    v_add_f32 v{S+2}, v{S+2}, v{S+3}
    v_add_f32 v{S+4}, v{S+4}, v{S+5}
    v_add_f32 v{S+6}, v{S+6}, v{S+7}
    v_add_f32 v{S}, v{S}, v{S+2}
    v_add_f32 v{S+4}, v{S+4}, v{S+6}
    v_mov_b32 v{S+1}, v{S}
    v_mov_b32 v{S+5}, v{S+4}
    s_nop 1
    v_permlane32_swap_b32 v{S}, v{S+1}
    v_permlane32_swap_b32 v{S+4}, v{S+5}
    s_nop 1
    v_add_f32 v{S}, v{S}, v{S+1}
    v_add_f32 v{S+4}, v{S+4}, v{S+5}
    v_mul_f32 v{S}, {hexf(1/576)}, v{S}
    v_mul_f32 v{S+4}, {hexf(1/576)}, v{S+4}
    v_fma_f32 v{S+4}, -v{S}, v{S}, v{S+4}
    v_max_f32 v{S+4}, 0, v{S+4}
    v_cvt_pk_bf16_f32 v{S+1}, v{S}, v{S+4}
    v_lshlrev_b32 v{S}, 16, v{S+1}
    v_and_b32 v{S+4}, 0xffff0000, v{S+1}
    v_add_f32 v{S+4}, {hexf(1e-5)}, v{S+4}
    v_cvt_pk_bf16_f32 v{S+4}, v{S+4}, v{S+4}
    v_and_b32 v{S+4}, 0xffff0000, v{S+4}
    v_sqrt_f32 v{S+4}, v{S+4}
    s_nop 0
    v_cvt_pk_bf16_f32 v{S+4}, v{S+4}, v{S+4}
    v_and_b32 v{S+4}, 0xffff0000, v{S+4}
    v_rcp_f32 v12, v{S+4}
    s_nop 0
    v_mul_f32 v14, v{S}, v12
    v_sub_f32 v14, 0, v14
    """)
def ln_apply(s):
    L=[]
    for i in range(4):
        x=V_X+4*s+i; t=V_ST+2*i
        L.append(f"v_lshlrev_b32 v{t}, 16, v{x}")
        L.append(f"v_and_b32 v{t+1}, 0xffff0000, v{x}")
    for i in range(4):
        t=V_ST+2*i
        if USE_PK: L.append(f"v_pk_fma_f32 v[{t}:{t+1}], v[{t}:{t+1}], v[12:13], v[14:15] op_sel_hi:[1,0,0]")
        else: L+=[f"v_fma_f32 v{t}, v{t}, v12, v14", f"v_fma_f32 v{t+1}, v{t+1}, v12, v14"]
    for i in range(4):
        x=V_X+4*s+i; t=V_ST+2*i
        L.append(f"v_cvt_pk_bf16_f32 v{x}, v{t}, v{t+1}")
    return L
```

```python
from engine import *
WS_KV=0
KVT=2432; KVH=64*KVT; VS=320
S_DBG=96
WS_CNT=11<<20
CNT_KV=WS_CNT; CNT_O=WS_CNT+8*256; CNT_P=WS_CNT+24*256
OOB=0x7ff00000
WS_O=8<<20
WS_PART=12<<20
WS_TIME=200<<20
NSPLIT=8; FR=4608//NSPLIT; NC=FR//32
C1 = 2*math.sqrt(2/math.pi)*math.log2(math.e)
C12 = C1*0.044715
QSCALE = math.log2(math.e)/math.sqrt(18.0)
class Timer:
    def __init__(self,a,on,slot=0): self.a=a; self.on=on; self.n=0; self.slot=slot
    sel=None
    def stamp(self, name=None):
        if name is not None and (Timer.sel is None or name not in Timer.sel): return
        if name is None and Timer.sel is not None and self.n>0 and not getattr(self,"final",False): return
        if self.on:
            self.a(f"s_memrealtime s[{76+2*self.n}:{77+2*self.n}]" if self.n in (0,) and False else f"s_memtime s[{76+2*self.n}:{77+2*self.n}]"); self.n+=1
            assert self.n<=8
    def store(self, s_wg=2):
        if not self.on: return
        a=self.a
        a("s_waitcnt vmcnt(0)"); self.final=True; self.stamp()
        a("s_memrealtime s[92:93]")
        a("s_waitcnt lgkmcnt(0)")
        for i in range(1,self.n): a(f"s_sub_u32 s{76+2*i}, s{76+2*i}, s76")
        a(f"""s_lshl_b32 s38, s{s_wg}, 3
        s_add_u32 s38, s38, s{S_WAVE}
        s_lshl_b32 s38, s38, 6
        s_add_u32 s38, s38, {WS_TIME+self.slot*(1<<20)}
        v_mov_b32 v1, 0""")
        for i in range(8): a(f"v_mov_b32 v{16+i}, s{76+2*min(i,self.n-1)}")
        a("v_mov_b32 v16, s92")
        a("v_mov_b32 v24, s94\n v_mov_b32 v25, s2")
        a(f"buffer_store_dwordx4 v[16:19], v1, s[{S_WS}:{S_WS+3}], s38 offen")
        a(f"buffer_store_dwordx4 v[20:23], v1, s[{S_WS}:{S_WS+3}], s38 offen offset:16")
        a(f"buffer_store_dwordx2 v[24:25], v1, s[{S_WS}:{S_WS+3}], s38 offen offset:32")

def ytile(t): return (f"a[{16*t}:{16*t+15}]" if t<16 else f"v[{V_Y16+16*(t-16)}:{V_Y16+16*(t-16)+15}]")
def yreg(t,i): return (f"a{16*t+i}" if t<16 else f"v{V_Y16+16*(t-16)+i}")

def common_entry(a, s_idx):
    a(f"""
    s_load_dwordx2 s[10:11], s[0:1], 0
    s_load_dwordx4 s[12:15], s[0:1], 64
    v_lshrrev_b32 v1, 6, v0
    v_and_b32 v0, 63, v0
    v_readfirstlane_b32 s{S_WAVE}, v1
    s_and_b32 s36, s{s_idx}, 7
    s_lshr_b32 s37, s{s_idx}, 3
    s_lshl_b32 s38, s37, 2
    s_add_u32 s51, s38, s{S_WAVE}
    s_waitcnt lgkmcnt(0)
    """)
    srd(a,S_X,10,2048*1152); srd(a,S_WS,14,1<<28); srd(a,S_DBG,12,256)

def gu_phase(acc, xfirst=False):
    ops=[]
    for s in range(36):
        c = "0" if s==0 else vr(acc,16)
        if xfirst: ops.append((lambda af,s=s,c=c: f"v_mfma_f32_32x32x16_bf16 {vr(acc,16)}, {vr(V_X+4*s,4)}, {af}, {c}", (1024*s,1024*s+256)))
        else: ops.append((lambda af,s=s,c=c: f"v_mfma_f32_32x32x16_bf16 {vr(acc,16)}, {af}, {vr(V_X+4*s,4)}, {c}", (1024*s,1024*s+256)))
    return Phase(ops,V_RDA)
def d_phase(tile_major=False):
    ops=[]
    order=[(j,t) for t in range(18) for j in range(2)] if tile_major else [(j,t) for j in range(2) for t in range(18)]
    for j,t in order:
        o=t*2048+j*1024
        ops.append((lambda af,t=t,j=j: f"v_mfma_f32_32x32x16_bf16 {ytile(t)}, {af}, {vr(V_H+4*j,4)}, {ytile(t)}", (o,o+512)))
    return Phase(ops,V_RDB)
def gelu1():
    L=[]
    for q in range(0,16,4):
        e=list(range(q,q+4)); T=[V_T+i for i in range(4)]
        for i,x in enumerate(e): L.append(f"v_mul_f32 v{T[i]}, v{V_G+x}, v{V_G+x}")
        for i,x in enumerate(e): L.append(f"v_fmaak_f32 v{T[i]}, v{T[i]}, v{V_C12}, {hexf(-C1)}")
        for i,x in enumerate(e): L.append(f"v_mul_f32 v{T[i]}, v{T[i]}, v{V_G+x}")
        for i,x in enumerate(e): L.append(f"v_exp_f32 v{T[i]}, v{T[i]}")
        for i,x in enumerate(e): L.append(f"v_add_f32 v{T[i]}, 1.0, v{T[i]}")
        for i,x in enumerate(e): L.append(f"v_rcp_f32 v{T[i]}, v{T[i]}")
        for i,x in enumerate(e): L.append(f"v_mul_f32 v{V_G+x}, v{V_G+x}, v{T[i]}")
    return L
def gelu2(): return [f"v_mul_f32 v{V_U+x}, v{V_U+x}, v{V_G+x}" for x in range(16)]
def cvt_h(half): return [f"v_cvt_pk_bf16_f32 v{V_H+4*half+i}, v{V_U+8*half+2*i}, v{V_U+8*half+2*i+1}" for i in range(4)]

PF=True
PFF=True
LA=3
PFG=29
LEAD=4
def pf_calc(a, rowstride, colstride, nmax, base, vd):
    a(f"""s_mul_i32 s39, s38, 57
    s_lshr_b32 s39, s39, 9
    s_cmp_lt_u32 s38, {nmax}
    s_cselect_b32 s50, 0, {OOB}
    s_cselect_b32 s39, s39, 0
    s_cselect_b32 s38, s38, 0
    v_mov_b32 v{vd}, s50
    s_movk_i32 s50, {rowstride}
    v_mad_u32_u24 v{vd}, v0, s50, v{vd}
    s_mul_i32 s50, s39, 9
    s_sub_u32 s38, s38, s50
    s_mul_i32 s38, s38, {64*rowstride}
    s_mul_i32 s39, s39, {colstride}
    s_add_u32 s39, s39, s38""")
    if base: a(f"s_add_u32 s39, s39, {base}")
def init_load(): return [f"buffer_load_dword v14, off, s[{S_DBG}:{S_DBG+3}], 0"]
def publish(a, soff, chk=False):
    a(f"""s_waitcnt vmcnt(0)
    s_barrier
    s_cmp_lg_u32 s{S_WAVE}, 0
    s_cbranch_scc1 1f""")
    if chk:
        a(f"""s_mov_b32 s31, 0x40000
        3:
        v_readfirstlane_b32 s38, v14
        s_cmp_lg_u32 s38, 0
        s_cbranch_scc1 4f
        buffer_load_dword v14, off, s[{S_DBG}:{S_DBG+3}], 0 sc1
        s_waitcnt vmcnt(0)
        s_sub_u32 s31, s31, 1
        s_cbranch_scc0 3b
        4:""")
    a(f"""s_mov_b64 exec, 1
    v_mov_b32 v15, 1
    buffer_atomic_add v15, off, s[{S_WS}:{S_WS+3}], s{soff} sc1
    s_mov_b64 exec, -1
    1:""")
def poll(a, soff, n, sleep=2, also=None):
    a(f"""s_cmp_lg_u32 s{S_WAVE}, 0
    s_cbranch_scc1 2f
    s_mov_b32 s31, 0x40000""")
    if also: a(f"s_add_u32 s3, s{soff}, {also}")
    a(f"""1:
    buffer_load_dword v15, off, s[{S_WS}:{S_WS+3}], s{soff} sc1""")
    if also: a(f"buffer_load_dword v14, off, s[{S_WS}:{S_WS+3}], s3 sc1")
    a("s_waitcnt vmcnt(0)")
    if also: a("v_min_u32 v15, v15, v14\n s_nop 0")
    a(f"""v_readfirstlane_b32 s38, v15
    s_cmp_ge_u32 s38, {n}
    s_cbranch_scc1 2f
    s_sleep {sleep}
    s_sub_u32 s31, s31, 1
    s_cbranch_scc0 1b
    2:
    s_barrier""")
def first_phase_apply(a):
    for x in ln_apply(0)+ln_apply(1): a(x)
    return {g: ln_apply(g+2) for g in range(34)}

TORD=[0,2,4,6,8,10,12,14,16,1,3,5,7,9,11,13,15,17]
N1=70
EXP=''
GPK=False
def ffn_path(a, s_idx, timing=False, label="ffn", tslot=1, **kw):
    r=Ring(a,static=True,**kw); T=Timer(a,timing,tslot)
    GA=(V_G,80); ST=(96,104)
    if timing: a("s_memrealtime s[94:95]")
    T.stamp()
    a(f"""
    s_load_dwordx4 s[4:7], s[0:1], 32
    s_load_dwordx2 s[8:9], s[0:1], 48
    """)
    common_entry(a,s_idx)
    T.stamp("karg")
    WG,WU,WD=S_SRD0,S_SRD1,S_SRD2
    def setup(a):
        srd(a,WG,4,576*4608*2); srd(a,WU,6,576*4608*2); srd(a,WD,8,576*4608*2)
        a(f"""
        s_mul_i32 s38, s36, {FR*2}
        s_add_u32 s{WG}, s{WG}, s38
        s_addc_u32 s{WG+1}, s{WG+1}, 0
        s_sub_u32 s{WG+2}, s{WG+2}, s38
        s_add_u32 s{WU}, s{WU}, s38
        s_addc_u32 s{WU+1}, s{WU+1}, 0
        s_sub_u32 s{WU+2}, s{WU+2}, s38
        """)
        lane_consts(a,9216)
        a(f"v_mov_b32 v{V_C12}, {hexf(-C12)}\n s_mov_b32 s100, {hexf(-C12)}\n s_mov_b32 s101, {hexf(-C1)}")
        a(f"""
        s_mul_i32 s{S_DSLOT}, s{S_WAVE}, 9216
        s_mul_i32 s38, s{S_WAVE}, {9*16*9216}
        v_add_u32 v{V_DMA_A}, s38, v{V_DMA_A}
        s_mul_i32 s38, s{S_WAVE}, {9*16*1152}
        v_add_u32 v{V_DMA_B}, s38, v{V_DMA_B}
        s_mul_i32 s38, s36, {FR*1152}
        s_add_u32 s{WD}, s{WD}, s38
        s_addc_u32 s{WD+1}, s{WD+1}, 0
        s_sub_u32 s{WD+2}, s{WD+2}, s38
        s_mov_b32 s{S_SLOT}, 0
        s_mul_i32 s49, s36, {64*18*2048}
        s_mul_i32 s38, s51, {18*2048}
        s_add_u32 s49, s49, s38
        s_add_u32 s49, s49, {WS_PART}
        """)
        for i in range(1,9):
            a(f"s_mov_b32 s{S_TABG+i}, {i*16*9216-1024*(i%4)}")
            a(f"s_mov_b32 s{S_TABD+i}, {i*16*1152-1024*(i%4)}")
        ln_stats_setup(a)
    toks=ln_issue(a,r,51,capture(setup),LEAD)
    T.stamp("issued")
    def pf(m, off):
        if not PFF: return []
        return [f"buffer_load_dword v15, v{9 if m==2 else 7}, s[{(WG,WU,WD)[m]}:{(WG,WU,WD)[m]+3}], 0 offen offset:{off}"]
    a(f"""s_mul_i32 s38, s51, 9
    v_add_u32 v9, s38, v0
    s_movk_i32 s38, 9216
    v_mul_lo_u32 v7, v9, s38
    v_mul_u32_u24 v9, 1152, v9
    v_cmp_gt_u32 vcc, 9, v0
    v_mov_b32 v1, {OOB}
    s_nop 0
    v_cndmask_b32 v7, v1, v7, vcc
    v_cndmask_b32 v9, v1, v9, vcc
    v_lshlrev_b32 v1, 4, v0""")
    for k in range((LA+3)//2):
        for x in pf(0,128*k)+pf(1,128*k): r.emit(x)
    dm=[r.mk_dma_static((WG,WU)[p%2],V_DMA_A,S_TABG,64*(p%2)) for p in range(36)]
    dm+=[r.mk_dma_static(WD,V_DMA_B,S_TABD,(TORD[i+1]-TORD[i])*64 if i<17 else 0) for i in range(18)]+[None,None]
    ln_stats(a,r,toks,{1:dm[0], 3:dm[1]},T,LEAD)
    T.stamp(); T.stamp("stats")
    def gelu1(G):
        L=[]
        if GPK:
            for q in range(0,16,4):
                g=[f"v[{G+q+2*i}:{G+q+2*i+1}]" for i in range(2)]; t=[f"v[{V_T+2*i}:{V_T+2*i+1}]" for i in range(2)]
                for i in range(2): L.append(f"v_pk_mul_f32 {t[i]}, {g[i]}, {g[i]}")
                for i in range(2): L.append(f"v_pk_fma_f32 {t[i]}, {t[i]}, s[100:101], s[100:101] op_sel:[0,0,1] op_sel_hi:[1,0,1]")
                for i in range(2): L.append(f"v_pk_mul_f32 {t[i]}, {t[i]}, {g[i]}")
                for i in range(4): L.append(f"v_exp_f32 v{V_T+i}, v{V_T+i}")
                for i in range(2): L.append(f"v_pk_add_f32 {t[i]}, {t[i]}, 1.0 op_sel_hi:[1,0]")
                for i in range(4): L.append(f"v_rcp_f32 v{V_T+i}, v{V_T+i}")
                for i in range(2): L.append(f"v_pk_mul_f32 {g[i]}, {g[i]}, {t[i]}")
            return L
        for q in range(0,16,4):
            e=list(range(q,q+4)); T_=[V_T+i for i in range(4)]
            for i,x in enumerate(e): L.append(f"v_mul_f32 v{T_[i]}, v{G+x}, v{G+x}")
            for i,x in enumerate(e): L.append(f"v_fmaak_f32 v{T_[i]}, v{T_[i]}, v{V_C12}, {hexf(-C1)}")
            for i,x in enumerate(e): L.append(f"v_mul_f32 v{T_[i]}, v{T_[i]}, v{G+x}")
            for i,x in enumerate(e): L.append(f"v_exp_f32 v{T_[i]}, v{T_[i]}")
            for i,x in enumerate(e): L.append(f"v_add_f32 v{T_[i]}, 1.0, v{T_[i]}")
            for i,x in enumerate(e): L.append(f"v_rcp_f32 v{T_[i]}, v{T_[i]}")
            for i,x in enumerate(e): L.append(f"v_mul_f32 v{G+x}, v{G+x}, v{T_[i]}")
        return L
    def hfin(c):
        G=GA[c%2]
        L=gelu1(G)[N1:]+([f"v_pk_mul_f32 v[{V_U+x}:{V_U+x+1}], v[{V_U+x}:{V_U+x+1}], v[{G+x}:{G+x+1}]" for x in range(0,16,2)] if GPK else [f"v_mul_f32 v{V_U+x}, v{V_U+x}, v{G+x}" for x in range(16)])
        L+=[f"v_cvt_pk_bf16_f32 v{V_H+i}, v{V_U+2*i}, v{V_U+2*i+1}" for i in range(8)]
        L+=[f"v_accvgpr_write_b32 a{8*c+i}, v{V_H+i}" for i in range(8)]
        return L
    def dphase(i):
        acc=vr(GA[i%2],16)
        return Phase([(lambda af,s=s: f"v_mfma_f32_32x32x16_bf16 {acc}, {af}, a[{4*s}:{4*s+3}], {'0' if s==0 else acc}", (1024*s,1024*s+512)) for s in range(36)],V_RDB)
    def ycvt(i): return [f"v_cvt_pk_bf16_f32 v{ST[i%2]+k}, v{GA[i%2]+2*k}, v{GA[i%2]+2*k+1}" for k in range(8)]
    def yst(i):
        if EXP=="nost": return [f"s_add_u32 s38, s49, {TORD[i]*2048}"]
        if EXP=="plain": return [f"s_add_u32 s38, s49, {TORD[i]*2048}", f"buffer_store_dwordx4 {vr(ST[i%2],4)}, v1, s[{S_WS}:{S_WS+3}], s38 offen",
                f"buffer_store_dwordx4 {vr(ST[i%2]+4,4)}, v1, s[{S_WS}:{S_WS+3}], s38 offen offset:1024"]
        return [f"s_add_u32 s38, s49, {TORD[i]*2048}", f"buffer_store_dwordx4 {vr(ST[i%2],4)}, v1, s[{S_WS}:{S_WS+3}], s38 offen sc1",
                f"buffer_store_dwordx4 {vr(ST[i%2]+4,4)}, v1, s[{S_WS}:{S_WS+3}], s38 offen offset:1024 sc1"]
    P=[]
    for c in range(NC): P+=[gu_phase(GA[c%2]), gu_phase(V_U)]
    P+=[dphase(i) for i in range(18)]+[None]
    fx=first_phase_apply(a)
    for p in range(54):
        f=[]; fixed={}
        if p<36:
            c=p//2
            if p==0: fixed=fx
            elif p%2==0: f=[(hfin(c-1),1,36)]
            else: f=[(gelu1(GA[c%2])[:N1],3,36)]
            la=c+2+LA
            if la<NC and la%2==0: fixed[PFG]=fixed.get(PFG,[])+pf(p%2,64*la)
        else:
            i=p-36
            if i==0: f=[(hfin(NC-1),1,32)]
            else:
                f=[(ycvt(i-1),3,26)]
                if i-1!=9: fixed[27]=yst(i-1)
                if i==11:
                    t=A(); t(f"s_lshl_b32 s39, s37, 8\n s_add_u32 s39, s39, {CNT_P}"); publish(t,39,True)
                    fixed[0]=[x.strip() for x in t.l]+yst(9)
                if i==8: fixed[28]=init_load()
        j=p-26
        if 0<=j<9: fixed[PFG+1]=pf(2,128*j)
        r.run(P[p],P[p+1],f,dm[p+2],first=(p==0),fixed=fixed)
        if p==0: T.stamp("g0")
        if p==1: T.stamp()
        if p==35: T.stamp(); T.stamp("gu")
    T.stamp()
    a("s_nop 7\n s_nop 3")
    for x in ycvt(17)+yst(17): a(x)
    T.stamp("epi")
    a(f"s_lshl_b32 s39, s37, 8\n s_add_u32 s39, s39, {CNT_P+128}")
    publish(a,39)
    T.store()
    return r
```

```python
import sys
from att2 import *
import paths, att2, engine
timing = "-t" in sys.argv
out = sys.argv[1]
if "-s" in sys.argv: Timer.sel=sys.argv[sys.argv.index("-s")+1].split(",")
if "-nopf" in sys.argv: paths.PF=False; att2.PF=False
if "-fma" in sys.argv: engine.USE_PK=False
if "-exp" in sys.argv: paths.EXP=sys.argv[sys.argv.index("-exp")+1]
if "-gpk" in sys.argv: paths.GPK=True; paths.N1=48
if "-nopff" in sys.argv: paths.PFF=False
if "-la" in sys.argv: paths.LA=int(sys.argv[sys.argv.index("-la")+1])
NAME="recurrent_scan__mha_block__geglu_ffn__prompt_kernel"
hdr_src=open("recurrent_scan__mha_block__geglu_ffn__prompt.s.ref").read().split("\n")
hdr="\n".join(l for l in hdr_src if l.startswith(";") and "@launch" not in l and "Override" not in l and "grid=ceil" not in l)+"\n"
a=A(); a("""s_cmp_ge_u32 s2, 256
 s_cbranch_scc1 .Lk2_end
 s_and_b32 s3, s2, 8
""")
NMG=int(sys.argv[sys.argv.index("-nmg")+1]) if "-nmg" in sys.argv else 1
LG=NMG.bit_length()-1; att2.NMG=NMG
a(f"""s_lshr_b32 s65, s2, 4
 s_and_b32 s38, s2, 7
 s_and_b32 s39, s65, {NMG-1}
 s_lshr_b32 s65, s65, {LG}
 s_and_b32 s36, s38, {NMG-1}
 s_lshl_b32 s36, s36, {4-LG}
 s_add_u32 s65, s65, s36
 s_lshl_b32 s65, s65, 3
 s_andn2_b32 s38, s38, {NMG-1}
 s_add_u32 s65, s65, s38
 s_add_u32 s65, s65, s39
 s_cmp_lg_u32 s3, 0
 s_cbranch_scc1 .Lk2_att""")
kw=eval(sys.argv[sys.argv.index('-kw')+1]) if '-kw' in sys.argv else {}
r=ffn_path(a,65,timing,tslot=0,**kw); print("ffn slots",r.maxused)
a("s_endpgm\n.Lk2_att:")
T=Timer(a,timing,0)
r,qfin=qkv_path(a,65,T); print("qkv slots",r.maxused)
attn_path(a,r,T,qfin)
a(".Lk2_end:")
k2=kernel_text(NAME,a.text(),512,256)
hdr+=f"; @launch kernel={NAME} grid=(256,1,1) block=(256,1,1) lds=163840\n" if "-list" in sys.argv else "; @launch grid=(256,1,1) block=(256,1,1) lds=163840\n"
open(out,"w").write(hdr+'.amdgcn_target "amdgcn-amd-amdhsa--gfx950"\n.text\n'+k2)
```

```python
from engine import *
WS_KV=0
KVT=2432; KVH=64*KVT; VS=320
S_DBG=96
WS_CNT=11<<20
CNT_KV=WS_CNT; CNT_O=WS_CNT+8*256; CNT_P=WS_CNT+24*256
OOB=0x7ff00000
WS_O=8<<20
WS_PART=12<<20
WS_TIME=200<<20
NSPLIT=8; FR=4608//NSPLIT; NC=FR//32
C1 = 2*math.sqrt(2/math.pi)*math.log2(math.e)
C12 = C1*0.044715
QSCALE = math.log2(math.e)/math.sqrt(18.0)
class Timer:
    def __init__(self,a,on,slot=0): self.a=a; self.on=on; self.n=0; self.slot=slot
    sel=None
    def stamp(self, name=None):
        if name is not None and (Timer.sel is None or name not in Timer.sel): return
        if name is None and Timer.sel is not None and self.n>0 and not getattr(self,"final",False): return
        if self.on:
            self.a(f"s_memrealtime s[{76+2*self.n}:{77+2*self.n}]" if self.n in (0,) and False else f"s_memtime s[{76+2*self.n}:{77+2*self.n}]"); self.n+=1
            assert self.n<=8
    def store(self, s_wg=2):
        if not self.on: return
        a=self.a
        a("s_waitcnt vmcnt(0)"); self.final=True; self.stamp()
        a("s_memrealtime s[92:93]")
        a("s_waitcnt lgkmcnt(0)")
        for i in range(1,self.n): a(f"s_sub_u32 s{76+2*i}, s{76+2*i}, s76")
        a(f"""s_lshl_b32 s38, s{s_wg}, 3
        s_add_u32 s38, s38, s{S_WAVE}
        s_lshl_b32 s38, s38, 6
        s_add_u32 s38, s38, {WS_TIME+self.slot*(1<<20)}
        v_mov_b32 v1, 0""")
        for i in range(8): a(f"v_mov_b32 v{16+i}, s{76+2*min(i,self.n-1)}")
        a("v_mov_b32 v16, s92")
        a("v_mov_b32 v24, s94\n v_mov_b32 v25, s2")
        a(f"buffer_store_dwordx4 v[16:19], v1, s[{S_WS}:{S_WS+3}], s38 offen")
        a(f"buffer_store_dwordx4 v[20:23], v1, s[{S_WS}:{S_WS+3}], s38 offen offset:16")
        a(f"buffer_store_dwordx2 v[24:25], v1, s[{S_WS}:{S_WS+3}], s38 offen offset:32")

def ytile(t): return (f"a[{16*t}:{16*t+15}]" if t<16 else f"v[{V_Y16+16*(t-16)}:{V_Y16+16*(t-16)+15}]")
def yreg(t,i): return (f"a{16*t+i}" if t<16 else f"v{V_Y16+16*(t-16)+i}")

def common_entry(a, s_idx):
    a(f"""
    s_load_dwordx2 s[10:11], s[0:1], 0
    s_load_dwordx4 s[12:15], s[0:1], 64
    v_lshrrev_b32 v1, 6, v0
    v_and_b32 v0, 63, v0
    v_readfirstlane_b32 s{S_WAVE}, v1
    s_and_b32 s36, s{s_idx}, 7
    s_lshr_b32 s37, s{s_idx}, 3
    s_lshl_b32 s38, s37, 2
    s_add_u32 s51, s38, s{S_WAVE}
    s_waitcnt lgkmcnt(0)
    """)
    srd(a,S_X,10,2048*1152); srd(a,S_WS,14,1<<28); srd(a,S_DBG,12,256)

def gu_phase(acc, xfirst=False):
    ops=[]
    for s in range(36):
        c = "0" if s==0 else vr(acc,16)
        if xfirst: ops.append((lambda af,s=s,c=c: f"v_mfma_f32_32x32x16_bf16 {vr(acc,16)}, {vr(V_X+4*s,4)}, {af}, {c}", (1024*s,1024*s+256)))
        else: ops.append((lambda af,s=s,c=c: f"v_mfma_f32_32x32x16_bf16 {vr(acc,16)}, {af}, {vr(V_X+4*s,4)}, {c}", (1024*s,1024*s+256)))
    return Phase(ops,V_RDA)
def d_phase(tile_major=False):
    ops=[]
    order=[(j,t) for t in range(18) for j in range(2)] if tile_major else [(j,t) for j in range(2) for t in range(18)]
    for j,t in order:
        o=t*2048+j*1024
        ops.append((lambda af,t=t,j=j: f"v_mfma_f32_32x32x16_bf16 {ytile(t)}, {af}, {vr(V_H+4*j,4)}, {ytile(t)}", (o,o+512)))
    return Phase(ops,V_RDB)
def gelu1():
    L=[]
    for q in range(0,16,4):
        e=list(range(q,q+4)); T=[V_T+i for i in range(4)]
        for i,x in enumerate(e): L.append(f"v_mul_f32 v{T[i]}, v{V_G+x}, v{V_G+x}")
        for i,x in enumerate(e): L.append(f"v_fmaak_f32 v{T[i]}, v{T[i]}, v{V_C12}, {hexf(-C1)}")
        for i,x in enumerate(e): L.append(f"v_mul_f32 v{T[i]}, v{T[i]}, v{V_G+x}")
        for i,x in enumerate(e): L.append(f"v_exp_f32 v{T[i]}, v{T[i]}")
        for i,x in enumerate(e): L.append(f"v_add_f32 v{T[i]}, 1.0, v{T[i]}")
        for i,x in enumerate(e): L.append(f"v_rcp_f32 v{T[i]}, v{T[i]}")
        for i,x in enumerate(e): L.append(f"v_mul_f32 v{V_G+x}, v{V_G+x}, v{T[i]}")
    return L
def gelu2(): return [f"v_mul_f32 v{V_U+x}, v{V_U+x}, v{V_G+x}" for x in range(16)]
def cvt_h(half): return [f"v_cvt_pk_bf16_f32 v{V_H+4*half+i}, v{V_U+8*half+2*i}, v{V_U+8*half+2*i+1}" for i in range(4)]

PF=True
PFF=True
LA=3
PFG=29
LEAD=4
def pf_calc(a, rowstride, colstride, nmax, base, vd):
    a(f"""s_mul_i32 s39, s38, 57
    s_lshr_b32 s39, s39, 9
    s_cmp_lt_u32 s38, {nmax}
    s_cselect_b32 s50, 0, {OOB}
    s_cselect_b32 s39, s39, 0
    s_cselect_b32 s38, s38, 0
    v_mov_b32 v{vd}, s50
    s_movk_i32 s50, {rowstride}
    v_mad_u32_u24 v{vd}, v0, s50, v{vd}
    s_mul_i32 s50, s39, 9
    s_sub_u32 s38, s38, s50
    s_mul_i32 s38, s38, {64*rowstride}
    s_mul_i32 s39, s39, {colstride}
    s_add_u32 s39, s39, s38""")
    if base: a(f"s_add_u32 s39, s39, {base}")
def init_load(): return [f"buffer_load_dword v14, off, s[{S_DBG}:{S_DBG+3}], 0"]
def publish(a, soff, chk=False):
    a(f"""s_waitcnt vmcnt(0)
    s_barrier
    s_cmp_lg_u32 s{S_WAVE}, 0
    s_cbranch_scc1 1f""")
    if chk:
        a(f"""s_mov_b32 s31, 0x40000
        3:
        v_readfirstlane_b32 s38, v14
        s_cmp_lg_u32 s38, 0
        s_cbranch_scc1 4f
        buffer_load_dword v14, off, s[{S_DBG}:{S_DBG+3}], 0 sc1
        s_waitcnt vmcnt(0)
        s_sub_u32 s31, s31, 1
        s_cbranch_scc0 3b
        4:""")
    a(f"""s_mov_b64 exec, 1
    v_mov_b32 v15, 1
    buffer_atomic_add v15, off, s[{S_WS}:{S_WS+3}], s{soff} sc1
    s_mov_b64 exec, -1
    1:""")
def poll(a, soff, n, sleep=2, also=None):
    a(f"""s_cmp_lg_u32 s{S_WAVE}, 0
    s_cbranch_scc1 2f
    s_mov_b32 s31, 0x40000""")
    if also: a(f"s_add_u32 s3, s{soff}, {also}")
    a(f"""1:
    buffer_load_dword v15, off, s[{S_WS}:{S_WS+3}], s{soff} sc1""")
    if also: a(f"buffer_load_dword v14, off, s[{S_WS}:{S_WS+3}], s3 sc1")
    a("s_waitcnt vmcnt(0)")
    if also: a("v_min_u32 v15, v15, v14\n s_nop 0")
    a(f"""v_readfirstlane_b32 s38, v15
    s_cmp_ge_u32 s38, {n}
    s_cbranch_scc1 2f
    s_sleep {sleep}
    s_sub_u32 s31, s31, 1
    s_cbranch_scc0 1b
    2:
    s_barrier""")
def first_phase_apply(a):
    for x in ln_apply(0)+ln_apply(1): a(x)
    return {g: ln_apply(g+2) for g in range(34)}

TORD=[0,2,4,6,8,10,12,14,16,1,3,5,7,9,11,13,15,17]
N1=70
EXP=''
GPK=False
CPF2=False
TLB=False
def ffn_path(a, s_idx, timing=False, label="ffn", tslot=1, **kw):
    r=Ring(a,static=True,**kw); T=Timer(a,timing,tslot)
    GA=(V_G,80); ST=(96,104)
    if timing: a("s_memrealtime s[94:95]")
    T.stamp()
    a(f"""
    s_load_dwordx4 s[4:7], s[0:1], 32
    s_load_dwordx2 s[8:9], s[0:1], 48
    """)
    common_entry(a,s_idx)
    T.stamp("karg")
    WG,WU,WD=S_SRD0,S_SRD1,S_SRD2
    def setup(a):
        srd(a,WG,4,576*4608*2); srd(a,WU,6,576*4608*2); srd(a,WD,8,576*4608*2)
        a(f"""
        s_mul_i32 s38, s36, {FR*2}
        s_add_u32 s{WG}, s{WG}, s38
        s_addc_u32 s{WG+1}, s{WG+1}, 0
        s_sub_u32 s{WG+2}, s{WG+2}, s38
        s_add_u32 s{WU}, s{WU}, s38
        s_addc_u32 s{WU+1}, s{WU+1}, 0
        s_sub_u32 s{WU+2}, s{WU+2}, s38
        """)
        lane_consts(a,9216)
        a(f"v_mov_b32 v{V_C12}, {hexf(-C12)}\n s_mov_b32 s100, {hexf(-C12)}\n s_mov_b32 s101, {hexf(-C1)}")
        a(f"""
        s_mul_i32 s{S_DSLOT}, s{S_WAVE}, 9216
        s_mul_i32 s38, s{S_WAVE}, {9*16*9216}
        v_add_u32 v{V_DMA_A}, s38, v{V_DMA_A}
        s_mul_i32 s38, s{S_WAVE}, {9*16*1152}
        v_add_u32 v{V_DMA_B}, s38, v{V_DMA_B}
        s_mul_i32 s38, s36, {FR*1152}
        s_add_u32 s{WD}, s{WD}, s38
        s_addc_u32 s{WD+1}, s{WD+1}, 0
        s_sub_u32 s{WD+2}, s{WD+2}, s38
        s_mov_b32 s{S_SLOT}, 0
        s_mul_i32 s49, s36, {64*18*2048}
        s_mul_i32 s38, s51, {18*2048}
        s_add_u32 s49, s49, s38
        s_add_u32 s49, s49, {WS_PART}
        """)
        for i in range(1,9):
            a(f"s_mov_b32 s{S_TABG+i}, {i*16*9216-1024*(i%4)}")
            a(f"s_mov_b32 s{S_TABD+i}, {i*16*1152-1024*(i%4)}")
        ln_stats_setup(a)
    toks=ln_issue(a,r,51,capture(setup),LEAD)
    T.stamp("issued")
    def pf(m, off):
        if not PFF: return []
        return [f"buffer_load_dword v15, v{9 if m==2 else 7}, s[{(WG,WU,WD)[m]}:{(WG,WU,WD)[m]+3}], 0 offen offset:{off}"]
    a(f"""s_mul_i32 s38, s51, 9
    v_add_u32 v9, s38, v0
    s_movk_i32 s38, 9216
    v_mul_lo_u32 v7, v9, s38
    v_mul_u32_u24 v9, 1152, v9
    v_cmp_gt_u32 vcc, 9, v0
    v_mov_b32 v1, {OOB}
    s_nop 0
    v_cndmask_b32 v7, v1, v7, vcc
    v_cndmask_b32 v9, v1, v9, vcc
    v_lshlrev_b32 v1, 4, v0""")
    if CPF2: a("""v_lshlrev_b32 v96, 7, v0
    v_add_u32 v96, 8192, v96
    v_mov_b32 v97, s33
    v_add_co_u32 v96, vcc, s32, v96
    v_addc_co_u32 v97, vcc, 0, v97, vcc""")
    for k in range((LA+3)//2):
        for x in pf(0,128*k)+pf(1,128*k): r.emit(x)
    dm=[r.mk_dma_static((WG,WU)[p%2],V_DMA_A,S_TABG,64*(p%2)) for p in range(36)]
    dm+=[r.mk_dma_static(WD,V_DMA_B,S_TABD,(TORD[i+1]-TORD[i])*64 if i<17 else 0) for i in range(18)]+[None,None]
    ln_stats(a,r,toks,{1:dm[0], 3:dm[1]},T,LEAD)
    T.stamp(); T.stamp("stats")
    def gelu1(G):
        L=[]
        if GPK:
            for q in range(0,16,4):
                g=[f"v[{G+q+2*i}:{G+q+2*i+1}]" for i in range(2)]; t=[f"v[{V_T+2*i}:{V_T+2*i+1}]" for i in range(2)]
                for i in range(2): L.append(f"v_pk_mul_f32 {t[i]}, {g[i]}, {g[i]}")
                for i in range(2): L.append(f"v_pk_fma_f32 {t[i]}, {t[i]}, s[100:101], s[100:101] op_sel:[0,0,1] op_sel_hi:[1,0,1]")
                for i in range(2): L.append(f"v_pk_mul_f32 {t[i]}, {t[i]}, {g[i]}")
                for i in range(4): L.append(f"v_exp_f32 v{V_T+i}, v{V_T+i}")
                for i in range(2): L.append(f"v_pk_add_f32 {t[i]}, {t[i]}, 1.0 op_sel_hi:[1,0]")
                for i in range(4): L.append(f"v_rcp_f32 v{V_T+i}, v{V_T+i}")
                for i in range(2): L.append(f"v_pk_mul_f32 {g[i]}, {g[i]}, {t[i]}")
            return L
        for q in range(0,16,4):
            e=list(range(q,q+4)); T_=[V_T+i for i in range(4)]
            for i,x in enumerate(e): L.append(f"v_mul_f32 v{T_[i]}, v{G+x}, v{G+x}")
            for i,x in enumerate(e): L.append(f"v_fmaak_f32 v{T_[i]}, v{T_[i]}, v{V_C12}, {hexf(-C1)}")
            for i,x in enumerate(e): L.append(f"v_mul_f32 v{T_[i]}, v{T_[i]}, v{G+x}")
            for i,x in enumerate(e): L.append(f"v_exp_f32 v{T_[i]}, v{T_[i]}")
            for i,x in enumerate(e): L.append(f"v_add_f32 v{T_[i]}, 1.0, v{T_[i]}")
            for i,x in enumerate(e): L.append(f"v_rcp_f32 v{T_[i]}, v{T_[i]}")
            for i,x in enumerate(e): L.append(f"v_mul_f32 v{G+x}, v{G+x}, v{T_[i]}")
        return L
    def hfin(c):
        G=GA[c%2]
        L=gelu1(G)[N1:]+([f"v_pk_mul_f32 v[{V_U+x}:{V_U+x+1}], v[{V_U+x}:{V_U+x+1}], v[{G+x}:{G+x+1}]" for x in range(0,16,2)] if GPK else [f"v_mul_f32 v{V_U+x}, v{V_U+x}, v{G+x}" for x in range(16)])
        L+=[f"v_cvt_pk_bf16_f32 v{V_H+i}, v{V_U+2*i}, v{V_U+2*i+1}" for i in range(8)]
        L+=[f"v_accvgpr_write_b32 a{8*c+i}, v{V_H+i}" for i in range(8)]
        return L
    def dphase(i):
        acc=vr(GA[i%2],16)
        return Phase([(lambda af,s=s: f"v_mfma_f32_32x32x16_bf16 {acc}, {af}, a[{4*s}:{4*s+3}], {'0' if s==0 else acc}", (1024*s,1024*s+512)) for s in range(36)],V_RDB)
    def ycvt(i): return [f"v_cvt_pk_bf16_f32 v{ST[i%2]+k}, v{GA[i%2]+2*k}, v{GA[i%2]+2*k+1}" for k in range(8)]
    def yst(i):
        if EXP=="nost": return [f"s_add_u32 s38, s49, {TORD[i]*2048}"]
        if EXP=="plain": return [f"s_add_u32 s38, s49, {TORD[i]*2048}", f"buffer_store_dwordx4 {vr(ST[i%2],4)}, v1, s[{S_WS}:{S_WS+3}], s38 offen",
                f"buffer_store_dwordx4 {vr(ST[i%2]+4,4)}, v1, s[{S_WS}:{S_WS+3}], s38 offen offset:1024"]
        return [f"s_add_u32 s38, s49, {TORD[i]*2048}", f"buffer_store_dwordx4 {vr(ST[i%2],4)}, v1, s[{S_WS}:{S_WS+3}], s38 offen sc1",
                f"buffer_store_dwordx4 {vr(ST[i%2]+4,4)}, v1, s[{S_WS}:{S_WS+3}], s38 offen offset:1024 sc1"]
    P=[]
    for c in range(NC): P+=[gu_phase(GA[c%2]), gu_phase(V_U)]
    P+=[dphase(i) for i in range(18)]+[None]
    fx=first_phase_apply(a)
    for p in range(54):
        f=[]; fixed={}
        if p<36:
            c=p//2
            if p==0: fixed=fx
            elif p%2==0: f=[(hfin(c-1),1,36)]
            else: f=[(gelu1(GA[c%2])[:N1],3,36)]
            la=c+2+LA
            if la<NC and la%2==0: fixed[PFG]=fixed.get(PFG,[])+pf(p%2,64*la)
        else:
            i=p-36
            if i==0: f=[(hfin(NC-1),1,32)]
            else:
                f=[(ycvt(i-1),3,26)]
                if i-1!=9: fixed[27]=yst(i-1)
                if i==11:
                    t=A(); t(f"s_lshl_b32 s39, s37, 8\n s_add_u32 s39, s39, {CNT_P}"); publish(t,39,True)
                    fixed[0]=[x.strip() for x in t.l]+yst(9)
                if i==8: fixed[28]=init_load()
        if CPF2 and p<36 and p%4==1:
            fixed[PFG+2]=["global_load_dword a255, v[96:97], off","v_add_co_u32 v96, vcc, 0x2000, v96","v_addc_co_u32 v97, vcc, 0, v97, vcc"]
        if TLB and p==31: fixed[PFG+3]=[f"buffer_load_dword a254, off, s[{S_WS}:{S_WS+3}], s49"]
        j=p-26
        if 0<=j<9: fixed[PFG+1]=pf(2,128*j)
        r.run(P[p],P[p+1],f,dm[p+2],first=(p==0),fixed=fixed)
        if p==0: T.stamp("g0")
        if p==1: T.stamp()
        if p==35: T.stamp(); T.stamp("gu")
    T.stamp()
    a("s_nop 7\n s_nop 3")
    for x in ycvt(17)+yst(17): a(x)
    T.stamp("epi")
    a(f"s_lshl_b32 s39, s37, 8\n s_add_u32 s39, s39, {CNT_P+128}")
    publish(a,39)
    T.store()
    return r
```

```python
import sys
from att2 import *
import paths, att2, engine
timing = "-t" in sys.argv
out = sys.argv[1]
if "-s" in sys.argv: Timer.sel=sys.argv[sys.argv.index("-s")+1].split(",")
if "-nopf" in sys.argv: paths.PF=False; att2.PF=False
if "-fma" in sys.argv: engine.USE_PK=False
if "-exp" in sys.argv: paths.EXP=sys.argv[sys.argv.index("-exp")+1]
if "-gpk" in sys.argv: paths.GPK=True; paths.N1=48
if "-nopff" in sys.argv: paths.PFF=False
if "-la" in sys.argv: paths.LA=int(sys.argv[sys.argv.index("-la")+1])
NAME="recurrent_scan__mha_block__geglu_ffn__prompt_kernel"
hdr_src=open("recurrent_scan__mha_block__geglu_ffn__prompt.s.ref").read().split("\n")
hdr="\n".join(l for l in hdr_src if l.startswith(";") and "@launch" not in l and "Override" not in l and "grid=ceil" not in l)+"\n"
a=A(); a("""s_getpc_b64 s[32:33]
 s_cmp_ge_u32 s2, 256
 s_cbranch_scc1 .Lk2_end""")
CPF="-cpf" in sys.argv
if "-osc" in sys.argv: att2.OSC=" "+sys.argv[sys.argv.index("-osc")+1].replace("_"," ")
if "-cpf2" in sys.argv: paths.CPF2=True
if "-tlb" in sys.argv: paths.TLB=True; att2.TLB=True
if CPF:
    a(f"""s_lshr_b32 s3, s2, 3
 s_lshl_b32 s3, s3, 15
 s_cmp_ge_u32 s3, .Lk2_end-{NAME}
 s_cbranch_scc1 .Lk2_nopf
 v_lshlrev_b32 v1, 7, v0
 v_add_u32 v1, s3, v1
 v_min_u32 v1, .Lk2_end-{NAME}-8, v1
 v_mov_b32 v3, s33
 v_add_co_u32 v2, vcc, s32, v1
 v_addc_co_u32 v3, vcc, 0, v3, vcc
 global_load_dword a255, v[2:3], off
 .Lk2_nopf:""")
a("s_and_b32 s3, s2, 8")
NMG=int(sys.argv[sys.argv.index("-nmg")+1]) if "-nmg" in sys.argv else 1
NMGA=int(sys.argv[sys.argv.index("-nmga")+1]) if "-nmga" in sys.argv else NMG
att2.NMG=NMGA
def wgmap(NMG):
  LG=NMG.bit_length()-1
  a(f"""s_lshr_b32 s65, s2, 4
 s_and_b32 s38, s2, 7
 s_and_b32 s39, s65, {NMG-1}
 s_lshr_b32 s65, s65, {LG}
 s_and_b32 s36, s38, {NMG-1}
 s_lshl_b32 s36, s36, {4-LG}
 s_add_u32 s65, s65, s36
 s_lshl_b32 s65, s65, 3
 s_andn2_b32 s38, s38, {NMG-1}
 s_add_u32 s65, s65, s38
 s_add_u32 s65, s65, s39""")
a("s_cmp_lg_u32 s3, 0\n s_cbranch_scc1 .Lk2_att")
wgmap(NMG)
kw=eval(sys.argv[sys.argv.index('-kw')+1]) if '-kw' in sys.argv else {}
r=ffn_path(a,65,timing,tslot=0,**kw); print("ffn slots",r.maxused)
a("s_endpgm\n.Lk2_att:")
wgmap(NMGA)
T=Timer(a,timing,0)
r,qfin=qkv_path(a,65,T); print("qkv slots",r.maxused)
attn_path(a,r,T,qfin)
a(".Lk2_end:")
k2=kernel_text(NAME,a.text(),512,256)
hdr+=f"; @launch kernel={NAME} grid=(256,1,1) block=(256,1,1) lds=163840\n" if "-list" in sys.argv else "; @launch grid=(256,1,1) block=(256,1,1) lds=163840\n"
open(out,"w").write(hdr+'.amdgcn_target "amdgcn-amd-amdhsa--gfx950"\n.text\n'+k2)
```

```python
from paths import *
import paths
QX=3*SLOT
KL=4*SLOT; KEL=QX+18432; VL=0
XL01=4*SLOT; XL2=QX+20480
WOS=(0,1,2)
S_WO=S_SRD1; S_OUT=S_SRD2
V_WO2=8; V_OCB=13; NMG=1
def wo_dma(r, step):
    d=r.mk_dma(S_WO,V_DMA_B,S_TABD,False,step)
    d.loads=[(pre, x.replace(f"v{V_DMA_B},",f"v{V_WO2},") if i>=5 else x) for i,(pre,x) in enumerate(d.loads)]
    return d
def qkv_path(a, s_idx, T, **kw):
    sc="sc1"
    r=Ring(a,**kw)
    if T.on: a("s_memrealtime s[94:95]")
    T.stamp()
    a("s_load_dwordx4 s[4:7], s[0:1], 8\n s_load_dwordx2 s[8:9], s[0:1], 56")
    common_entry(a,s_idx)
    W=S_SRD0
    srd(a,W,4,576*3456); srd(a,S_WO,6,576*1152); srd(a,S_OUT,8,2048*1152)
    coff=[2304,2368,2432,1152+128,1152+64,1152,128,64,0]
    a(f"""s_lshl_b32 s38, s2, 2
    s_add_u32 s38, s38, s{S_WAVE}
    s_cmp_eq_u32 s38, 32
    s_cselect_b32 s49, 0, {OOB}
    v_cmp_gt_u32 vcc, 40, v0
    v_lshlrev_b32 v12, 8, v0
    v_mov_b32 v13, {OOB}
    v_cndmask_b32 v12, v13, v12, vcc
    v_or_b32 v12, s49, v12
    v_mov_b32 v14, 0
    s_mov_b32 s38, {WS_CNT}""")
    r.emit(f"buffer_store_dword v14, v12, s[{S_WS}:{S_WS+3}], s38 offen sc1")
    r.emit(f"buffer_store_dword v14, v12, s[{S_WS}:{S_WS+3}], s38 offen offset:128 sc1")
    def flag():
        a(f"v_lshlrev_b32 v12, 8, v0\n v_or_b32 v12, s49, v12\n v_mov_b32 v14, 1")
        r.emit(f"buffer_store_dword v14, v12, s[{S_DBG}:{S_DBG+3}], 0 offen sc1")
    NW=64//NMG
    if PF:
        a(f"""s_lshr_b32 s75, s2, {4+NMG.bit_length()-1}
        s_lshl_b32 s75, s75, 2
        s_add_u32 s75, s75, s{S_WAVE}
        s_mul_i32 s64, s36, 144
        s_andn2_b32 s64, s64, 127""")
        for k in range((18+NW-1)//NW):
            a(f"s_add_u32 s38, s75, {k*NW}"); pf_calc(a,3456,128,18,2304,12)
            a("s_add_u32 s39, s39, s64")
            r.emit(f"buffer_load_dword a255, v12, s[{W}:{W+3}], s39 offen")
    def setup(a):
        lane_consts(a,3456)
        a(f"""
        s_mul_i32 s{S_DSLOT}, s{S_WAVE}, 9216
        s_mul_i32 s38, s{S_WAVE}, {9*16*3456}
        v_add_u32 v{V_DMA_A}, s38, v{V_DMA_A}
        s_mov_b32 s{S_SLOT}, 0
        s_mul_i32 s38, s36, 144
        s_and_b32 s38, s38, 63
        v_bfe_u32 v1, v0, 4, 1
        v_lshlrev_b32 v1, 5, v1
        v_and_b32 v10, 3, v0
        v_lshl_add_u32 v1, v10, 3, v1
        v_sub_u32 v{V_RDA}, v{V_RDA}, v1
        v_add_u32 v{V_OCB}, s38, v1
        v_bfe_u32 v1, v0, 3, 1
        v_bfe_u32 v10, v0, 4, 1
        v_lshl_add_u32 v1, v10, 2, v1
        v_lshrrev_b32 v10, 5, v0
        v_lshl_add_u32 v1, v10, 1, v1
        v_mul_u32_u24 v10, 18, v1
        v_bfe_u32 v1, v0, 2, 1
        v_add3_u32 v10, v10, v1, 16
        s_movk_i32 s38, 1152
        v_mul_lo_u32 v10, v10, s38
        v_and_b32 v1, 3, v0
        v_lshlrev_b32 v1, 4, v1
        v_add_u32 v10, v10, v1
        v_mov_b32 v{V_WO2}, v10
        """)
        for i in range(1,9): a(f"s_mov_b32 s{S_TABG+i}, {i*16*3456-1024*(i%4)}")
        ln_stats_setup(a)
    toks=ln_issue(a,r,51,capture(setup),LEAD,flag)
    T.stamp("issued")
    if PF:
        for base in (1152,0):
            for k in range((18+NW-1)//NW):
                a(f"s_add_u32 s38, s75, {k*NW}"); pf_calc(a,3456,128,18,base,12)
                a("s_add_u32 s39, s39, s64")
                r.emit(f"buffer_load_dword a255, v12, s[{W}:{W+3}], s39 offen")
        for k in range((18+NW-1)//NW):
            a(f"s_add_u32 s38, s75, {k*NW}\n s_lshl_b32 s3, s36, 7\n s_cmp_lt_u32 s38, 9\n s_cselect_b32 s3, s3, 1024"); pf_calc(a,1152,0,18,0,12)
            a("s_add_u32 s39, s39, s3")
            r.emit(f"buffer_load_dword a255, v12, s[{S_WO}:{S_WO+3}], s39 offen")
    a(f"""
    s_mul_i32 s38, s36, 144
    s_andn2_b32 s38, s38, 63
    s_add_u32 s38, s38, {coff[0]}
    s_add_u32 s{W}, s{W}, s38
    s_addc_u32 s{W+1}, s{W+1}, 0
    s_sub_u32 s{W+2}, s{W+2}, s38
    """)
    dm=[r.mk_dma(W, V_DMA_A, S_TABG, True, (coff[p+1]-coff[p]) if p<8 else 0) for p in range(9)]
    ln_stats(a,r,toks,{1:dm[0], 3:dm[1]},T,LEAD)
    T.stamp(); T.stamp("stats")
    acc=[48,64,80,96,48,64,80,None]
    phs=[gu_phase(acc[p], xfirst=(p<3)) for p in range(7)]
    acc[7]=96; phs.append(gu_phase(96))
    WSR=f"s[{S_WS}:{S_WS+3}]"
    a(f"""
    s_mul_i32 s62, s36, {4*KVH}
    s_mul_i32 s38, s51, {KVT}
    s_add_u32 s62, s62, s38
    s_add_u32 s62, s62, {WS_KV}
    """)
    P=40
    def v_addr(i):
        L=[f"v_and_b32 v1, 31, v0", f"v_add_u32 v1, {32*i}, v1",
           f"v_mul_u32_u24 v9, 3641, v1", f"v_lshrrev_b32 v9, 16, v9",
           f"v_mul_u32_u24 v7, 18, v9", f"v_sub_u32 v7, v1, v7"]
        if i==2:
            L+=[f"v_cmp_le_u32 vcc, 72, v1", f"v_subrev_u32 v10, 72, v1", "s_nop 0",
                f"v_cndmask_b32 v9, v9, v10, vcc", f"v_mov_b32 v10, 18", "s_nop 0", f"v_cndmask_b32 v7, v7, v10, vcc"]
        L+=[f"v_lshlrev_b32 v7, 4, v7", f"v_lshrrev_b32 v10, 5, v0", f"v_mul_u32_u24 v10, {VS}, v10", f"v_add_u32 v7, v7, v10",
            f"s_mul_i32 s38, s{S_WAVE}, {4*VS}", f"v_mul_u32_u24 v11, {16*VS}, v9", f"v_add3_u32 v11, v11, v7, s38",
            f"s_mov_b32 s38, {KVH}", f"v_mul_lo_u32 v9, v9, s38", f"v_add_u32 v7, v7, v9"]
        if i==2:
            L+=[f"s_movk_i32 s38, 76", f"v_cmp_le_u32 s[32:33], s38, v1", f"v_mov_b32 v10, {OOB}", f"v_mov_b32 v9, {19*16}", f"v_cndmask_b32 v7, v7, v10, s[32:33]", f"v_cndmask_b32 v11, v11, v9, s[32:33]"]
        L+=[f"v_accvgpr_write_b32 a{26+i}, v11"]
        return L
    def v_pack(i):
        A_=acc[i]; L=[]
        if i==2: L+=["v_and_b32 v1, 31, v0", "v_cmp_le_u32 vcc, 8, v1", "v_mov_b32 v10, 0x3f803f80"]
        L+=[f"v_cvt_pk_bf16_f32 v{P+k}, v{A_+2*k}, v{A_+2*k+1}" for k in range(8)]
        if i==2: L+=[f"v_cndmask_b32 v{P+k}, v{P+k}, v10, vcc" for k in range(8)]
        L+=[f"v_accvgpr_write_b32 a{8*i+k}, v{P+k}" for k in range(8)]
        return L
    def v_st(i):
        return v_addr(i)+[f"buffer_store_dwordx4 a[{8*i}:{8*i+3}], v7, {WSR}, s62 offen offset:1152 {sc}",
            f"buffer_store_dwordx4 a[{8*i+4}:{8*i+7}], v7, {WSR}, s62 offen offset:{1152+2*VS} {sc}"]
    def piece_regs(isk):
        R=[]
        for p in range(9):
            gp = p + (9 if isk else 0)
            t=gp//4; j=gp%4
            base={0:acc[7],1:acc[6],2:acc[5],3:acc[4],4:acc[3]}[t]
            R.append(base+4*j)
        return R
    def qk_ep(isk, heads):
        R=piece_regs(isk); L=[]
        need={0:[0,1,2],1:[2,3,4],2:[4,5,6],3:[6,7,8]}
        return R,need
    def pack(R,p,scale):
        L=[]
        if scale: L+=[f"v_mul_f32 v{R[p]+i}, {hexf(QSCALE)}, v{R[p]+i}" for i in range(4)]
        L+=[f"v_cvt_pk_bf16_f32 v{R[p]}, v{R[p]}, v{R[p]+1}", f"v_cvt_pk_bf16_f32 v{R[p]+1}, v{R[p]+2}, v{R[p]+3}"]
        return L
    def mv(d,s): return [f"v_mov_b32 v{d}, v{s}", f"v_mov_b32 v{d+1}, v{s+1}"]
    def sel(d,lo,hi): return [f"v_cndmask_b32 v{d}, v{lo}, v{hi}, s[32:33]", f"v_cndmask_b32 v{d+1}, v{lo+1}, v{hi+1}, s[32:33]"]
    def quads(R): return [mv(P,R[0])+mv(P+2,R[1]), mv(P+4,R[3])+sel(P+6,R[4],R[2]), mv(P,R[5])+sel(P+2,R[6],R[4]), mv(P+4,R[7])+mv(P+6,R[8])]
    def ext_addr(he): return ["v_and_b32 v7, 31, v0","v_lshlrev_b32 v7, 2, v7","v_lshrrev_b32 v9, 5, v0", f"s_mov_b32 s38, {2*he}", "v_mul_lo_u32 v9, v9, s38", "v_add_u32 v7, v7, v9"]
    def k_store(heads):
        R=piece_regs(True)
        L=["v_cmp_lt_u32 s[32:33], 31, v0", "v_lshlrev_b32 v7, 4, v0", f"s_lshl_b32 s38, s{S_WAVE}, 10", f"s_add_u32 s38, s38, {KL}", "v_add_u32 v9, s38, v7"]
        for h in heads:
            L+=quads(R)[h]
            L+=[f"s_add_u32 s38, s62, {h*KVH}", f"buffer_store_dwordx4 {vr(P+4*(h%2),4)}, v7, {WSR}, s38 offen {sc}", f"ds_write_b128 v9, {vr(P+4*(h%2),4)} offset:{h*4096}"]
        if 0 in heads:
            L+=sel(10,R[2],R[6])+ext_addr(KVH)
            L+=[f"buffer_store_dword v10, v7, {WSR}, s62 offen offset:1024 {sc}", f"s_add_u32 s38, s62, {KVH}", f"buffer_store_dword v11, v7, {WSR}, s38 offen offset:1024 {sc}",
                "v_accvgpr_write_b32 a24, v10", "v_accvgpr_write_b32 a25, v11"]
        return L+["s_nop 1"]
    def own_lds():
        L=[f"v_accvgpr_read_b32 v{9+i}, a{26+i}" for i in range(3)]
        for i in range(3): L+=[f"ds_write_b128 v{9+i}, a[{8*i}:{8*i+3}]", f"ds_write_b128 v{9+i}, a[{8*i+4}:{8*i+7}] offset:{2*VS}"]
        L+=ext_addr(512)+[f"s_lshl_b32 s38, s{S_WAVE}, 7", f"s_add_u32 s38, s38, {QX+16384}", "v_add_u32 v12, s38, v7", "ds_write_b32 v12, a24 offset:2048", "ds_write_b32 v12, a25 offset:2560"]
        return L
    def q_store():
        R=piece_regs(False)
        L=["v_cmp_lt_u32 s[32:33], 31, v0", "v_lshlrev_b32 v7, 4, v0", f"s_lshl_b32 s38, s{S_WAVE}, 10", f"s_add_u32 s38, s38, {QX}", "v_add_u32 v7, s38, v7"]
        L+=sel(10,R[2],R[6])+["ds_write_b32 v12, v10", "ds_write_b32 v12, v11 offset:512"]
        for h in (3,2,1,0):
            L+=quads(R)[h]+[f"ds_write_b128 v7, {vr(P+4*(h%2),4)} offset:{h*4096}"]
        return L
    Rk=piece_regs(True); Rq=piece_regs(False)
    RN=15
    def rdcalc(p, t=10):
        L=[]
        if p==5:
            L+=["v_and_b32 v1, 0x12, v0", "v_cmp_eq_u32 vcc, 0, v1", f"v_add_u32 v{t}, 128, v{V_OCB}", f"v_add_u32 v1, -16, v{V_OCB}",
                f"v_cndmask_b32 v{t}, v1, v{t}, vcc", f"v_cndmask_b32 v1, 1, 0, vcc", f"v_lshrrev_b32 v{RN}, 6, v{t}", f"v_sub_u32 v{RN}, v1, v{RN}"]
        else:
            tb=[0,64,128,112,48,None,64,0][p]
            L+=[f"v_add_u32 v{t}, {tb}, v{V_OCB}", f"v_lshrrev_b32 v{RN}, 6, v{t}"]
            if p>=3: L+=[f"v_sub_u32 v{RN}, {1 if p<5 else 0}, v{RN}"]
        L+=[f"v_and_b32 v{RN}, 3, v{RN}", f"v_mul_u32_u24 v{RN}, {SLOT}, v{RN}", f"v_and_b32 v{t}, 63, v{t}", f"v_add3_u32 v{RN}, v{RN}, v{t}, v{V_RDA}"]
        return L
    for p,nw in enumerate([2,1,0,2,1,1,1,1]): phs[p].rdreg=RN; phs[p].nwait=nw
    for x in rdcalc(0): a(x)
    fx=first_phase_apply(a)
    t=A(); t(f"s_lshl_b32 s39, s36, 8\n s_add_u32 s39, s39, {CNT_KV}"); publish(t,39,True)
    r.run(phs[0],phs[1],[(rdcalc(1),20,30)],[(dm[2],(1,2),True),(dm[3],(19,2),True)],first=True,fixed=fx)
    T.stamp("p0")
    r.run(phs[1],phs[2],[(v_pack(0),4,24),(rdcalc(2),24,31)],dm[4])
    T.stamp("p1")
    r.run(phs[2],phs[3],[(v_pack(1),4,24),(rdcalc(3),24,31)],dm[5])
    T.stamp("p2")
    r.run(phs[3],phs[4],[(v_pack(2),4,24),(rdcalc(4),24,31)],dm[6])
    T.stamp("p3")
    r.run(phs[4],phs[5],[(v_st(0)+v_st(1)+v_st(2)+init_load(),0,20),(pack(Rk,7,0)+pack(Rk,8,0)+rdcalc(5),20,31)],None)
    T.stamp("p4")
    r.run(phs[5],phs[6],[(sum([pack(Rk,p,0) for p in (3,4,5,6)],[])+rdcalc(6),2,18),(k_store((2,3)),18,30)],[(dm[7],(1,2),True)])
    T.stamp("p5")
    r.run(phs[6],phs[7],[(sum([pack(Rk,p,0) for p in (0,1,2)],[]),2,10),(k_store((0,1)),10,22),(rdcalc(7)+pack(Rq,8,1),22,31)],[(dm[8],(1,1),True)])
    T.stamp("p6")
    r.run(phs[7],None,[(sum([pack(Rq,p,1) for p in (4,5,6,7)],[]),2,PUBG),(own_lds(),PUBG+1,36)],None,fixed={PUBG:["s_waitcnt lgkmcnt(0)"]+[x.strip() for x in t.l]})
    T.stamp(); T.stamp("qkv")
    qfin=["s_nop 7"]+sum([pack(Rq,p,1) for p in (0,1,2,3)],[])+q_store()
    return r,qfin
PUBG=30
OSC=''
CPF3=False
EXN=1

Q0=16; Q1=32; SB=(48,64); PB=(80,88); K0B=(96,100,104,108); K1B=(112,116,120,124); VB=(128,136,144,152); OA=160; MX=224
S_PASS=62; S_IT=63; S_KVO=61; S_KVB=60
XRAW=192
def attn_path(a, r, T, qfin, label="att"):
    WSR=f"s[{S_WS}:{S_WS+3}]"; KT=4
    VK,VE,VV=4,5,6
    def ld_tile(b, so):
        return [f"buffer_load_dwordx4 {vr(K0B[b],4)}, v{VK}, {WSR}, s{so} offen sc1",
                f"buffer_load_dword v{K1B[b]}, v{VE}, {WSR}, s{so} offen sc1",
                f"buffer_load_dwordx4 {vr(VB[b],4)}, v{VV}, {WSR}, s{so} offen sc1",
                f"buffer_load_dwordx4 {vr(VB[b]+4,4)}, v{VV}, {WSR}, s{so} offen offset:{2*VS} sc1"]
    a(f"""
    v_mov_b32 v2, v{V_RDB}
    s_lshl_b32 s50, s36, 2
    s_add_u32 s50, s50, s{S_WAVE}
    s_mul_i32 s{S_KVB}, s50, {KVH}
    s_add_u32 s{S_KVB}, s{S_KVB}, {WS_KV}
    v_lshlrev_b32 v{VK}, 4, v0
    v_and_b32 v7, 31, v0
    v_lshlrev_b32 v{VE}, 2, v7
    v_add_u32 v{VE}, 1024, v{VE}
    v_cmp_lt_u32 vcc, 15, v7
    v_and_b32 v9, 19, v7
    v_lshrrev_b32 v10, 5, v0
    v_cndmask_b32 v9, v7, v9, vcc
    v_mul_u32_u24 v10, {VS}, v10
    v_lshlrev_b32 v9, 4, v9
    v_add_u32 v9, v9, v10
    v_add_u32 v{VV}, 1152, v9
    s_lshl_b32 s39, s36, 8
    s_add_u32 s39, s39, {CNT_KV}
    s_cmp_eq_u32 s{S_WAVE}, 0
    s_cselect_b32 s38, 0, {OOB}
    v_mov_b32 v1, s38
    """)
    for x in qfin: a(x)
    a(f"""s_waitcnt lgkmcnt(0)
    s_barrier
    s_lshl_b32 s38, s{S_WAVE}, 12
    s_add_u32 s38, s38, {QX}
    v_add_u32 v10, s38, v{VK}
    v_add_u32 v9, {KL-QX}, v10
    s_lshl_b32 s38, s{S_WAVE}, 9
    s_add_u32 s38, s38, {QX+16384-1024}
    v_add_u32 v11, s38, v{VE}
    s_mul_i32 s38, s{S_WAVE}, {16*VS}
    s_sub_u32 s38, s38, {1152-VL}
    v_add_u32 v12, s38, v{VV}
    ds_read_b128 {vr(K0B[0],4)}, v9
    ds_read_b32 v{K1B[0]}, v11 offset:2048""")
    for t in range(4):
        a(f"ds_read_b128 {vr(Q0+4*t,4)}, v10 offset:{1024*t}")
        a(f"ds_read_b32 v{Q1+4*t}, v11 offset:{128*t}")
    for b in K1B:
        a(f"v_mov_b32 v{b+1}, 0x3f803f80\n v_mov_b32 v{b+2}, 0x00003f80\n v_mov_b32 v{b+3}, 0")
    a(f"v_cmp_gt_u32 vcc, 32, v0\n s_mov_b32 s{S_PASS}, 1")
    for t in range(4):
        if t: a(f"ds_read_b128 {vr(K0B[t],4)}, v9 offset:{1024*t}\n ds_read_b32 v{K1B[t]}, v11 offset:{2048+128*t}")
    a("s_waitcnt lgkmcnt(6)")
    for t in range(4):
        a(f"ds_read_b128 {vr(VB[t],4)}, v12 offset:{4*VS*t}\n ds_read_b128 {vr(VB[t]+4,4)}, v12 offset:{4*VS*t+2*VS}")
    for t in range(4): a(f"v_cndmask_b32 v{Q1+4*t}, 0, v{Q1+4*t}, vcc\n v_mov_b32 v{Q1+4*t+3}, 0")
    tail_ids(a,71,66,False)
    a(f"""s_and_b32 s38, s36, 1
    s_lshl_b32 s38, s38, 6
    s_mul_i32 s67, s71, {32*1152}
    s_add_u32 s67, s67, s38
    s_add_u32 s67, s67, 1024
    s_and_b32 s38, s36, 2
    s_cmp_eq_u32 s38, s{S_WAVE}
    s_cselect_b32 s68, 0, {OOB}
    s_mul_i32 s64, s37, {4*KVT}
    s_add_u32 s64, s64, s{S_KVB}
    s_add_u32 s49, s{S_KVB}, {64*KVT}""")
    for x in x_voff(14,7): a(x)
    EX=[]
    EX+=x_loads(14,66,XR)+x_loads(14,67,XR+8)
    T.stamp("kv0")
    a(f".L{label}_maxpass:")
    for t in range(4):
        a(f"v_mov_b32 v{Q1+4*t+1}, 0\n v_mov_b32 v{Q1+4*t+2}, 0\n v_mov_b32 v{MX+t}, 0xff800000")
    a(f"s_mov_b32 s{S_IT}, s{S_PASS}")
    a(f".L{label}_maxloop:")
    for t in range(4):
        S=OA+16*t
        a(f"v_mfma_f32_32x32x16_bf16 {vr(S,16)}, {vr(K0B[0],4)}, {vr(Q0+4*t,4)}, 0")
    for t in range(4):
        S=OA+16*t
        a(f"v_mfma_f32_32x32x16_bf16 {vr(S,16)}, {vr(K1B[0],4)}, {vr(Q1+4*t,4)}, {vr(S,16)}")
    a("s_nop 3")
    for t in range(4):
        S=OA+16*t
        if t==3: a("s_nop 3")
        for i in range(8): a(f"v_max3_f32 v{MX+t}, v{S+2*i}, v{S+2*i+1}, v{MX+t}")
    a(f"""s_sub_u32 s{S_IT}, s{S_IT}, 1
    s_cmp_lg_u32 s{S_IT}, 0
    s_cbranch_scc1 .L{label}_maxnext
    s_cmp_lg_u32 s{S_PASS}, 1
    s_cbranch_scc1 .L{label}_reload
    .L{label}_fold:""")
    a("v_cmp_gt_u32 vcc, 32, v0")
    for t in range(4): a(f"v_mov_b32 v{10+t}, v{MX+t}")
    a("s_nop 0")
    for t in range(4): a(f"v_permlane32_swap_b32 v{10+t}, v{MX+t}")
    for i in range(8): a(f"v_mov_b32 v{PB[1]+i}, 0")
    for t in range(4):
        m=MX+t; x=10+t
        a(f"""v_max_f32 v{x}, v{x}, v{m}
        v_sub_f32 v{x}, 0, v{x}
        v_and_b32 v7, 0xffff0000, v{x}
        v_sub_f32 v{x}, v{x}, v7
        v_and_b32 v9, 0xffff0000, v{x}
        v_sub_f32 v{x}, v{x}, v9
        v_lshrrev_b32 v7, 16, v7
        v_or_b32 v7, v7, v9
        v_lshrrev_b32 v{x}, 16, v{x}
        v_cndmask_b32 v{Q1+4*t+1}, 0, v7, vcc
        v_cndmask_b32 v{Q1+4*t+2}, 0, v{x}, vcc""")
        if t==0:
            a(f"""s_nop 1
            v_mfma_f32_32x32x16_bf16 {vr(SB[0],16)}, {vr(K0B[0],4)}, {vr(Q0,4)}, 0
            v_mfma_f32_32x32x16_bf16 {vr(SB[0],16)}, {vr(K1B[0],4)}, {vr(Q1,4)}, {vr(SB[0],16)}""")
    for i in range(64): a(f"v_mov_b32 v{OA+i}, 0")
    NIT=64//KT
    a(f"""s_add_u32 s{S_KVO}, s64, {3*KVT}
    s_mov_b32 s{S_IT}, 0
    s_waitcnt lgkmcnt(0)
    s_cmp_lg_u32 s{S_PASS}, 1
    s_cbranch_scc1 .L{label}_loop""")
    def iteration(first):
        ex=list(EX); vm=[]
        for k in range(KT):
            for t in range(4):
                u=4*k+t; S=SB[u%2]; S2=SB[(u+1)%2]; P=PB[u%2]; Pp=PB[(u+1)%2]
                nk,nt=(k,t+1) if t<3 else (k+1,0)
                pk_,pt=(k,t-1) if t>0 else (k-1,3)
                M=[f"v_mfma_f32_32x32x16_bf16 {vr(S2,16)}, {vr(K0B[nk%4],4)}, {vr(Q0+4*nt,4)}, 0",
                   f"v_mfma_f32_32x32x16_bf16 {vr(S2,16)}, {vr(K1B[nk%4],4)}, {vr(Q1+4*nt,4)}, {vr(S2,16)}",
                   f"v_mfma_f32_32x32x16_bf16 {vr(OA+16*pt,16)}, {vr(VB[pk_%4],4)}, {vr(Pp,4)}, {vr(OA+16*pt,16)}",
                   f"v_mfma_f32_32x32x16_bf16 {vr(OA+16*pt,16)}, {vr(VB[pk_%4]+4,4)}, {vr(Pp+4,4)}, {vr(OA+16*pt,16)}"]
                sh=[[],[],[],[]]
                L=ld_tile((k+3)%4,S_KVO)
                if first and k==0:
                    if t==0: M=M[:2]+[None,None]; sh[0]=[f"buffer_load_dword v15, v1, {WSR}, s39 offen sc1"]
                else:
                    if t==0: sh[0]=[L[0]]; sh[2]=[L[1]]
                    if t==1: sh[0]=[L[2]]; sh[2]=[L[3]]
                if t==2:
                    sh[0]=[f"s_add_u32 s{S_KVO}, s{S_KVO}, {KVT}"]
                    if k==0: sh[1]=[f"s_cmp_eq_u32 s{S_KVO}, s49"]; sh[2]=[f"s_cselect_b32 s{S_KVO}, s{S_KVB}, s{S_KVO}"]
                    if not first: sh[3]=["s_waitcnt vmcnt(8)"]
                    elif k==3: sh[3]=["W"]
                if k==KT-1 and t==3:
                    sh[0]=[f"s_add_u32 s{S_IT}, s{S_IT}, 1"]
                    if not first: sh[3]=[f"s_cmp_lg_u32 s{S_IT}, {NIT}"]
                if first and k>=1:
                    for q in range(4):
                        while ex and len(sh[q])<EXN and not any("s_cmp" in y for y in sh[q]) and not (sh[q] and "m0" in sh[q][-1] and is_vmem(ex[0])): sh[q].append(ex.pop(0))
                c=lambda i: f"v_cvt_pk_bf16_f32 v{P+i}, v{S+2*i}, v{S+2*i+1}"
                if first and (k,t)==(1,0):
                    a(f"""s_cmp_lg_u32 s{S_WAVE}, 0
                    s_cbranch_scc1 2f
                    s_mov_b32 s31, 0x40000
                    1:
                    s_waitcnt vmcnt(0)
                    v_readfirstlane_b32 s38, v15
                    s_cmp_ge_u32 s38, 16
                    s_cbranch_scc1 2f
                    s_sleep 2
                    buffer_load_dword v15, v1, {WSR}, s39 offen sc1
                    s_sub_u32 s31, s31, 1
                    s_cbranch_scc0 1b
                    2:
                    s_barrier""")
                    T.stamp(); T.stamp("polled")
                for q in range(4):
                    if M[q]: a(M[q])
                    for x in sh[q]:
                        if x=="W": x=f"s_waitcnt vmcnt({len(vm)-1-vm.index('t4')})"
                        a(x)
                        if is_vmem(x): vm.append('t4' if (k==1 and x==L[3]) else '')
                    for j in range(4): a(f"v_exp_f32 v{S+4*q+j}, v{S+4*q+j}")
                    if q>0: a(c(2*q-2)); a(c(2*q-1))
                a(c(6)); a(c(7))
        assert not (first and ex), ex
    iteration(True)
    a(f".L{label}_loop:")
    iteration(False)
    a(f"s_cbranch_scc1 .L{label}_loop")
    lk=KT-1
    a(f"""s_nop 1
    v_mfma_f32_32x32x16_bf16 {vr(OA+48,16)}, {vr(VB[lk%4],4)}, {vr(PB[1],4)}, {vr(OA+48,16)}
    v_mfma_f32_32x32x16_bf16 {vr(OA+48,16)}, {vr(VB[lk%4]+4,4)}, {vr(PB[1]+4,4)}, {vr(OA+48,16)}
    s_branch .L{label}_chk
    .L{label}_maxnext:
    s_add_u32 s{S_KVO}, s{S_KVO}, {KVT}
    .L{label}_maxld:""")
    for x in ld_tile(0,S_KVO)[:2]: a(x)
    a(f"""s_waitcnt vmcnt(0)
    s_cmp_eq_u32 s{S_KVO}, s{S_KVB}
    s_cbranch_scc1 .L{label}_maxpass
    s_branch .L{label}_maxloop
    .L{label}_reload:""")
    for b in range(3):
        a(f"s_add_u32 s38, s64, {b*KVT}")
        for x in ld_tile(b,38): a(x)
    for i in range(8): a(f"v_mov_b32 v{VB[3]+i}, 0")
    a(f"""s_waitcnt vmcnt(0)
    s_branch .L{label}_fold
    .L{label}_chk:
    s_nop 7
    s_nop 3
    v_add_f32 v11, v{OA+10}, v{OA+26}
    v_add_f32 v12, v{OA+42}, v{OA+58}
    v_add_f32 v11, v11, v12
    v_mov_b32 v12, {hexf(2.0**60)}
    v_cmp_nlt_f32 vcc, v11, v12
    s_nop 3
    s_and_b32 s38, vcc_lo, vcc_lo
    s_cbranch_scc0 .L{label}_ok
    s_cmp_lg_u32 s{S_PASS}, 1
    s_cbranch_scc1 .L{label}_ok
    s_mov_b32 s{S_PASS}, 64
    s_mov_b32 s{S_KVO}, s{S_KVB}
    s_waitcnt vmcnt(0)
    s_branch .L{label}_maxld
    .L{label}_ok:
    """)
    T.stamp(); T.stamp("loop")
    if CPF3: a(f"""s_getpc_b64 s[32:33]
    v_lshlrev_b32 v10, 7, v0
    s_lshl_b32 s38, s{S_WAVE}, 13
    v_add_u32 v10, s38, v10
    v_min_u32 v10, .Lk2_end-.L{label}_ok-64, v10
    v_mov_b32 v11, s33
    v_add_co_u32 v10, vcc, s32, v10
    v_addc_co_u32 v11, vcc, 0, v11, vcc
    global_load_dword a255, v[10:11], off""")
    a(f"""
    s_mul_i32 s38, s37, {4*36864}
    s_lshl_b32 s39, s50, 10
    s_add_u32 s60, s38, s39
    s_add_u32 s60, s60, {WS_O}
    s_mul_i32 s61, s51, 36864
    s_lshl_b32 s39, s36, 9
    s_add_u32 s61, s61, s39
    s_add_u32 s61, s61, {WS_O+32*1024}
    s_lshl_b32 s39, s{S_WAVE}, 2
    s_add_u32 s39, s39, {QX}
    v_add_u32 v7, s39, v{VK}
    s_lshl_b32 s39, s{S_WAVE}, 10
    s_add_u32 s39, s39, {QX}
    v_add_u32 v9, s39, v{VK}
    v_cmp_lt_u32 vcc, 31, v0
    v_mov_b32 v6, {OOB}
    """)
    for t in range(4): a(f"v_mov_b32 v{10+t}, v{OA+16*t+10}")
    a(f"v_cndmask_b32 v5, v{VK}, v6, vcc")
    for t in range(4): a(f"v_permlane32_swap_b32 v{OA+16*t+10}, v{10+t}")
    a("s_nop 0")
    for t in range(4): a(f"v_rcp_f32 v{10+t}, v{OA+16*t+10}")
    for t in range(4):
        O=OA+16*t
        for i in range(10): a(f"v_mul_f32 v{O+i}, v{O+i}, v{10+t}")
        for i in range(5): a(f"v_cvt_pk_bf16_f32 v{O+i}, v{O+2*i}, v{O+2*i+1}")
        a(f"buffer_store_dwordx4 {vr(O,4)}, v{VK}, {WSR}, s60 offen sc1")
        a(f"ds_write_b32 v7, v{O+4} offset:{1024*t}")
        if t<3: a(f"s_add_u32 s60, s60, 36864")
    a(f"""s_waitcnt lgkmcnt(0)
    s_barrier
    ds_read_b128 v[10:13], v9
    s_waitcnt lgkmcnt(0)
    buffer_store_dwordx4 v[10:13], v5, {WSR}, s61 offen sc1""")
    fin_part(a,r,T)

def fin_part(a, r, T):
    WSR=f"s[{S_WS}:{S_WS+3}]"; VK=4
    a(f"s_lshl_b32 s39, s37, 8\n s_add_u32 s39, s39, {CNT_O}")
    a("s_waitcnt vmcnt(5)")
    for x in x_expand(2)+sel_setup(7)+tail_addr(71,2,0,QX): a(x)
    a(f"""s_lshl_b32 s44, s36, 7
    s_lshl_b32 s38, s{S_WAVE}, 6
    s_add_u32 s44, s44, s38
    s_sub_u32 s44, s44, 64
    s_and_b32 s38, s36, 1
    s_lshl_b32 s38, s38, 6
    s_add_u32 s38, s38, 1024
    s_cmp_eq_u32 s{S_WAVE}, 3
    s_cselect_b32 s44, s38, s44
    s_mul_i32 s45, s{S_WAVE}, {SLOT}
    s_sub_u32 s45, s45, {SLOT}""")
    publish(a,39)
    T.stamp("opub")
    a(f"s_cmp_eq_u32 s{S_WAVE}, 0\n s_cbranch_scc1 .Lfin_wo\n s_mov_b32 m0, s45\n s_mov_b32 s46, s44")
    for i in range(36):
        if i==32: a(f"s_mov_b32 s46, s44")
        a(f"buffer_load_dwordx4 v{V_DMA_B if i<32 else V_WO2}, s[{S_WO}:{S_WO+3}], s46 offen lds")
        a(f"s_add_u32 m0, m0, 1024\n s_add_u32 s46, s46, {18*1152 if i<32 else 8*18*1152}")
    a("s_waitcnt vmcnt(0)\n .Lfin_wo:")
    a(f"""s_mul_i32 s44, s71, {18*2048}
    s_and_b32 s38, s36, 1
    s_lshl_b32 s38, s38, 11
    s_add_u32 s44, s44, s38
    s_add_u32 s44, s44, {WS_PART+16*2048}""")
    poll(a,39,8,also=None if paths.NOP1 else CNT_P-CNT_O)
    T.stamp(); T.stamp("opoll")
    tail(a,T,True,S_OUT,66,OSC)
    T.store()
```

```python
from engine import *
WS_KV=0
KVT=2432; KVH=64*KVT; VS=320
S_DBG=96
WS_CNT=11<<20
CNT_KV=WS_CNT; CNT_O=WS_CNT+8*256; CNT_P=WS_CNT+24*256
OOB=0x7ff00000
WS_O=8<<20
WS_PART=12<<20
WS_TIME=200<<20
NSPLIT=8; FR=4608//NSPLIT; NC=FR//32
C1 = 2*math.sqrt(2/math.pi)*math.log2(math.e)
C12 = C1*0.044715
QSCALE = math.log2(math.e)/math.sqrt(18.0)
class Timer:
    def __init__(self,a,on,slot=0): self.a=a; self.on=on; self.n=0; self.slot=slot
    sel=None
    def stamp(self, name=None):
        if name is not None and (Timer.sel is None or name not in Timer.sel): return
        if name is None and Timer.sel is not None and self.n>0 and not getattr(self,"final",False): return
        if self.on:
            self.a(f"s_memrealtime s[{76+2*self.n}:{77+2*self.n}]" if self.n in (0,) and False else f"s_memtime s[{76+2*self.n}:{77+2*self.n}]"); self.n+=1
            assert self.n<=8
    def store(self, s_wg=2):
        if not self.on: return
        a=self.a
        a("s_waitcnt vmcnt(0)"); self.final=True; self.stamp()
        a("s_memrealtime s[92:93]")
        a("s_waitcnt lgkmcnt(0)")
        for i in range(1,self.n): a(f"s_sub_u32 s{76+2*i}, s{76+2*i}, s76")
        a(f"""s_lshl_b32 s38, s{s_wg}, 3
        s_add_u32 s38, s38, s{S_WAVE}
        s_lshl_b32 s38, s38, 6
        s_add_u32 s38, s38, {WS_TIME+self.slot*(1<<20)}
        v_mov_b32 v1, 0""")
        for i in range(8): a(f"v_mov_b32 v{16+i}, s{76+2*min(i,self.n-1)}")
        a("v_mov_b32 v16, s92")
        a("v_mov_b32 v24, s94\n v_mov_b32 v25, s2")
        a(f"buffer_store_dwordx4 v[16:19], v1, s[{S_WS}:{S_WS+3}], s38 offen")
        a(f"buffer_store_dwordx4 v[20:23], v1, s[{S_WS}:{S_WS+3}], s38 offen offset:16")
        a(f"buffer_store_dwordx2 v[24:25], v1, s[{S_WS}:{S_WS+3}], s38 offen offset:32")

def ytile(t): return (f"a[{16*t}:{16*t+15}]" if t<16 else f"v[{V_Y16+16*(t-16)}:{V_Y16+16*(t-16)+15}]")
def yreg(t,i): return (f"a{16*t+i}" if t<16 else f"v{V_Y16+16*(t-16)+i}")

def common_entry(a, s_idx):
    a(f"""
    s_load_dwordx2 s[10:11], s[0:1], 0
    s_load_dwordx4 s[12:15], s[0:1], 64
    v_lshrrev_b32 v1, 6, v0
    v_and_b32 v0, 63, v0
    v_readfirstlane_b32 s{S_WAVE}, v1
    s_and_b32 s36, s{s_idx}, 7
    s_lshr_b32 s37, s{s_idx}, 3
    s_lshl_b32 s38, s37, 2
    s_add_u32 s51, s38, s{S_WAVE}
    s_waitcnt lgkmcnt(0)
    """)
    srd(a,S_X,10,2048*1152); srd(a,S_WS,14,1<<28); srd(a,S_DBG,12,256)

def gu_phase(acc, xfirst=False):
    ops=[]
    for s in range(36):
        c = "0" if s==0 else vr(acc,16)
        if xfirst: ops.append((lambda af,s=s,c=c: f"v_mfma_f32_32x32x16_bf16 {vr(acc,16)}, {vr(V_X+4*s,4)}, {af}, {c}", (1024*s,1024*s+256)))
        else: ops.append((lambda af,s=s,c=c: f"v_mfma_f32_32x32x16_bf16 {vr(acc,16)}, {af}, {vr(V_X+4*s,4)}, {c}", (1024*s,1024*s+256)))
    return Phase(ops,V_RDA)
def d_phase(tile_major=False):
    ops=[]
    order=[(j,t) for t in range(18) for j in range(2)] if tile_major else [(j,t) for j in range(2) for t in range(18)]
    for j,t in order:
        o=t*2048+j*1024
        ops.append((lambda af,t=t,j=j: f"v_mfma_f32_32x32x16_bf16 {ytile(t)}, {af}, {vr(V_H+4*j,4)}, {ytile(t)}", (o,o+512)))
    return Phase(ops,V_RDB)
def gelu1():
    L=[]
    for q in range(0,16,4):
        e=list(range(q,q+4)); T=[V_T+i for i in range(4)]
        for i,x in enumerate(e): L.append(f"v_mul_f32 v{T[i]}, v{V_G+x}, v{V_G+x}")
        for i,x in enumerate(e): L.append(f"v_fmaak_f32 v{T[i]}, v{T[i]}, v{V_C12}, {hexf(-C1)}")
        for i,x in enumerate(e): L.append(f"v_mul_f32 v{T[i]}, v{T[i]}, v{V_G+x}")
        for i,x in enumerate(e): L.append(f"v_exp_f32 v{T[i]}, v{T[i]}")
        for i,x in enumerate(e): L.append(f"v_add_f32 v{T[i]}, 1.0, v{T[i]}")
        for i,x in enumerate(e): L.append(f"v_rcp_f32 v{T[i]}, v{T[i]}")
        for i,x in enumerate(e): L.append(f"v_mul_f32 v{V_G+x}, v{V_G+x}, v{T[i]}")
    return L
def gelu2(): return [f"v_mul_f32 v{V_U+x}, v{V_U+x}, v{V_G+x}" for x in range(16)]
def cvt_h(half): return [f"v_cvt_pk_bf16_f32 v{V_H+4*half+i}, v{V_U+8*half+2*i}, v{V_U+8*half+2*i+1}" for i in range(4)]

PF=True
PFF=True
LA=3
PFG=29
LEAD=4
def pf_calc(a, rowstride, colstride, nmax, base, vd):
    a(f"""s_mul_i32 s39, s38, 57
    s_lshr_b32 s39, s39, 9
    s_cmp_lt_u32 s38, {nmax}
    s_cselect_b32 s50, 0, {OOB}
    s_cselect_b32 s39, s39, 0
    s_cselect_b32 s38, s38, 0
    v_mov_b32 v{vd}, s50
    s_movk_i32 s50, {rowstride}
    v_mad_u32_u24 v{vd}, v0, s50, v{vd}
    s_mul_i32 s50, s39, 9
    s_sub_u32 s38, s38, s50
    s_mul_i32 s38, s38, {64*rowstride}
    s_mul_i32 s39, s39, {colstride}
    s_add_u32 s39, s39, s38""")
    if base: a(f"s_add_u32 s39, s39, {base}")
def init_load(): return [f"buffer_load_dword v14, off, s[{S_DBG}:{S_DBG+3}], 0"]
def publish(a, soff, chk=False, n=0):
    a(f"""s_waitcnt vmcnt({n})
    s_barrier
    s_cmp_lg_u32 s{S_WAVE}, 0
    s_cbranch_scc1 1f""")
    if chk:
        a(f"""s_mov_b32 s31, 0x40000
        3:
        v_readfirstlane_b32 s38, v14
        s_cmp_lg_u32 s38, 0
        s_cbranch_scc1 4f
        buffer_load_dword v14, off, s[{S_DBG}:{S_DBG+3}], 0 sc1
        {"v_mov_b32 v11, 0" if NOP1 else ""}
        s_waitcnt vmcnt(0)
        s_sub_u32 s31, s31, 1
        s_cbranch_scc0 3b
        4:""")
    a(f"""s_mov_b64 exec, 1
    v_mov_b32 v15, 1
    buffer_atomic_add v15, off, s[{S_WS}:{S_WS+3}], s{soff} sc1
    s_mov_b64 exec, -1
    1:""")
def poll(a, soff, n, sleep=2, also=None, pre=None, bar=True):
    a(f"""s_cmp_lg_u32 s{S_WAVE}, 0
    s_cbranch_scc1 2f
    s_mov_b32 s31, 0x40000""")
    if also: a(f"s_add_u32 s3, s{soff}, {also}")
    if pre: a(f"""v_min_u32 v15, v{pre[0]}, v{pre[1]}
    s_nop 0
    v_readfirstlane_b32 s38, v15
    s_cmp_ge_u32 s38, {n}
    s_cbranch_scc1 2f""")
    a(f"""1:
    buffer_load_dword v15, off, s[{S_WS}:{S_WS+3}], s{soff} sc1""")
    if also: a(f"buffer_load_dword v14, off, s[{S_WS}:{S_WS+3}], s3 sc1")
    a("s_waitcnt vmcnt(0)")
    if also: a("v_min_u32 v15, v15, v14\n s_nop 0")
    a(f"""v_readfirstlane_b32 s38, v15
    s_cmp_ge_u32 s38, {n}
    s_cbranch_scc1 2f
    s_sleep {sleep}
    s_sub_u32 s31, s31, 1
    s_cbranch_scc0 1b
    2:""")
    if bar: a("s_barrier")
XR=232; XF=80; SEL=176; VK=4
def tail_ids(a, s_tg, s_xo, ffn):
    L=[f"s_lshr_b32 s38, s36, 1", "s_and_b32 s38, s38, 2"]+(["s_xor_b32 s38, s38, 2"] if ffn else [])
    L+=[f"s_lshr_b32 s{s_tg}, s{S_WAVE}, 1", f"s_add_u32 s{s_tg}, s{s_tg}, s38", "s_lshl_b32 s38, s37, 2", f"s_add_u32 s{s_tg}, s{s_tg}, s38",
        f"s_and_b32 s38, s{S_WAVE}, 1", "s_lshl_b32 s38, s38, 6", f"s_mul_i32 s{s_xo}, s{s_tg}, {32*1152}", f"s_add_u32 s{s_xo}, s{s_xo}, s38",
        "s_lshl_b32 s38, s36, 7", f"s_add_u32 s{s_xo}, s{s_xo}, s38"]
    if a is None: return L
    for x in L: a(x)
def x_voff(d,t): return [f"v_and_b32 v{t}, 31, v0", f"v_mul_u32_u24 v{d}, 1152, v{t}", f"v_lshrrev_b32 v{t}, 5, v0", f"v_lshl_add_u32 v{d}, v{t}, 3, v{d}"]
def x_loads(v,so,d): return [f"buffer_load_dwordx2 v[{d+2*j}:{d+2*j+1}], v{v}, s[{S_X}:{S_X+3}], s{so} offen offset:{16*j}" for j in range(4)]
def x_expand(n): return sum([[f"v_lshlrev_b32 v{XF+2*i}, 16, v{XR+i}", f"v_and_b32 v{XF+2*i+1}, 0xffff0000, v{XR+i}"] for i in range(8*n)],[])
def sel_setup(t):
    L=[f"v_and_b32 v{t}, 31, v0", "v_lshrrev_b32 v12, 5, v0", f"v_mul_u32_u24 v248, 1152, v{t}", "v_lshl_add_u32 v248, v12, 4, v248",
       "v_lshlrev_b32 v12, 2, v12", f"v_sub_u32 v{t}, v{t}, v12", "v_mov_b32 v10, 0x3f80", "v_mov_b32 v11, 0x3f800000"]
    for j in range(2):
        for q in range(4):
            r0=16*j+8*(q>>1)+2*(q&1)
            L+=[f"v_cmp_eq_u32 vcc, {r0}, v{t}", f"v_cmp_eq_u32 s[32:33], {r0+1}, v{t}", "s_nop 1", "v_cndmask_b32 v12, 0, v10, vcc", f"v_cndmask_b32 v{SEL+4*j+q}, v12, v11, s[32:33]"]
    return L
def OREG(s): return vr(112+4*s if s<16 else 184+4*(s-16),4)
RB=(250,251,252); XW=253; XRD=254; VE_=255
def tail_addr(s_tg, rdb, slot0, xb):
    return [f"s_and_b32 s45, s{S_WAVE}, 1", f"s_mul_i32 s38, s45, {SLOT+18432}", f"s_add_u32 s38, s38, {slot0}", f"v_add_u32 v{RB[0]}, s38, v{rdb}",
        f"s_mul_i32 s38, s45, {SLOT-18432}", f"s_sub_u32 s38, {slot0+SLOT}, s38", f"v_add_u32 v{RB[1]}, s38, v{rdb}",
        f"s_mul_i32 s38, s45, 18432", f"s_add_u32 s46, s38, {2*SLOT}", f"v_add_u32 v{RB[2]}, s46, v{rdb}",
        f"s_mul_i32 s43, s{s_tg}, 36864", f"s_add_u32 s43, s43, s38", f"s_add_u32 s43, s43, {WS_O}",
        f"s_lshl_b32 s38, s{S_WAVE}, 13", f"s_add_u32 s38, s38, {xb}", f"v_add_u32 v{XW}, s38, v{VK}",
        f"s_lshl_b32 s38, s{S_WAVE}, 13", f"s_xor_b32 s38, s38, 8192", f"s_add_u32 s38, s38, {xb}", f"v_add_u32 v{XRD}, s38, v{VK}",
        f"s_mul_i32 s47, s{s_tg}, {18*2048}", f"s_lshl_b32 s38, s36, 12", f"s_add_u32 s47, s47, s38", f"s_lshl_b32 s38, s45, 11", f"s_add_u32 s47, s47, s38",
        f"s_add_u32 s47, s47, {WS_PART}", f"s_mov_b32 s42, s47",
        f"s_mul_i32 s38, s45, {OOB}", f"v_or_b32 v{VE_}, s38, v{VK}", f"s_mov_b32 s40, {hexf(-math.log2(math.e))}"]
def tail(a, T, att, s_out, s_xo, osc=""):
    WSR=f"s[{S_WS}:{S_WS+3}]"; lab="att" if att else "ffn"
    late=[] if att else sel_setup(13)+x_expand(1)
    AFR=[16,20,24,28,232,236,240,244] if att else [16,20,24,28,64,68,72,76]; SA=32; YA=128; TX=160; E=184; R=216; NU=3 if att else 2
    PB_=[72,136]
    def pload(u, so, v):
        for sp in range(8):
            for j in range(2):
                d=PB_[u]+8*sp+4*j
                a(f"buffer_load_dwordx4 a[{d}:{d+3}], v{v}, {WSR}, s{so} offen offset:{1024*j} sc1")
            if sp<7: a(f"s_add_u32 s{so}, s{so}, {64*18*2048}")
    oreg=lambda s: f"a[{4*s}:{4*s+3}]"
    for s in range(18):
        a(f"buffer_load_dwordx4 a[{4*s}:{4*s+3}], v{VK}, {WSR}, s43 offen offset:{1024*(s%4)} sc1")
        if s%4==3: a("s_add_u32 s43, s43, 4096")
    NE=0 if NOP1 else 16
    if NE: pload(0,42,VE_)
    sc=Sched(a); pend=[]; N=18*NU
    uo=[1,2,0] if att else [1,0]
    def rd(n):
        s,u=divmod(n,NU); b=AFR[n%8]; u=uo[u]
        sc.ds(f"ds_read_b64_tr_b16 {vr(b,2)}, v{RB[u]} offset:{1024*s}")
        pend.append(sc.ds(f"ds_read_b64_tr_b16 {vr(b+2,2)}, v{RB[u]} offset:{1024*s+512}"))
    for n in range(6): rd(n)
    for n in range(N):
        s,u=divmod(n,NU); u=uo[u]
        if n%(2*NU)==0: a(f"s_waitcnt vmcnt({NE+18-(s+2)})")
        sc.wait_ds(pend.pop(0))
        c="0" if s==0 else vr(SA+16*u,16)
        a(f"v_mfma_f32_32x32x16_bf16 {vr(SA+16*u,16)}, {vr(AFR[n%8],4)}, {oreg(s)}, {c}")
        if n+6<N: rd(n+6)
        if not att:
            for x in late[3*n:3*n+3]: a(x)
    T.stamp("sgemm")
    a(f"s_add_u32 s39, s39, {CNT_P+128-CNT_O}\n s_nop 7\n s_nop 1")
    for u in range(1,NU):
        for j in range(4): a(f"ds_write_b128 v{XW}, {vr(SA+16*u+4*j,4)} offset:{4096*(u-1)+1024*j}")
    poll(a,39,8,bar=False)
    a("s_waitcnt lgkmcnt(0)\n s_barrier")
    T.stamp(); T.stamp("ppoll")
    p=lambda b,i: f"v[{b+2*i}:{b+2*i+1}]"
    def xch(u): return [f"ds_read_b128 {vr(TX+4*j,4)}, v{XRD} offset:{4096*u+1024*j}" for j in range(4)]
    def ysum(u, later):
        L=[]
        for sp in range(8):
            if sp%2==0 and later is not None: L.append(f"s_waitcnt vmcnt({16-2*sp-4+later})")
            for j in range(2):
                d=PB_[u]+8*sp+4*j; c="0" if sp==0 and j==0 else vr(YA+16*u,16)
                L.append(f"v_mfma_f32_32x32x16_bf16 {vr(YA+16*u,16)}, {vr(SEL+4*j,4)}, a[{d}:{d+3}], {c}")
        S=SA+32*u
        return L+["s_waitcnt lgkmcnt(0)"]+[f"v_pk_add_f32 {p(S,i)}, {p(S,i)}, {p(TX,i)}" for i in range(8)]+["s_nop 3"]
    def comb(u):
        Y=YA+16*u; S=SA+32*u; X=XF+16*u; L=[]
        for i in range(8): L.append(f"v_pk_mul_f32 {p(E,i)}, {p(Y,i)}, s[40:41] op_sel_hi:[1,0]")
        for i in range(16): L.append(f"v_exp_f32 v{E+i}, v{E+i}")
        for i in range(8): L.append(f"v_pk_mul_f32 {p(Y,i)}, {p(Y,i)}, {p(S,i)}")
        for i in range(8): L.append(f"v_pk_add_f32 {p(E,i)}, {p(E,i)}, 1.0 op_sel_hi:[1,0]")
        for i in range(16): L.append(f"v_rcp_f32 v{E+i}, v{E+i}")
        L.append("s_nop 0")
        for i in range(8): L.append(f"v_pk_fma_f32 {p(Y,i)}, {p(Y,i)}, {p(E,i)}, {p(X,i)}")
        RR=R+8*u
        for i in range(8): L.append(f"v_cvt_pk_bf16_f32 v{RR+i}, v{Y+2*i}, v{Y+2*i+1}")
        L.append("s_nop 1")
        for jj in range(2):
            L.append(f"v_permlane32_swap_b32 v{RR+4*jj}, v{RR+4*jj+2}")
            L.append(f"v_permlane32_swap_b32 v{RR+4*jj+1}, v{RR+4*jj+3}")
        so=s_xo if u==0 else 67
        L.append(f"buffer_store_dwordx4 {vr(RR,4)}, v248, s[{s_out}:{s_out+3}], s{so} offen{osc}")
        L.append(f"buffer_store_dwordx4 {vr(RR+4,4)}, v248, s[{s_out}:{s_out+3}], s{so} offen offset:32{osc}")
        return L
    if NOP1:
        pload(0,47,VK)
        if att:
            a(f"s_cmp_lg_u32 s68, 0\n s_cbranch_scc1 .L{lab}_plain")
            pload(1,44,VK)
            for x in xch(0)+ysum(0,16)+xch(1)+comb(0)+ysum(1,2)+comb(1): a(x)
            a(f"s_branch .L{lab}_done\n .L{lab}_plain:")
        for x in xch(0)+ysum(0,0)+comb(0): a(x)
        a(f".L{lab}_done:")
        return
    a(f"s_bitcmp1_b32 s{S_WAVE}, 0\n s_cbranch_scc0 .L{lab}_even")
    pload(0,47,VK)
    for x in xch(0)+ysum(0,0)+comb(0): a(x)
    a(f"s_branch .L{lab}_done\n .L{lab}_even:")
    if att:
        a(f"s_cmp_lg_u32 s68, 0\n s_cbranch_scc1 .L{lab}_plain")
        pload(1,44,VK)
        for x in xch(0)+["s_waitcnt vmcnt(16)"]+ysum(0,None)+xch(1)+comb(0)+ysum(1,2)+comb(1): a(x)
        a(f"s_branch .L{lab}_done\n .L{lab}_plain:")
    for x in xch(0)+["s_waitcnt vmcnt(0)"]+ysum(0,None)+comb(0): a(x)
    a(f".L{lab}_done:")
def first_phase_apply(a):
    for x in ln_apply(0)+ln_apply(1): a(x)
    return {g: ln_apply(g+2) for g in range(34)}

TORD=[0,2,4,6,8,10,12,14,16,1,3,5,7,9,11,13,15,17]
N1=70
EXP=''
GPK=False
CPF2=False
NOP1=False
TSI=2
OSC=''
TLB=False
def ffn_path(a, s_idx, timing=False, label="ffn", tslot=1, **kw):
    r=Ring(a,static=True,**kw); T=Timer(a,timing,tslot)
    GA=(V_G,80); ST=(96,104)
    if timing: a("s_memrealtime s[94:95]")
    T.stamp()
    a(f"""
    s_load_dwordx4 s[4:7], s[0:1], 32
    s_load_dwordx2 s[8:9], s[0:1], 48
    """)
    common_entry(a,s_idx)
    a("s_load_dwordx2 s[34:35], s[0:1], 16\n s_load_dwordx2 s[64:65], s[0:1], 56")
    T.stamp("karg")
    WG,WU,WD=S_SRD0,S_SRD1,S_SRD2
    def setup(a):
        srd(a,WG,4,576*4608*2); srd(a,WU,6,576*4608*2); srd(a,WD,8,576*4608*2)
        a(f"""
        s_mul_i32 s38, s36, {FR*2}
        s_add_u32 s{WG}, s{WG}, s38
        s_addc_u32 s{WG+1}, s{WG+1}, 0
        s_sub_u32 s{WG+2}, s{WG+2}, s38
        s_add_u32 s{WU}, s{WU}, s38
        s_addc_u32 s{WU+1}, s{WU+1}, 0
        s_sub_u32 s{WU+2}, s{WU+2}, s38
        """)
        lane_consts(a,9216)
        a(f"v_mov_b32 v{V_C12}, {hexf(-C12)}\n s_mov_b32 s100, {hexf(-C12)}\n s_mov_b32 s101, {hexf(-C1)}")
        a(f"""
        s_mul_i32 s{S_DSLOT}, s{S_WAVE}, 9216
        s_mul_i32 s38, s{S_WAVE}, {9*16*9216}
        v_add_u32 v{V_DMA_A}, s38, v{V_DMA_A}
        s_mul_i32 s38, s{S_WAVE}, {9*16*1152}
        v_add_u32 v{V_DMA_B}, s38, v{V_DMA_B}
        s_mul_i32 s38, s36, {FR*1152}
        s_add_u32 s{WD}, s{WD}, s38
        s_addc_u32 s{WD+1}, s{WD+1}, 0
        s_sub_u32 s{WD+2}, s{WD+2}, s38
        s_mov_b32 s{S_SLOT}, 0
        s_mul_i32 s49, s36, {64*18*2048}
        s_mul_i32 s38, s51, {18*2048}
        s_add_u32 s49, s49, s38
        s_add_u32 s49, s49, {WS_PART}
        """)
        for i in range(1,9):
            a(f"s_mov_b32 s{S_TABG+i}, {i*16*9216-1024*(i%4)}")
            a(f"s_mov_b32 s{S_TABD+i}, {i*16*1152-1024*(i%4)}")
        ln_stats_setup(a)
    toks=ln_issue(a,r,51,capture(setup),LEAD)
    T.stamp("issued")
    def pf(m, off):
        if not PFF: return []
        return [f"buffer_load_dword v15, v{9 if m==2 else 7}, s[{(WG,WU,WD)[m]}:{(WG,WU,WD)[m]+3}], 0 offen offset:{off}"]
    a(f"""s_mul_i32 s38, s51, 9
    v_add_u32 v9, s38, v0
    s_movk_i32 s38, 9216
    v_mul_lo_u32 v7, v9, s38
    v_mul_u32_u24 v9, 1152, v9
    v_cmp_gt_u32 vcc, 9, v0
    v_mov_b32 v1, {OOB}
    s_nop 0
    v_cndmask_b32 v7, v1, v7, vcc
    v_cndmask_b32 v9, v1, v9, vcc
    v_lshlrev_b32 v1, 4, v0""")
    if CPF2: a("""v_lshlrev_b32 v96, 7, v0
    v_add_u32 v96, 8192, v96
    v_mov_b32 v97, s33
    v_add_co_u32 v96, vcc, s32, v96
    v_addc_co_u32 v97, vcc, 0, v97, vcc""")
    for k in range((LA+3)//2):
        for x in pf(0,128*k)+pf(1,128*k): r.emit(x)
    dm=[r.mk_dma_static((WG,WU)[p%2],V_DMA_A,S_TABG,64*(p%2)) for p in range(36)]
    dm+=[r.mk_dma_static(WD,V_DMA_B,S_TABD,(TORD[i+1]-TORD[i])*64 if i<17 else 0) for i in range(18)]
    for k in range(2):
        d=r.mk_dma_static(WG,2,S_TABG,0)
        d.loads=[(pre, x.replace("v2,","v7,") if i>=5 else x) for i,(pre,x) in enumerate(d.loads)]
        if k==0: d.adv=[["v_add_u32 v2, 64, v2","v_add_u32 v7, 64, v7"]]
        dm.append(d)
    def tail_setup():
        t=A(); srd(t,WG,34,576*1152); srd(t,WU,64,2048*1152); L=[x.strip() for x in t.l]+tail_ids(None,63,62,True)
        L+=["v_lshrrev_b32 v10, 2, v0", "v_mul_u32_u24 v2, 1152, v10", "v_and_b32 v11, 3, v0", f"s_mul_i32 s38, s{S_WAVE}, {9*20736}", "s_lshl_b32 s39, s36, 7",
            "v_lshl_add_u32 v11, v11, 4, s39", "v_add3_u32 v2, v2, v11, s38",
            "v_bfe_u32 v7, v0, 3, 1", "v_bfe_u32 v10, v0, 4, 1", "v_lshl_add_u32 v7, v10, 2, v7", "v_lshrrev_b32 v10, 5, v0", "v_lshl_add_u32 v7, v10, 1, v7",
            "v_mul_u32_u24 v10, 18, v7", "v_bfe_u32 v7, v0, 2, 1", "v_add3_u32 v10, v10, v7, 16", "v_mul_u32_u24 v10, 1152, v10", "v_add_u32 v10, v10, v11",
            "v_subrev_u32 v10, 3072, v10", f"s_cmp_eq_u32 s{S_WAVE}, 3\n s_cselect_b64 s[32:33], -1, 0", "v_mov_b32 v4, v1", "v_cndmask_b32 v7, v2, v10, s[32:33]"]
        for i in range(1,9):
            x=f"s_mov_b32 s{S_TABG+i}, {i*20736-1024*(i%4)}"
            if i>=5: x+=f"\n s_cmp_eq_u32 s{S_WAVE}, 3\n s_cmov_b32 s{S_TABG+i}, {(i-5)*8*20736+3072-1024*(i%4)}"
            L.append(x)
        return L+x_voff(13,12)
    def oload(s): return ([f"s_add_u32 s61, s61, 4096"] if s%4==0 and s else [])+[f"buffer_load_dwordx4 {OREG(s)}, v1, s[{S_WS}:{S_WS+3}], s61 offen offset:{1024*(s%4)} sc1"]
    ln_stats(a,r,toks,{1:dm[0], 3:dm[1]},T,LEAD)
    T.stamp(); T.stamp("stats")
    def gelu1(G):
        L=[]
        if GPK:
            for q in range(0,16,4):
                g=[f"v[{G+q+2*i}:{G+q+2*i+1}]" for i in range(2)]; t=[f"v[{V_T+2*i}:{V_T+2*i+1}]" for i in range(2)]
                for i in range(2): L.append(f"v_pk_mul_f32 {t[i]}, {g[i]}, {g[i]}")
                for i in range(2): L.append(f"v_pk_fma_f32 {t[i]}, {t[i]}, s[100:101], s[100:101] op_sel:[0,0,1] op_sel_hi:[1,0,1]")
                for i in range(2): L.append(f"v_pk_mul_f32 {t[i]}, {t[i]}, {g[i]}")
                for i in range(4): L.append(f"v_exp_f32 v{V_T+i}, v{V_T+i}")
                for i in range(2): L.append(f"v_pk_add_f32 {t[i]}, {t[i]}, 1.0 op_sel_hi:[1,0]")
                for i in range(4): L.append(f"v_rcp_f32 v{V_T+i}, v{V_T+i}")
                for i in range(2): L.append(f"v_pk_mul_f32 {g[i]}, {g[i]}, {t[i]}")
            return L
        for q in range(0,16,4):
            e=list(range(q,q+4)); T_=[V_T+i for i in range(4)]
            for i,x in enumerate(e): L.append(f"v_mul_f32 v{T_[i]}, v{G+x}, v{G+x}")
            for i,x in enumerate(e): L.append(f"v_fmaak_f32 v{T_[i]}, v{T_[i]}, v{V_C12}, {hexf(-C1)}")
            for i,x in enumerate(e): L.append(f"v_mul_f32 v{T_[i]}, v{T_[i]}, v{G+x}")
            for i,x in enumerate(e): L.append(f"v_exp_f32 v{T_[i]}, v{T_[i]}")
            for i,x in enumerate(e): L.append(f"v_add_f32 v{T_[i]}, 1.0, v{T_[i]}")
            for i,x in enumerate(e): L.append(f"v_rcp_f32 v{T_[i]}, v{T_[i]}")
            for i,x in enumerate(e): L.append(f"v_mul_f32 v{G+x}, v{G+x}, v{T_[i]}")
        return L
    def hfin(c):
        G=GA[c%2]
        L=gelu1(G)[N1:]+([f"v_pk_mul_f32 v[{V_U+x}:{V_U+x+1}], v[{V_U+x}:{V_U+x+1}], v[{G+x}:{G+x+1}]" for x in range(0,16,2)] if GPK else [f"v_mul_f32 v{V_U+x}, v{V_U+x}, v{G+x}" for x in range(16)])
        L+=[f"v_cvt_pk_bf16_f32 v{V_H+i}, v{V_U+2*i}, v{V_U+2*i+1}" for i in range(8)]
        L+=[f"v_accvgpr_write_b32 a{8*c+i}, v{V_H+i}" for i in range(8)]
        return L
    def dphase(i):
        acc=vr(GA[i%2],16)
        return Phase([(lambda af,s=s: f"v_mfma_f32_32x32x16_bf16 {acc}, {af}, a[{4*s}:{4*s+3}], {'0' if s==0 else acc}", (1024*s,1024*s+512)) for s in range(36)],V_RDB)
    def ycvt(i): return [f"v_cvt_pk_bf16_f32 v{ST[i%2]+k}, v{GA[i%2]+2*k}, v{GA[i%2]+2*k+1}" for k in range(8)]
    def yst(i):
        if EXP=="nost": return [f"s_add_u32 s38, s49, {TORD[i]*2048}"]
        if EXP=="plain": return [f"s_add_u32 s38, s49, {TORD[i]*2048}", f"buffer_store_dwordx4 {vr(ST[i%2],4)}, v1, s[{S_WS}:{S_WS+3}], s38 offen",
                f"buffer_store_dwordx4 {vr(ST[i%2]+4,4)}, v1, s[{S_WS}:{S_WS+3}], s38 offen offset:1024"]
        return [f"s_add_u32 s38, s49, {TORD[i]*2048}", f"buffer_store_dwordx4 {vr(ST[i%2],4)}, v1, s[{S_WS}:{S_WS+3}], s38 offen sc1",
                f"buffer_store_dwordx4 {vr(ST[i%2]+4,4)}, v1, s[{S_WS}:{S_WS+3}], s38 offen offset:1024 sc1"]
    P=[]
    for c in range(NC): P+=[gu_phase(GA[c%2]), gu_phase(V_U)]
    P+=[dphase(i) for i in range(18)]+[None]
    fx=first_phase_apply(a)
    for p in range(54):
        f=[]; fixed={}
        if p<36:
            c=p//2
            if p==0: fixed=fx
            elif p%2==0: f=[(hfin(c-1),1,36)]
            else: f=[(gelu1(GA[c%2])[:N1],3,36)]
            la=c+2+LA
            if la<NC and la%2==0: fixed[PFG]=fixed.get(PFG,[])+pf(p%2,64*la)
        else:
            i=p-36
            if i==0: f=[(hfin(NC-1),1,32)]
            else:
                f=[(ycvt(i-1),3,26)]
                if i-1!=9 or NOP1: fixed[27]=yst(i-1)
                if i==11 and not NOP1:
                    t=A(); t(f"s_lshl_b32 s39, s37, 8\n s_add_u32 s39, s39, {CNT_P}"); publish(t,39,True)
                    fixed[0]=[x.strip() for x in t.l]+yst(9)
                if i==8: fixed[28]=init_load()
                if i==TSI: f.append((tail_setup(),3,26))
        if CPF2 and p<36 and (p%4==1 or p==35):
            fixed[PFG+2]=["global_load_dword a255, v[96:97], off","v_add_co_u32 v96, vcc, 0x2000, v96","v_addc_co_u32 v97, vcc, 0, v97, vcc"]
        if TLB and p==31: fixed[PFG+3]=[f"buffer_load_dword a254, off, s[{S_WS}:{S_WS+3}], s49"]
        j=p-26
        if 0<=j<9: fixed[PFG+1]=pf(2,128*j)
        r.run(P[p],P[p+1],f,dm[p+2],first=(p==0),fixed=fixed)
        if p==0: T.stamp("g0")
        if p==1: T.stamp()
        if p==35: T.stamp(); T.stamp("gu")
    T.stamp()
    a("s_nop 7\n s_nop 3")
    for x in ycvt(17)+yst(17): a(x)
    T.stamp("epi")
    a(f"""s_cmp_eq_u32 s{S_WAVE}, 0
    s_cselect_b32 s38, 0, {OOB}
    v_mov_b32 v10, s38
    s_lshl_b32 s39, s37, 8
    s_add_u32 s3, s39, {CNT_O}
    s_add_u32 s39, s39, {CNT_P+128}
    buffer_load_dword v11, v10, s[{S_WS}:{S_WS+3}], s3 offen sc1
    s_add_u32 s3, s3, {0 if NOP1 else CNT_P-CNT_O}
    buffer_load_dword v12, v10, s[{S_WS}:{S_WS+3}], s3 offen sc1""")
    for x in tail_addr(63,V_RDB,2*SLOT,0): a(x)
    publish(a,39,NOP1,0)
    for x in x_loads(13,62,XR): a(x)
    T.stamp("fpub")
    a(f"s_sub_u32 s39, s39, {CNT_P+128-CNT_O}")
    poll(a,39,8,also=None if NOP1 else CNT_P-CNT_O,pre=(11,12))
    T.stamp("opoll")
    tail(a,T,False,WU,62,OSC)
    T.store()
    return r
```

```python
import sys
from att2 import *
import paths, att2, engine
timing = "-t" in sys.argv
out = sys.argv[1]
if "-s" in sys.argv: Timer.sel=sys.argv[sys.argv.index("-s")+1].split(",")
if "-nopf" in sys.argv: paths.PF=False; att2.PF=False
if "-fma" in sys.argv: engine.USE_PK=False
if "-exp" in sys.argv: paths.EXP=sys.argv[sys.argv.index("-exp")+1]
if "-gpk" in sys.argv: paths.GPK=True; paths.N1=48
if "-nopff" in sys.argv: paths.PFF=False
if "-la" in sys.argv: paths.LA=int(sys.argv[sys.argv.index("-la")+1])
NAME="recurrent_scan__mha_block__geglu_ffn__prompt_kernel"
hdr_src=open("recurrent_scan__mha_block__geglu_ffn__prompt.s.ref").read().split("\n")
hdr="\n".join(l for l in hdr_src if l.startswith(";") and "@launch" not in l and "Override" not in l and "grid=ceil" not in l)+"\n"
a=A(); a("""s_getpc_b64 s[32:33]
 s_cmp_ge_u32 s2, 256
 s_cbranch_scc1 .Lk2_end""")
CPF="-cpf" in sys.argv
if "-zl" in sys.argv: att2.ZL=True
if "-nop1" in sys.argv: paths.NOP1=True; paths.TORD=list(range(18))
if "-opi" in sys.argv: paths.OPI=int(sys.argv[sys.argv.index("-opi")+1])
if "-exn" in sys.argv: att2.EXN=int(sys.argv[sys.argv.index("-exn")+1])
if "-cpf3" in sys.argv: att2.CPF3=True
if "-osc" in sys.argv: att2.OSC=paths.OSC=" "+sys.argv[sys.argv.index("-osc")+1].replace("_"," ")
if "-cpf2" in sys.argv: paths.CPF2=True
if "-tlb" in sys.argv: paths.TLB=True; att2.TLB=True
if CPF:
    a(f"""s_lshr_b32 s3, s2, 3
 s_lshl_b32 s3, s3, 15
 s_cmp_ge_u32 s3, .Lk2_end-{NAME}
 s_cbranch_scc1 .Lk2_nopf
 v_lshlrev_b32 v1, 7, v0
 v_add_u32 v1, s3, v1
 v_min_u32 v1, .Lk2_end-{NAME}-8, v1
 v_mov_b32 v3, s33
 v_add_co_u32 v2, vcc, s32, v1
 v_addc_co_u32 v3, vcc, 0, v3, vcc
 global_load_dword a255, v[2:3], off
 .Lk2_nopf:""")
a("s_and_b32 s3, s2, 8")
NMG=int(sys.argv[sys.argv.index("-nmg")+1]) if "-nmg" in sys.argv else 1
NMGA=int(sys.argv[sys.argv.index("-nmga")+1]) if "-nmga" in sys.argv else NMG
att2.NMG=NMGA
def wgmap(NMG):
  LG=NMG.bit_length()-1
  a(f"""s_lshr_b32 s65, s2, 4
 s_and_b32 s38, s2, 7
 s_and_b32 s39, s65, {NMG-1}
 s_lshr_b32 s65, s65, {LG}
 s_and_b32 s36, s38, {NMG-1}
 s_lshl_b32 s36, s36, {4-LG}
 s_add_u32 s65, s65, s36
 s_lshl_b32 s65, s65, 3
 s_andn2_b32 s38, s38, {NMG-1}
 s_add_u32 s65, s65, s38
 s_add_u32 s65, s65, s39""")
a("s_cmp_lg_u32 s3, 0\n s_cbranch_scc1 .Lk2_att")
wgmap(NMG)
kw=eval(sys.argv[sys.argv.index('-kw')+1]) if '-kw' in sys.argv else {}
r=ffn_path(a,65,timing,tslot=0,**kw); print("ffn slots",r.maxused)
a("s_endpgm\n.Lk2_att:")
wgmap(NMGA)
T=Timer(a,timing,0)
r,qfin=qkv_path(a,65,T); print("qkv slots",r.maxused)
attn_path(a,r,T,qfin)
a(".Lk2_end:")
k2=kernel_text(NAME,a.text(),512,256)
hdr+=f"; @launch kernel={NAME} grid=(256,1,1) block=(256,1,1) lds=163840\n" if "-list" in sys.argv else "; @launch grid=(256,1,1) block=(256,1,1) lds=163840\n"
open(out,"w").write(hdr+'.amdgcn_target "amdgcn-amd-amdhsa--gfx950"\n.text\n'+k2)
```

```python
from engine import *
WS_KV=0
KVT=2432; KVH=64*KVT; VS=320
S_DBG=96
WS_CNT=11<<20
CNT_KV=WS_CNT; CNT_O=WS_CNT+8*256; CNT_P=WS_CNT+24*256
OOB=0x7ff00000
WS_O=8<<20
WS_PART=12<<20
WS_TIME=200<<20
NSPLIT=8; FR=4608//NSPLIT; NC=FR//32
C1 = 2*math.sqrt(2/math.pi)*math.log2(math.e)
C12 = C1*0.044715
QSCALE = math.log2(math.e)/math.sqrt(18.0)
class Timer:
    def __init__(self,a,on,slot=0): self.a=a; self.on=on; self.n=0; self.slot=slot
    sel=None
    def stamp(self, name=None):
        if name is not None and (Timer.sel is None or name not in Timer.sel): return
        if name is None and Timer.sel is not None and self.n>0 and not getattr(self,"final",False): return
        if self.on:
            self.a(f"s_memrealtime s[{76+2*self.n}:{77+2*self.n}]" if self.n in (0,) and False else f"s_memtime s[{76+2*self.n}:{77+2*self.n}]"); self.n+=1
            assert self.n<=8
    def store(self, s_wg=2):
        if not self.on: return
        a=self.a
        a("s_waitcnt vmcnt(0)"); self.final=True; self.stamp()
        a("s_memrealtime s[92:93]")
        a("s_waitcnt lgkmcnt(0)")
        for i in range(1,self.n): a(f"s_sub_u32 s{76+2*i}, s{76+2*i}, s76")
        a(f"""s_lshl_b32 s38, s{s_wg}, 3
        s_add_u32 s38, s38, s{S_WAVE}
        s_lshl_b32 s38, s38, 6
        s_add_u32 s38, s38, {WS_TIME+self.slot*(1<<20)}
        v_mov_b32 v1, 0""")
        for i in range(8): a(f"v_mov_b32 v{16+i}, s{76+2*min(i,self.n-1)}")
        a("v_mov_b32 v16, s92")
        a("v_mov_b32 v24, s94\n v_mov_b32 v25, s2")
        a(f"buffer_store_dwordx4 v[16:19], v1, s[{S_WS}:{S_WS+3}], s38 offen")
        a(f"buffer_store_dwordx4 v[20:23], v1, s[{S_WS}:{S_WS+3}], s38 offen offset:16")
        a(f"buffer_store_dwordx2 v[24:25], v1, s[{S_WS}:{S_WS+3}], s38 offen offset:32")

def ytile(t): return (f"a[{16*t}:{16*t+15}]" if t<16 else f"v[{V_Y16+16*(t-16)}:{V_Y16+16*(t-16)+15}]")
def yreg(t,i): return (f"a{16*t+i}" if t<16 else f"v{V_Y16+16*(t-16)+i}")

def common_entry(a, s_idx):
    a(f"""
    s_load_dwordx2 s[10:11], s[0:1], 0
    s_load_dwordx4 s[12:15], s[0:1], 64
    v_lshrrev_b32 v1, 6, v0
    v_and_b32 v0, 63, v0
    v_readfirstlane_b32 s{S_WAVE}, v1
    s_and_b32 s36, s{s_idx}, 7
    s_lshr_b32 s37, s{s_idx}, 3
    s_lshl_b32 s38, s37, 2
    s_add_u32 s51, s38, s{S_WAVE}
    s_waitcnt lgkmcnt(0)
    """)
    srd(a,S_X,10,2048*1152); srd(a,S_WS,14,1<<28); srd(a,S_DBG,12,256)

def gu_phase(acc, xfirst=False):
    ops=[]
    for s in range(36):
        c = "0" if s==0 else vr(acc,16)
        if xfirst: ops.append((lambda af,s=s,c=c: f"v_mfma_f32_32x32x16_bf16 {vr(acc,16)}, {vr(V_X+4*s,4)}, {af}, {c}", (1024*s,1024*s+256)))
        else: ops.append((lambda af,s=s,c=c: f"v_mfma_f32_32x32x16_bf16 {vr(acc,16)}, {af}, {vr(V_X+4*s,4)}, {c}", (1024*s,1024*s+256)))
    return Phase(ops,V_RDA)
def d_phase(tile_major=False):
    ops=[]
    order=[(j,t) for t in range(18) for j in range(2)] if tile_major else [(j,t) for j in range(2) for t in range(18)]
    for j,t in order:
        o=t*2048+j*1024
        ops.append((lambda af,t=t,j=j: f"v_mfma_f32_32x32x16_bf16 {ytile(t)}, {af}, {vr(V_H+4*j,4)}, {ytile(t)}", (o,o+512)))
    return Phase(ops,V_RDB)
def gelu1():
    L=[]
    for q in range(0,16,4):
        e=list(range(q,q+4)); T=[V_T+i for i in range(4)]
        for i,x in enumerate(e): L.append(f"v_mul_f32 v{T[i]}, v{V_G+x}, v{V_G+x}")
        for i,x in enumerate(e): L.append(f"v_fmaak_f32 v{T[i]}, v{T[i]}, v{V_C12}, {hexf(-C1)}")
        for i,x in enumerate(e): L.append(f"v_mul_f32 v{T[i]}, v{T[i]}, v{V_G+x}")
        for i,x in enumerate(e): L.append(f"v_exp_f32 v{T[i]}, v{T[i]}")
        for i,x in enumerate(e): L.append(f"v_add_f32 v{T[i]}, 1.0, v{T[i]}")
        for i,x in enumerate(e): L.append(f"v_rcp_f32 v{T[i]}, v{T[i]}")
        for i,x in enumerate(e): L.append(f"v_mul_f32 v{V_G+x}, v{V_G+x}, v{T[i]}")
    return L
def gelu2(): return [f"v_mul_f32 v{V_U+x}, v{V_U+x}, v{V_G+x}" for x in range(16)]
def cvt_h(half): return [f"v_cvt_pk_bf16_f32 v{V_H+4*half+i}, v{V_U+8*half+2*i}, v{V_U+8*half+2*i+1}" for i in range(4)]

PF=True
PFF=True
LA=3
PFG=29
LEAD=4
def pf_calc(a, rowstride, colstride, nmax, base, vd):
    a(f"""s_mul_i32 s39, s38, 57
    s_lshr_b32 s39, s39, 9
    s_cmp_lt_u32 s38, {nmax}
    s_cselect_b32 s50, 0, {OOB}
    s_cselect_b32 s39, s39, 0
    s_cselect_b32 s38, s38, 0
    v_mov_b32 v{vd}, s50
    s_movk_i32 s50, {rowstride}
    v_mad_u32_u24 v{vd}, v0, s50, v{vd}
    s_mul_i32 s50, s39, 9
    s_sub_u32 s38, s38, s50
    s_mul_i32 s38, s38, {64*rowstride}
    s_mul_i32 s39, s39, {colstride}
    s_add_u32 s39, s39, s38""")
    if base: a(f"s_add_u32 s39, s39, {base}")
def init_load(): return [f"buffer_load_dword v14, off, s[{S_DBG}:{S_DBG+3}], 0"]
def publish(a, soff, chk=False, n=0):
    a(f"""s_waitcnt vmcnt({n})
    s_barrier
    s_cmp_lg_u32 s{S_WAVE}, 0
    s_cbranch_scc1 1f""")
    if chk:
        a(f"""s_mov_b32 s31, 0x40000
        3:
        v_readfirstlane_b32 s38, v14
        s_cmp_lg_u32 s38, 0
        s_cbranch_scc1 4f
        buffer_load_dword v14, off, s[{S_DBG}:{S_DBG+3}], 0 sc1
        {"v_mov_b32 v11, 0" if NOP1 else ""}
        s_waitcnt vmcnt(0)
        s_sub_u32 s31, s31, 1
        s_cbranch_scc0 3b
        4:""")
    a(f"""s_mov_b64 exec, 1
    v_mov_b32 v15, 1
    buffer_atomic_add v15, off, s[{S_WS}:{S_WS+3}], s{soff} sc1
    s_mov_b64 exec, -1
    1:""")
def poll(a, soff, n, sleep=2, also=None, pre=None, bar=True):
    a(f"""s_cmp_lg_u32 s{S_WAVE}, 0
    s_cbranch_scc1 2f
    s_mov_b32 s31, 0x40000""")
    if also: a(f"s_add_u32 s3, s{soff}, {also}")
    if pre: a(f"""v_min_u32 v15, v{pre[0]}, v{pre[1]}
    s_nop 0
    v_readfirstlane_b32 s38, v15
    s_cmp_ge_u32 s38, {n}
    s_cbranch_scc1 2f""")
    a(f"""1:
    buffer_load_dword v15, off, s[{S_WS}:{S_WS+3}], s{soff} sc1""")
    if also: a(f"buffer_load_dword v14, off, s[{S_WS}:{S_WS+3}], s3 sc1")
    a("s_waitcnt vmcnt(0)")
    if also: a("v_min_u32 v15, v15, v14\n s_nop 0")
    a(f"""v_readfirstlane_b32 s38, v15
    s_cmp_ge_u32 s38, {n}
    s_cbranch_scc1 2f
    s_sleep {sleep}
    s_sub_u32 s31, s31, 1
    s_cbranch_scc0 1b
    2:""")
    if bar: a("s_barrier")
XR=232; XF=80; SEL=176; VK=4
def tail_ids(a, s_tg, s_xo, ffn):
    L=[f"s_lshr_b32 s38, s36, 1", "s_and_b32 s38, s38, 2"]+(["s_xor_b32 s38, s38, 2"] if ffn else [])
    L+=[f"s_lshr_b32 s{s_tg}, s{S_WAVE}, 1", f"s_add_u32 s{s_tg}, s{s_tg}, s38", "s_lshl_b32 s38, s37, 2", f"s_add_u32 s{s_tg}, s{s_tg}, s38",
        f"s_and_b32 s38, s{S_WAVE}, 1", "s_lshl_b32 s38, s38, 6", f"s_mul_i32 s{s_xo}, s{s_tg}, {32*1152}", f"s_add_u32 s{s_xo}, s{s_xo}, s38",
        "s_lshl_b32 s38, s36, 7", f"s_add_u32 s{s_xo}, s{s_xo}, s38"]
    if a is None: return L
    for x in L: a(x)
def x_voff(d,t): return [f"v_and_b32 v{t}, 31, v0", f"v_mul_u32_u24 v{d}, 1152, v{t}", f"v_lshrrev_b32 v{t}, 5, v0", f"v_lshl_add_u32 v{d}, v{t}, 3, v{d}"]
def x_loads(v,so,d): return [f"buffer_load_dwordx2 v[{d+2*j}:{d+2*j+1}], v{v}, s[{S_X}:{S_X+3}], s{so} offen offset:{16*j}" for j in range(4)]
def x_expand(n): return sum([[f"v_lshlrev_b32 v{XF+2*i}, 16, v{XR+i}", f"v_and_b32 v{XF+2*i+1}, 0xffff0000, v{XR+i}"] for i in range(8*n)],[])
def sel_setup(t):
    L=[f"v_and_b32 v{t}, 31, v0", "v_lshrrev_b32 v12, 5, v0", f"v_mul_u32_u24 v248, 1152, v{t}", "v_lshl_add_u32 v248, v12, 4, v248",
       "v_lshlrev_b32 v12, 2, v12", f"v_sub_u32 v{t}, v{t}, v12", "v_mov_b32 v10, 0x3f80", "v_mov_b32 v11, 0x3f800000"]
    for j in range(2):
        for q in range(4):
            r0=16*j+8*(q>>1)+2*(q&1)
            L+=[f"v_cmp_eq_u32 vcc, {r0}, v{t}", f"v_cmp_eq_u32 s[32:33], {r0+1}, v{t}", "s_nop 1", "v_cndmask_b32 v12, 0, v10, vcc", f"v_cndmask_b32 v{SEL+4*j+q}, v12, v11, s[32:33]"]
    return L
def OREG(s): return vr(112+4*s if s<16 else 184+4*(s-16),4)
RB=(250,251,252); XW=253; XRD=254; VE_=255
def tail_addr(s_tg, rdb, slot0, xb):
    return [f"s_and_b32 s45, s{S_WAVE}, 1", f"s_mul_i32 s38, s45, {SLOT+18432}", f"s_add_u32 s38, s38, {slot0}", f"v_add_u32 v{RB[0]}, s38, v{rdb}",
        f"s_mul_i32 s38, s45, {SLOT-18432}", f"s_sub_u32 s38, {slot0+SLOT}, s38", f"v_add_u32 v{RB[1]}, s38, v{rdb}",
        f"s_mul_i32 s38, s45, 18432", f"s_add_u32 s46, s38, {2*SLOT}", f"v_add_u32 v{RB[2]}, s46, v{rdb}",
        f"s_mul_i32 s43, s{s_tg}, 36864", f"s_add_u32 s43, s43, s38", f"s_add_u32 s43, s43, {WS_O}",
        f"s_lshl_b32 s38, s{S_WAVE}, 13", f"s_add_u32 s38, s38, {xb}", f"v_add_u32 v{XW}, s38, v{VK}",
        f"s_lshl_b32 s38, s{S_WAVE}, 13", f"s_xor_b32 s38, s38, 8192", f"s_add_u32 s38, s38, {xb}", f"v_add_u32 v{XRD}, s38, v{VK}",
        f"s_mul_i32 s47, s{s_tg}, {18*2048}", f"s_lshl_b32 s38, s36, 12", f"s_add_u32 s47, s47, s38", f"s_lshl_b32 s38, s45, 11", f"s_add_u32 s47, s47, s38",
        f"s_add_u32 s47, s47, {WS_PART}", f"s_mov_b32 s42, s47",
        f"s_mul_i32 s38, s45, {OOB}", f"v_or_b32 v{VE_}, s38, v{VK}", f"s_mov_b32 s40, {hexf(-math.log2(math.e))}"]
def tail(a, T, att, s_out, s_xo, osc=""):
    WSR=f"s[{S_WS}:{S_WS+3}]"; lab="att" if att else "ffn"
    late=[] if att else sel_setup(13)+x_expand(1)
    AFR=[16,20,24,28,232,236,240,244] if att else [16,20,24,28,64,68,72,76]; SA=32; YA=128; TX=160; E=184; R=216; NU=3 if att else 2
    PB_=[72,136]
    def pload(u, so, v):
        for sp in range(8):
            for j in range(2):
                d=PB_[u]+8*sp+4*j
                a(f"buffer_load_dwordx4 a[{d}:{d+3}], v{v}, {WSR}, s{so} offen offset:{1024*j} sc1")
            if sp<7: a(f"s_add_u32 s{so}, s{so}, {64*18*2048}")
    oreg=lambda s: f"a[{4*s}:{4*s+3}]" if att or not OPI else OREG(s)
    for s in range(18 if att or not OPI else 0):
        a(f"buffer_load_dwordx4 a[{4*s}:{4*s+3}], v{VK}, {WSR}, s43 offen offset:{1024*(s%4)} sc1")
        if s%4==3: a("s_add_u32 s43, s43, 4096")
    NE=0 if NOP1 else 16
    if NE: pload(0,42,VE_)
    sc=Sched(a); pend=[]; N=18*NU
    uo=[1,2,0] if att else [1,0]
    def rd(n):
        s,u=divmod(n,NU); b=AFR[n%8]; u=uo[u]
        sc.ds(f"ds_read_b64_tr_b16 {vr(b,2)}, v{RB[u]} offset:{1024*s}")
        pend.append(sc.ds(f"ds_read_b64_tr_b16 {vr(b+2,2)}, v{RB[u]} offset:{1024*s+512}"))
    for n in range(6): rd(n)
    for n in range(N):
        s,u=divmod(n,NU); u=uo[u]
        if n%(2*NU)==0 and (att or not OPI): a(f"s_waitcnt vmcnt({NE+18-(s+2)})")
        if n==16 and not att and OPI: a(f"s_waitcnt vmcnt({NE})")
        sc.wait_ds(pend.pop(0))
        c="0" if s==0 else vr(SA+16*u,16)
        a(f"v_mfma_f32_32x32x16_bf16 {vr(SA+16*u,16)}, {vr(AFR[n%8],4)}, {oreg(s)}, {c}")
        if n+6<N: rd(n+6)
        if not att:
            for x in late[3*n:3*n+3]: a(x)
    T.stamp("sgemm")
    a(f"s_add_u32 s39, s39, {CNT_P+128-CNT_O}\n s_nop 7\n s_nop 1")
    for u in range(1,NU):
        for j in range(4): a(f"ds_write_b128 v{XW}, {vr(SA+16*u+4*j,4)} offset:{4096*(u-1)+1024*j}")
    poll(a,39,8,bar=False)
    a("s_waitcnt lgkmcnt(0)\n s_barrier")
    T.stamp(); T.stamp("ppoll")
    p=lambda b,i: f"v[{b+2*i}:{b+2*i+1}]"
    def xch(u): return [f"ds_read_b128 {vr(TX+4*j,4)}, v{XRD} offset:{4096*u+1024*j}" for j in range(4)]
    def ysum(u, later):
        L=[]
        for sp in range(8):
            if sp%2==0 and later is not None: L.append(f"s_waitcnt vmcnt({16-2*sp-4+later})")
            for j in range(2):
                d=PB_[u]+8*sp+4*j; c="0" if sp==0 and j==0 else vr(YA+16*u,16)
                L.append(f"v_mfma_f32_32x32x16_bf16 {vr(YA+16*u,16)}, {vr(SEL+4*j,4)}, a[{d}:{d+3}], {c}")
        S=SA+32*u
        return L+["s_waitcnt lgkmcnt(0)"]+[f"v_pk_add_f32 {p(S,i)}, {p(S,i)}, {p(TX,i)}" for i in range(8)]+["s_nop 3"]
    def comb(u):
        Y=YA+16*u; S=SA+32*u; X=XF+16*u; L=[]
        for i in range(8): L.append(f"v_pk_mul_f32 {p(E,i)}, {p(Y,i)}, s[40:41] op_sel_hi:[1,0]")
        for i in range(16): L.append(f"v_exp_f32 v{E+i}, v{E+i}")
        for i in range(8): L.append(f"v_pk_mul_f32 {p(Y,i)}, {p(Y,i)}, {p(S,i)}")
        for i in range(8): L.append(f"v_pk_add_f32 {p(E,i)}, {p(E,i)}, 1.0 op_sel_hi:[1,0]")
        for i in range(16): L.append(f"v_rcp_f32 v{E+i}, v{E+i}")
        L.append("s_nop 0")
        for i in range(8): L.append(f"v_pk_fma_f32 {p(Y,i)}, {p(Y,i)}, {p(E,i)}, {p(X,i)}")
        RR=R+8*u
        for i in range(8): L.append(f"v_cvt_pk_bf16_f32 v{RR+i}, v{Y+2*i}, v{Y+2*i+1}")
        L.append("s_nop 1")
        for jj in range(2):
            L.append(f"v_permlane32_swap_b32 v{RR+4*jj}, v{RR+4*jj+2}")
            L.append(f"v_permlane32_swap_b32 v{RR+4*jj+1}, v{RR+4*jj+3}")
        so=s_xo if u==0 else 67
        L.append(f"buffer_store_dwordx4 {vr(RR,4)}, v248, s[{s_out}:{s_out+3}], s{so} offen{osc}")
        L.append(f"buffer_store_dwordx4 {vr(RR+4,4)}, v248, s[{s_out}:{s_out+3}], s{so} offen offset:32{osc}")
        return L
    if NOP1:
        pload(0,47,VK)
        if att:
            a(f"s_cmp_lg_u32 s68, 0\n s_cbranch_scc1 .L{lab}_plain")
            pload(1,44,VK)
            for x in xch(0)+ysum(0,16)+xch(1)+comb(0)+ysum(1,2)+comb(1): a(x)
            a(f"s_branch .L{lab}_done\n .L{lab}_plain:")
        for x in xch(0)+ysum(0,0)+comb(0): a(x)
        a(f".L{lab}_done:")
        return
    a(f"s_bitcmp1_b32 s{S_WAVE}, 0\n s_cbranch_scc0 .L{lab}_even")
    pload(0,47,VK)
    for x in xch(0)+ysum(0,0)+comb(0): a(x)
    a(f"s_branch .L{lab}_done\n .L{lab}_even:")
    if att:
        a(f"s_cmp_lg_u32 s68, 0\n s_cbranch_scc1 .L{lab}_plain")
        pload(1,44,VK)
        for x in xch(0)+["s_waitcnt vmcnt(16)"]+ysum(0,None)+xch(1)+comb(0)+ysum(1,2)+comb(1): a(x)
        a(f"s_branch .L{lab}_done\n .L{lab}_plain:")
    for x in xch(0)+["s_waitcnt vmcnt(0)"]+ysum(0,None)+comb(0): a(x)
    a(f".L{lab}_done:")
def first_phase_apply(a):
    for x in ln_apply(0)+ln_apply(1): a(x)
    return {g: ln_apply(g+2) for g in range(34)}

TORD=[0,2,4,6,8,10,12,14,16,1,3,5,7,9,11,13,15,17]
N1=70
EXP=''
GPK=False
CPF2=False
NOP1=False
TSI=2
OPI=0
OSC=''
TLB=False
def ffn_path(a, s_idx, timing=False, label="ffn", tslot=1, **kw):
    r=Ring(a,static=True,**kw); T=Timer(a,timing,tslot)
    GA=(V_G,80); ST=(96,104)
    if timing: a("s_memrealtime s[94:95]")
    T.stamp()
    a(f"""
    s_load_dwordx4 s[4:7], s[0:1], 32
    s_load_dwordx2 s[8:9], s[0:1], 48
    """)
    common_entry(a,s_idx)
    a("s_load_dwordx2 s[34:35], s[0:1], 16\n s_load_dwordx2 s[64:65], s[0:1], 56")
    T.stamp("karg")
    WG,WU,WD=S_SRD0,S_SRD1,S_SRD2
    def setup(a):
        srd(a,WG,4,576*4608*2); srd(a,WU,6,576*4608*2); srd(a,WD,8,576*4608*2)
        a(f"""
        s_mul_i32 s38, s36, {FR*2}
        s_add_u32 s{WG}, s{WG}, s38
        s_addc_u32 s{WG+1}, s{WG+1}, 0
        s_sub_u32 s{WG+2}, s{WG+2}, s38
        s_add_u32 s{WU}, s{WU}, s38
        s_addc_u32 s{WU+1}, s{WU+1}, 0
        s_sub_u32 s{WU+2}, s{WU+2}, s38
        """)
        lane_consts(a,9216)
        a(f"v_mov_b32 v{V_C12}, {hexf(-C12)}\n s_mov_b32 s100, {hexf(-C12)}\n s_mov_b32 s101, {hexf(-C1)}")
        a(f"""
        s_mul_i32 s{S_DSLOT}, s{S_WAVE}, 9216
        s_mul_i32 s38, s{S_WAVE}, {9*16*9216}
        v_add_u32 v{V_DMA_A}, s38, v{V_DMA_A}
        s_mul_i32 s38, s{S_WAVE}, {9*16*1152}
        v_add_u32 v{V_DMA_B}, s38, v{V_DMA_B}
        s_mul_i32 s38, s36, {FR*1152}
        s_add_u32 s{WD}, s{WD}, s38
        s_addc_u32 s{WD+1}, s{WD+1}, 0
        s_sub_u32 s{WD+2}, s{WD+2}, s38
        s_mov_b32 s{S_SLOT}, 0
        s_mul_i32 s49, s36, {64*18*2048}
        s_mul_i32 s38, s51, {18*2048}
        s_add_u32 s49, s49, s38
        s_add_u32 s49, s49, {WS_PART}
        """)
        for i in range(1,9):
            a(f"s_mov_b32 s{S_TABG+i}, {i*16*9216-1024*(i%4)}")
            a(f"s_mov_b32 s{S_TABD+i}, {i*16*1152-1024*(i%4)}")
        ln_stats_setup(a)
    toks=ln_issue(a,r,51,capture(setup),LEAD)
    T.stamp("issued")
    def pf(m, off):
        if not PFF: return []
        return [f"buffer_load_dword v15, v{9 if m==2 else 7}, s[{(WG,WU,WD)[m]}:{(WG,WU,WD)[m]+3}], 0 offen offset:{off}"]
    a(f"""s_mul_i32 s38, s51, 9
    v_add_u32 v9, s38, v0
    s_movk_i32 s38, 9216
    v_mul_lo_u32 v7, v9, s38
    v_mul_u32_u24 v9, 1152, v9
    v_cmp_gt_u32 vcc, 9, v0
    v_mov_b32 v1, {OOB}
    s_nop 0
    v_cndmask_b32 v7, v1, v7, vcc
    v_cndmask_b32 v9, v1, v9, vcc
    v_lshlrev_b32 v1, 4, v0""")
    if CPF2: a("""v_lshlrev_b32 v96, 7, v0
    v_add_u32 v96, 8192, v96
    v_mov_b32 v97, s33
    v_add_co_u32 v96, vcc, s32, v96
    v_addc_co_u32 v97, vcc, 0, v97, vcc""")
    for k in range((LA+3)//2):
        for x in pf(0,128*k)+pf(1,128*k): r.emit(x)
    dm=[r.mk_dma_static((WG,WU)[p%2],V_DMA_A,S_TABG,64*(p%2)) for p in range(36)]
    dm+=[r.mk_dma_static(WD,V_DMA_B,S_TABD,(TORD[i+1]-TORD[i])*64 if i<17 else 0) for i in range(18)]
    for k in range(2):
        d=r.mk_dma_static(WG,2,S_TABG,0)
        d.loads=[(pre, x.replace("v2,","v7,") if i>=5 else x) for i,(pre,x) in enumerate(d.loads)]
        if k==0: d.adv=[["v_add_u32 v2, 64, v2","v_add_u32 v7, 64, v7"]]
        dm.append(d)
    def tail_setup():
        t=A(); srd(t,WG,34,576*1152); srd(t,WU,64,2048*1152); L=[x.strip() for x in t.l]+tail_ids(None,63,62,True)
        L+=["v_lshrrev_b32 v10, 2, v0", "v_mul_u32_u24 v2, 1152, v10", "v_and_b32 v11, 3, v0", f"s_mul_i32 s38, s{S_WAVE}, {9*20736}", "s_lshl_b32 s39, s36, 7",
            "v_lshl_add_u32 v11, v11, 4, s39", "v_add3_u32 v2, v2, v11, s38",
            "v_bfe_u32 v7, v0, 3, 1", "v_bfe_u32 v10, v0, 4, 1", "v_lshl_add_u32 v7, v10, 2, v7", "v_lshrrev_b32 v10, 5, v0", "v_lshl_add_u32 v7, v10, 1, v7",
            "v_mul_u32_u24 v10, 18, v7", "v_bfe_u32 v7, v0, 2, 1", "v_add3_u32 v10, v10, v7, 16", "v_mul_u32_u24 v10, 1152, v10", "v_add_u32 v10, v10, v11",
            "v_subrev_u32 v10, 3072, v10", f"s_cmp_eq_u32 s{S_WAVE}, 3\n s_cselect_b64 s[32:33], -1, 0", "v_mov_b32 v4, v1", "v_cndmask_b32 v7, v2, v10, s[32:33]"]
        for i in range(1,9):
            x=f"s_mov_b32 s{S_TABG+i}, {i*20736-1024*(i%4)}"
            if i>=5: x+=f"\n s_cmp_eq_u32 s{S_WAVE}, 3\n s_cmov_b32 s{S_TABG+i}, {(i-5)*8*20736+3072-1024*(i%4)}"
            L.append(x)
        L+=[f"s_and_b32 s38, s{S_WAVE}, 1", "s_mul_i32 s38, s38, 18432", "s_mul_i32 s61, s63, 36864", "s_add_u32 s61, s61, s38", f"s_add_u32 s61, s61, {WS_O}"]
        return L+x_voff(9,12)
    def oload(s): return ([f"s_add_u32 s61, s61, 4096"] if s%4==0 and s else [])+[f"buffer_load_dwordx4 {OREG(s)}, v14, s[{S_WS}:{S_WS+3}], s61 offen offset:{1024*(s%4)} sc1"]
    ln_stats(a,r,toks,{1:dm[0], 3:dm[1]},T,LEAD)
    T.stamp(); T.stamp("stats")
    def gelu1(G):
        L=[]
        if GPK:
            for q in range(0,16,4):
                g=[f"v[{G+q+2*i}:{G+q+2*i+1}]" for i in range(2)]; t=[f"v[{V_T+2*i}:{V_T+2*i+1}]" for i in range(2)]
                for i in range(2): L.append(f"v_pk_mul_f32 {t[i]}, {g[i]}, {g[i]}")
                for i in range(2): L.append(f"v_pk_fma_f32 {t[i]}, {t[i]}, s[100:101], s[100:101] op_sel:[0,0,1] op_sel_hi:[1,0,1]")
                for i in range(2): L.append(f"v_pk_mul_f32 {t[i]}, {t[i]}, {g[i]}")
                for i in range(4): L.append(f"v_exp_f32 v{V_T+i}, v{V_T+i}")
                for i in range(2): L.append(f"v_pk_add_f32 {t[i]}, {t[i]}, 1.0 op_sel_hi:[1,0]")
                for i in range(4): L.append(f"v_rcp_f32 v{V_T+i}, v{V_T+i}")
                for i in range(2): L.append(f"v_pk_mul_f32 {g[i]}, {g[i]}, {t[i]}")
            return L
        for q in range(0,16,4):
            e=list(range(q,q+4)); T_=[V_T+i for i in range(4)]
            for i,x in enumerate(e): L.append(f"v_mul_f32 v{T_[i]}, v{G+x}, v{G+x}")
            for i,x in enumerate(e): L.append(f"v_fmaak_f32 v{T_[i]}, v{T_[i]}, v{V_C12}, {hexf(-C1)}")
            for i,x in enumerate(e): L.append(f"v_mul_f32 v{T_[i]}, v{T_[i]}, v{G+x}")
            for i,x in enumerate(e): L.append(f"v_exp_f32 v{T_[i]}, v{T_[i]}")
            for i,x in enumerate(e): L.append(f"v_add_f32 v{T_[i]}, 1.0, v{T_[i]}")
            for i,x in enumerate(e): L.append(f"v_rcp_f32 v{T_[i]}, v{T_[i]}")
            for i,x in enumerate(e): L.append(f"v_mul_f32 v{G+x}, v{G+x}, v{T_[i]}")
        return L
    def hfin(c):
        G=GA[c%2]
        L=gelu1(G)[N1:]+([f"v_pk_mul_f32 v[{V_U+x}:{V_U+x+1}], v[{V_U+x}:{V_U+x+1}], v[{G+x}:{G+x+1}]" for x in range(0,16,2)] if GPK else [f"v_mul_f32 v{V_U+x}, v{V_U+x}, v{G+x}" for x in range(16)])
        L+=[f"v_cvt_pk_bf16_f32 v{V_H+i}, v{V_U+2*i}, v{V_U+2*i+1}" for i in range(8)]
        L+=[f"v_accvgpr_write_b32 a{8*c+i}, v{V_H+i}" for i in range(8)]
        return L
    def dphase(i):
        acc=vr(GA[i%2],16)
        return Phase([(lambda af,s=s: f"v_mfma_f32_32x32x16_bf16 {acc}, {af}, a[{4*s}:{4*s+3}], {'0' if s==0 else acc}", (1024*s,1024*s+512)) for s in range(36)],V_RDB)
    def ycvt(i): return [f"v_cvt_pk_bf16_f32 v{ST[i%2]+k}, v{GA[i%2]+2*k}, v{GA[i%2]+2*k+1}" for k in range(8)]
    def yst(i):
        if EXP=="nost": return [f"s_add_u32 s38, s49, {TORD[i]*2048}"]
        if EXP=="plain": return [f"s_add_u32 s38, s49, {TORD[i]*2048}", f"buffer_store_dwordx4 {vr(ST[i%2],4)}, v1, s[{S_WS}:{S_WS+3}], s38 offen",
                f"buffer_store_dwordx4 {vr(ST[i%2]+4,4)}, v1, s[{S_WS}:{S_WS+3}], s38 offen offset:1024"]
        return [f"s_add_u32 s38, s49, {TORD[i]*2048}", f"buffer_store_dwordx4 {vr(ST[i%2],4)}, v1, s[{S_WS}:{S_WS+3}], s38 offen sc1",
                f"buffer_store_dwordx4 {vr(ST[i%2]+4,4)}, v1, s[{S_WS}:{S_WS+3}], s38 offen offset:1024 sc1"]
    P=[]
    for c in range(NC): P+=[gu_phase(GA[c%2]), gu_phase(V_U)]
    P+=[dphase(i) for i in range(18)]+[None]
    fx=first_phase_apply(a)
    for p in range(54):
        f=[]; fixed={}
        if p<36:
            c=p//2
            if p==0: fixed=fx
            elif p%2==0: f=[(hfin(c-1),1,36)]
            else: f=[(gelu1(GA[c%2])[:N1],3,36)]
            la=c+2+LA
            if la<NC and la%2==0: fixed[PFG]=fixed.get(PFG,[])+pf(p%2,64*la)
        else:
            i=p-36
            if i==0: f=[(hfin(NC-1),1,32)]
            else:
                f=[(ycvt(i-1),3,26)]
                if i-1!=9 or NOP1: fixed[27]=yst(i-1)
                if i==11 and not NOP1:
                    t=A(); t(f"s_lshl_b32 s39, s37, 8\n s_add_u32 s39, s39, {CNT_P}"); publish(t,39,True)
                    fixed[0]=[x.strip() for x in t.l]+yst(9)
                if i==8: fixed[28]=init_load()
                if i==TSI: f.append((tail_setup(),3,26))
                if OPI and i==OPI-2:
                    f.append(([f"s_lshl_b32 s39, s37, 8", f"s_add_u32 s39, s39, {CNT_O}", f"s_add_u32 s3, s39, {CNT_P-CNT_O}"],3,26))
                    fixed[28]=[f"buffer_load_dword v12, off, s[{S_WS}:{S_WS+3}], s39 sc1", f"buffer_load_dword v13, off, s[{S_WS}:{S_WS+3}], s3 sc1"]
                if OPI and i==OPI-1:
                    fixed[32]=["s_waitcnt vmcnt(11)","v_min_u32 v15, v12, v13"]
                    fixed[33]=["v_readfirstlane_b32 s60, v15"]
                    fixed[34]=[f"s_cmp_ge_u32 s60, 8\n s_cselect_b32 s60, 0, {OOB}", "v_or_b32 v14, s60, v1"]
                if OPI==16 and i in (16,17):
                    for k in range(12 if i==OPI else 6): fixed[3*k]=fixed.get(3*k,[])+oload(k+12*(i-OPI))
                if OPI==17 and i==17:
                    for k in range(18): fixed[3*(k//2)+k%2]=fixed.get(3*(k//2)+k%2,[])+oload(k)
        if CPF2 and p<36 and (p%4==1 or p==35):
            fixed[PFG+2]=["global_load_dword a255, v[96:97], off","v_add_co_u32 v96, vcc, 0x2000, v96","v_addc_co_u32 v97, vcc, 0, v97, vcc"]
        if TLB and p==31: fixed[PFG+3]=[f"buffer_load_dword a254, off, s[{S_WS}:{S_WS+3}], s49"]
        j=p-26
        if 0<=j<9: fixed[PFG+1]=pf(2,128*j)
        r.run(P[p],P[p+1],f,dm[p+2],first=(p==0),fixed=fixed)
        if p==0: T.stamp("g0")
        if p==1: T.stamp()
        if p==35: T.stamp(); T.stamp("gu")
    T.stamp()
    a("s_nop 7\n s_nop 3")
    for x in ycvt(17)+yst(17): a(x)
    T.stamp("epi")
    if OPI:
        a(f"s_add_u32 s39, s39, {CNT_P+128-CNT_O}")
        for x in tail_addr(63,V_RDB,2*SLOT,0): a(x)
        publish(a,39)
        T.stamp("fpub")
        a(f"""s_sub_u32 s39, s39, {CNT_P+128-CNT_O}
        s_cmp_eq_u32 s60, 0
        s_cbranch_scc1 .Lffn_have_o
        s_mov_b32 s31, 0x40000
        1:
        buffer_load_dword v12, off, s[{S_WS}:{S_WS+3}], s39 sc1
        buffer_load_dword v13, off, s[{S_WS}:{S_WS+3}], s3 sc1
        s_waitcnt vmcnt(0)
        v_min_u32 v15, v12, v13
        s_nop 0
        v_readfirstlane_b32 s38, v15
        s_cmp_ge_u32 s38, 8
        s_cbranch_scc1 2f
        s_sleep 4
        s_sub_u32 s31, s31, 1
        s_cbranch_scc0 1b
        2:
        s_sub_u32 s61, s61, 16384
        v_mov_b32 v14, v1""")
        for k in range(18):
            for x in oload(k): a(x)
        a("s_waitcnt vmcnt(0)\n .Lffn_have_o:")
        for x in x_loads(9,62,XR): a(x)
    else:
        a(f"""s_cmp_eq_u32 s{S_WAVE}, 0
        s_cselect_b32 s38, 0, {OOB}
        v_mov_b32 v10, s38
        s_lshl_b32 s39, s37, 8
        s_add_u32 s3, s39, {CNT_O}
        s_add_u32 s39, s39, {CNT_P+128}
        buffer_load_dword v11, v10, s[{S_WS}:{S_WS+3}], s3 offen sc1
        s_add_u32 s3, s3, {0 if NOP1 else CNT_P-CNT_O}
        buffer_load_dword v12, v10, s[{S_WS}:{S_WS+3}], s3 offen sc1""")
        for x in tail_addr(63,V_RDB,2*SLOT,0): a(x)
        publish(a,39,NOP1,0)
        for x in x_loads(9,62,XR): a(x)
        T.stamp("fpub")
        a(f"s_sub_u32 s39, s39, {CNT_P+128-CNT_O}")
        poll(a,39,8,also=None if NOP1 else CNT_P-CNT_O,pre=(11,12))
    T.stamp("opoll")
    tail(a,T,False,WU,62,OSC)
    T.store()
    return r
```

```python
from paths import *
import paths
QX=3*SLOT
KL=4*SLOT; KEL=QX+18432; VL=0
XL01=4*SLOT; XL2=QX+20480
WOS=(0,1,2)
S_WO=S_SRD1; S_OUT=S_SRD2
V_WO2=8; V_OCB=13; NMG=1
def wo_dma(r, step):
    d=r.mk_dma(S_WO,V_DMA_B,S_TABD,False,step)
    d.loads=[(pre, x.replace(f"v{V_DMA_B},",f"v{V_WO2},") if i>=5 else x) for i,(pre,x) in enumerate(d.loads)]
    return d
def qkv_path(a, s_idx, T, **kw):
    sc="sc1"
    r=Ring(a,**kw)
    if T.on: a("s_memrealtime s[94:95]")
    T.stamp()
    a("s_load_dwordx4 s[4:7], s[0:1], 8\n s_load_dwordx2 s[8:9], s[0:1], 56")
    common_entry(a,s_idx)
    W=S_SRD0
    srd(a,W,4,576*3456); srd(a,S_WO,6,576*1152); srd(a,S_OUT,8,2048*1152)
    coff=[2304,2368,2432,1152+128,1152+64,1152,128,64,0]
    a(f"""s_lshl_b32 s38, s2, 2
    s_add_u32 s38, s38, s{S_WAVE}
    s_cmp_eq_u32 s38, 32
    s_cselect_b32 s49, 0, {OOB}
    v_cmp_gt_u32 vcc, 40, v0
    v_lshlrev_b32 v12, 8, v0
    v_mov_b32 v13, {OOB}
    v_cndmask_b32 v12, v13, v12, vcc
    v_or_b32 v12, s49, v12
    v_mov_b32 v14, 0
    s_mov_b32 s38, {WS_CNT}""")
    r.emit(f"buffer_store_dword v14, v12, s[{S_WS}:{S_WS+3}], s38 offen sc1")
    r.emit(f"buffer_store_dword v14, v12, s[{S_WS}:{S_WS+3}], s38 offen offset:128 sc1")
    def flag():
        a(f"v_lshlrev_b32 v12, 8, v0\n v_or_b32 v12, s49, v12\n v_mov_b32 v14, 1")
        r.emit(f"buffer_store_dword v14, v12, s[{S_DBG}:{S_DBG+3}], 0 offen sc1")
    NW=64//NMG
    if PF:
        a(f"""s_lshr_b32 s75, s2, {4+NMG.bit_length()-1}
        s_lshl_b32 s75, s75, 2
        s_add_u32 s75, s75, s{S_WAVE}
        s_mul_i32 s64, s36, 144
        s_andn2_b32 s64, s64, 127""")
        for k in range((18+NW-1)//NW):
            a(f"s_add_u32 s38, s75, {k*NW}"); pf_calc(a,3456,128,18,2304,12)
            a("s_add_u32 s39, s39, s64")
            r.emit(f"buffer_load_dword a255, v12, s[{W}:{W+3}], s39 offen")
    def setup(a):
        lane_consts(a,3456)
        a(f"""
        s_mul_i32 s{S_DSLOT}, s{S_WAVE}, 9216
        s_mul_i32 s38, s{S_WAVE}, {9*16*3456}
        v_add_u32 v{V_DMA_A}, s38, v{V_DMA_A}
        s_mov_b32 s{S_SLOT}, 0
        s_mul_i32 s38, s36, 144
        s_and_b32 s38, s38, 63
        v_bfe_u32 v1, v0, 4, 1
        v_lshlrev_b32 v1, 5, v1
        v_and_b32 v10, 3, v0
        v_lshl_add_u32 v1, v10, 3, v1
        v_sub_u32 v{V_RDA}, v{V_RDA}, v1
        v_add_u32 v{V_OCB}, s38, v1
        v_bfe_u32 v1, v0, 3, 1
        v_bfe_u32 v10, v0, 4, 1
        v_lshl_add_u32 v1, v10, 2, v1
        v_lshrrev_b32 v10, 5, v0
        v_lshl_add_u32 v1, v10, 1, v1
        v_mul_u32_u24 v10, 18, v1
        v_bfe_u32 v1, v0, 2, 1
        v_add3_u32 v10, v10, v1, 16
        s_movk_i32 s38, 1152
        v_mul_lo_u32 v10, v10, s38
        v_and_b32 v1, 3, v0
        v_lshlrev_b32 v1, 4, v1
        v_add_u32 v10, v10, v1
        v_mov_b32 v{V_WO2}, v10
        """)
        for i in range(1,9): a(f"s_mov_b32 s{S_TABG+i}, {i*16*3456-1024*(i%4)}")
        ln_stats_setup(a)
    toks=ln_issue(a,r,51,capture(setup),LEAD,flag)
    T.stamp("issued")
    if PF:
        for base in (1152,0):
            for k in range((18+NW-1)//NW):
                a(f"s_add_u32 s38, s75, {k*NW}"); pf_calc(a,3456,128,18,base,12)
                a("s_add_u32 s39, s39, s64")
                r.emit(f"buffer_load_dword a255, v12, s[{W}:{W+3}], s39 offen")
        for k in range((18+NW-1)//NW):
            a(f"s_add_u32 s38, s75, {k*NW}\n s_lshl_b32 s3, s36, 7\n s_cmp_lt_u32 s38, 9\n s_cselect_b32 s3, s3, 1024"); pf_calc(a,1152,0,18,0,12)
            a("s_add_u32 s39, s39, s3")
            r.emit(f"buffer_load_dword a255, v12, s[{S_WO}:{S_WO+3}], s39 offen")
    a(f"""
    s_mul_i32 s38, s36, 144
    s_andn2_b32 s38, s38, 63
    s_add_u32 s38, s38, {coff[0]}
    s_add_u32 s{W}, s{W}, s38
    s_addc_u32 s{W+1}, s{W+1}, 0
    s_sub_u32 s{W+2}, s{W+2}, s38
    """)
    dm=[r.mk_dma(W, V_DMA_A, S_TABG, True, (coff[p+1]-coff[p]) if p<8 else 0) for p in range(9)]
    ln_stats(a,r,toks,{1:dm[0], 3:dm[1]},T,LEAD)
    T.stamp(); T.stamp("stats")
    acc=[48,64,80,96,48,64,80,None]
    phs=[gu_phase(acc[p], xfirst=(p<3)) for p in range(7)]
    acc[7]=96; phs.append(gu_phase(96))
    WSR=f"s[{S_WS}:{S_WS+3}]"
    a(f"""
    s_mul_i32 s62, s36, {4*KVH}
    s_mul_i32 s38, s51, {KVT}
    s_add_u32 s62, s62, s38
    s_add_u32 s62, s62, {WS_KV}
    """)
    P=40
    def v_addr(i):
        L=[f"v_and_b32 v1, 31, v0", f"v_add_u32 v1, {32*i}, v1",
           f"v_mul_u32_u24 v9, 3641, v1", f"v_lshrrev_b32 v9, 16, v9",
           f"v_mul_u32_u24 v7, 18, v9", f"v_sub_u32 v7, v1, v7"]
        if i==2:
            L+=[f"v_cmp_le_u32 vcc, 72, v1", f"v_subrev_u32 v10, 72, v1", "s_nop 0",
                f"v_cndmask_b32 v9, v9, v10, vcc", f"v_mov_b32 v10, 18", "s_nop 0", f"v_cndmask_b32 v7, v7, v10, vcc"]
        L+=[f"v_lshlrev_b32 v7, 4, v7", f"v_lshrrev_b32 v10, 5, v0", f"v_mul_u32_u24 v10, {VS}, v10", f"v_add_u32 v7, v7, v10",
            f"s_mul_i32 s38, s{S_WAVE}, {4*VS}", f"v_mul_u32_u24 v11, {16*VS}, v9", f"v_add3_u32 v11, v11, v7, s38",
            f"s_mov_b32 s38, {KVH}", f"v_mul_lo_u32 v9, v9, s38", f"v_add_u32 v7, v7, v9"]
        if i==2:
            L+=[f"s_movk_i32 s38, 76", f"v_cmp_le_u32 s[32:33], s38, v1", f"v_mov_b32 v10, {OOB}", f"v_mov_b32 v9, {19*16}", f"v_cndmask_b32 v7, v7, v10, s[32:33]", f"v_cndmask_b32 v11, v11, v9, s[32:33]"]
        L+=[f"v_accvgpr_write_b32 a{26+i}, v11"]
        return L
    def v_pack(i):
        A_=acc[i]; L=[]
        if i==2: L+=["v_and_b32 v1, 31, v0", "v_cmp_le_u32 vcc, 8, v1", "v_mov_b32 v10, 0x3f803f80"]
        L+=[f"v_cvt_pk_bf16_f32 v{P+k}, v{A_+2*k}, v{A_+2*k+1}" for k in range(8)]
        if i==2: L+=[f"v_cndmask_b32 v{P+k}, v{P+k}, v10, vcc" for k in range(8)]
        L+=[f"v_accvgpr_write_b32 a{8*i+k}, v{P+k}" for k in range(8)]
        return L
    def v_st(i):
        return v_addr(i)+[f"buffer_store_dwordx4 a[{8*i}:{8*i+3}], v7, {WSR}, s62 offen offset:1152 {sc}",
            f"buffer_store_dwordx4 a[{8*i+4}:{8*i+7}], v7, {WSR}, s62 offen offset:{1152+2*VS} {sc}"]
    def piece_regs(isk):
        R=[]
        for p in range(9):
            gp = p + (9 if isk else 0)
            t=gp//4; j=gp%4
            base={0:acc[7],1:acc[6],2:acc[5],3:acc[4],4:acc[3]}[t]
            R.append(base+4*j)
        return R
    def qk_ep(isk, heads):
        R=piece_regs(isk); L=[]
        need={0:[0,1,2],1:[2,3,4],2:[4,5,6],3:[6,7,8]}
        return R,need
    def pack(R,p,scale):
        L=[]
        if scale: L+=[f"v_mul_f32 v{R[p]+i}, {hexf(QSCALE)}, v{R[p]+i}" for i in range(4)]
        L+=[f"v_cvt_pk_bf16_f32 v{R[p]}, v{R[p]}, v{R[p]+1}", f"v_cvt_pk_bf16_f32 v{R[p]+1}, v{R[p]+2}, v{R[p]+3}"]
        return L
    def mv(d,s): return [f"v_mov_b32 v{d}, v{s}", f"v_mov_b32 v{d+1}, v{s+1}"]
    def sel(d,lo,hi): return [f"v_cndmask_b32 v{d}, v{lo}, v{hi}, s[32:33]", f"v_cndmask_b32 v{d+1}, v{lo+1}, v{hi+1}, s[32:33]"]
    def quads(R): return [mv(P,R[0])+mv(P+2,R[1]), mv(P+4,R[3])+sel(P+6,R[4],R[2]), mv(P,R[5])+sel(P+2,R[6],R[4]), mv(P+4,R[7])+mv(P+6,R[8])]
    def ext_addr(he): return ["v_and_b32 v7, 31, v0","v_lshlrev_b32 v7, 2, v7","v_lshrrev_b32 v9, 5, v0", f"s_mov_b32 s38, {2*he}", "v_mul_lo_u32 v9, v9, s38", "v_add_u32 v7, v7, v9"]
    def k_store(heads):
        R=piece_regs(True)
        L=["v_cmp_lt_u32 s[32:33], 31, v0", "v_lshlrev_b32 v7, 4, v0", f"s_lshl_b32 s38, s{S_WAVE}, 10", f"s_add_u32 s38, s38, {KL}", "v_add_u32 v9, s38, v7"]
        for h in heads:
            L+=quads(R)[h]
            L+=[f"s_add_u32 s38, s62, {h*KVH}", f"buffer_store_dwordx4 {vr(P+4*(h%2),4)}, v7, {WSR}, s38 offen {sc}", f"ds_write_b128 v9, {vr(P+4*(h%2),4)} offset:{h*4096}"]
        if 0 in heads:
            L+=sel(10,R[2],R[6])+ext_addr(KVH)
            L+=[f"buffer_store_dword v10, v7, {WSR}, s62 offen offset:1024 {sc}", f"s_add_u32 s38, s62, {KVH}", f"buffer_store_dword v11, v7, {WSR}, s38 offen offset:1024 {sc}",
                "v_accvgpr_write_b32 a24, v10", "v_accvgpr_write_b32 a25, v11"]
        return L+["s_nop 1"]
    def own_lds():
        L=[f"v_accvgpr_read_b32 v{9+i}, a{26+i}" for i in range(3)]
        for i in range(3): L+=[f"ds_write_b128 v{9+i}, a[{8*i}:{8*i+3}]", f"ds_write_b128 v{9+i}, a[{8*i+4}:{8*i+7}] offset:{2*VS}"]
        L+=ext_addr(512)+[f"s_lshl_b32 s38, s{S_WAVE}, 7", f"s_add_u32 s38, s38, {QX+16384}", "v_add_u32 v12, s38, v7", "ds_write_b32 v12, a24 offset:2048", "ds_write_b32 v12, a25 offset:2560"]
        return L
    def q_store():
        R=piece_regs(False)
        L=["v_cmp_lt_u32 s[32:33], 31, v0", "v_lshlrev_b32 v7, 4, v0", f"s_lshl_b32 s38, s{S_WAVE}, 10", f"s_add_u32 s38, s38, {QX}", "v_add_u32 v7, s38, v7"]
        L+=sel(10,R[2],R[6])+["ds_write_b32 v12, v10", "ds_write_b32 v12, v11 offset:512"]
        for h in (3,2,1,0):
            L+=quads(R)[h]+[f"ds_write_b128 v7, {vr(P+4*(h%2),4)} offset:{h*4096}"]
        return L
    Rk=piece_regs(True); Rq=piece_regs(False)
    RN=15
    def rdcalc(p, t=10):
        L=[]
        if p==5:
            L+=["v_and_b32 v1, 0x12, v0", "v_cmp_eq_u32 vcc, 0, v1", f"v_add_u32 v{t}, 128, v{V_OCB}", f"v_add_u32 v1, -16, v{V_OCB}",
                f"v_cndmask_b32 v{t}, v1, v{t}, vcc", f"v_cndmask_b32 v1, 1, 0, vcc", f"v_lshrrev_b32 v{RN}, 6, v{t}", f"v_sub_u32 v{RN}, v1, v{RN}"]
        else:
            tb=[0,64,128,112,48,None,64,0][p]
            L+=[f"v_add_u32 v{t}, {tb}, v{V_OCB}", f"v_lshrrev_b32 v{RN}, 6, v{t}"]
            if p>=3: L+=[f"v_sub_u32 v{RN}, {1 if p<5 else 0}, v{RN}"]
        L+=[f"v_and_b32 v{RN}, 3, v{RN}", f"v_mul_u32_u24 v{RN}, {SLOT}, v{RN}", f"v_and_b32 v{t}, 63, v{t}", f"v_add3_u32 v{RN}, v{RN}, v{t}, v{V_RDA}"]
        return L
    for p,nw in enumerate([2,1,0,2,1,1,1,1]): phs[p].rdreg=RN; phs[p].nwait=nw
    for x in rdcalc(0): a(x)
    fx=first_phase_apply(a)
    t=A(); t(f"s_lshl_b32 s39, s36, 8\n s_add_u32 s39, s39, {CNT_KV}"); publish(t,39,True)
    r.run(phs[0],phs[1],[(rdcalc(1),20,30)],[(dm[2],(1,2),True),(dm[3],(19,2),True)],first=True,fixed=fx)
    T.stamp("p0")
    r.run(phs[1],phs[2],[(v_pack(0),4,24),(rdcalc(2),24,31)],dm[4])
    T.stamp("p1")
    r.run(phs[2],phs[3],[(v_pack(1),4,24),(rdcalc(3),24,31)],dm[5])
    T.stamp("p2")
    r.run(phs[3],phs[4],[(v_pack(2),4,24),(rdcalc(4),24,31)],dm[6])
    T.stamp("p3")
    r.run(phs[4],phs[5],[(v_st(0)+v_st(1)+v_st(2)+init_load(),0,20),(pack(Rk,7,0)+pack(Rk,8,0)+rdcalc(5),20,31)],None)
    T.stamp("p4")
    r.run(phs[5],phs[6],[(sum([pack(Rk,p,0) for p in (3,4,5,6)],[])+rdcalc(6),2,18),(k_store((2,3)),18,30)],[(dm[7],(1,2),True)])
    T.stamp("p5")
    r.run(phs[6],phs[7],[(sum([pack(Rk,p,0) for p in (0,1,2)],[]),2,10),(k_store((0,1)),10,22),(rdcalc(7)+pack(Rq,8,1),22,31)],[(dm[8],(1,1),True)])
    T.stamp("p6")
    r.run(phs[7],None,[(sum([pack(Rq,p,1) for p in (4,5,6,7)],[]),2,PUBG),(own_lds(),PUBG+1,36)],None,fixed={PUBG:["s_waitcnt lgkmcnt(0)"]+[x.strip() for x in t.l]})
    T.stamp(); T.stamp("qkv")
    qfin=["s_nop 7"]+sum([pack(Rq,p,1) for p in (0,1,2,3)],[])+q_store()
    return r,qfin
PUBG=30
OSC=''
CPF3=False
ZL=False
EXN=1

Q0=16; Q1=32; SB=(48,64); PB=(80,88); K0B=(96,100,104,108); K1B=(112,116,120,124); VB=(128,136,144,152); OA=160; MX=224
S_PASS=62; S_IT=63; S_KVO=61; S_KVB=60
XRAW=192
def attn_path(a, r, T, qfin, label="att"):
    WSR=f"s[{S_WS}:{S_WS+3}]"; KT=4
    VK,VE,VV=4,5,6
    def ld_tile(b, so):
        return [f"buffer_load_dwordx4 {vr(K0B[b],4)}, v{VK}, {WSR}, s{so} offen sc1",
                f"buffer_load_dword v{K1B[b]}, v{VE}, {WSR}, s{so} offen sc1",
                f"buffer_load_dwordx4 {vr(VB[b],4)}, v{VV}, {WSR}, s{so} offen sc1",
                f"buffer_load_dwordx4 {vr(VB[b]+4,4)}, v{VV}, {WSR}, s{so} offen offset:{2*VS} sc1"]
    a(f"""
    v_mov_b32 v2, v{V_RDB}
    s_lshl_b32 s50, s36, 2
    s_add_u32 s50, s50, s{S_WAVE}
    s_mul_i32 s{S_KVB}, s50, {KVH}
    s_add_u32 s{S_KVB}, s{S_KVB}, {WS_KV}
    v_lshlrev_b32 v{VK}, 4, v0
    v_and_b32 v7, 31, v0
    v_lshlrev_b32 v{VE}, 2, v7
    v_add_u32 v{VE}, 1024, v{VE}
    v_cmp_lt_u32 vcc, 15, v7
    v_and_b32 v9, 19, v7
    v_lshrrev_b32 v10, 5, v0
    v_cndmask_b32 v9, v7, v9, vcc
    v_mul_u32_u24 v10, {VS}, v10
    v_lshlrev_b32 v9, 4, v9
    v_add_u32 v9, v9, v10
    v_add_u32 v{VV}, 1152, v9
    s_lshl_b32 s39, s36, 8
    s_add_u32 s39, s39, {CNT_KV}
    s_cmp_eq_u32 s{S_WAVE}, 0
    s_cselect_b32 s38, 0, {OOB}
    v_mov_b32 v1, s38
    """)
    for x in qfin: a(x)
    a(f"""s_waitcnt lgkmcnt(0)
    s_barrier
    s_lshl_b32 s38, s{S_WAVE}, 12
    s_add_u32 s38, s38, {QX}
    v_add_u32 v10, s38, v{VK}
    v_add_u32 v9, {KL-QX}, v10
    s_lshl_b32 s38, s{S_WAVE}, 9
    s_add_u32 s38, s38, {QX+16384-1024}
    v_add_u32 v11, s38, v{VE}
    s_mul_i32 s38, s{S_WAVE}, {16*VS}
    s_sub_u32 s38, s38, {1152-VL}
    v_add_u32 v12, s38, v{VV}
    ds_read_b128 {vr(K0B[0],4)}, v9
    ds_read_b32 v{K1B[0]}, v11 offset:2048""")
    for t in range(4):
        a(f"ds_read_b128 {vr(Q0+4*t,4)}, v10 offset:{1024*t}")
        a(f"ds_read_b32 v{Q1+4*t}, v11 offset:{128*t}")
    if ZL:
        a(f"""v_and_b32 v7, 31, v0
        v_cmp_gt_u32 vcc, 19, v7
        v_mov_b32 v13, {OOB}
        v_cndmask_b32 v{VV}, v13, v{VV}, vcc
        v_cmp_gt_u32 vcc, 32, v0
        v_mov_b32 v7, 0x3f803f80
        v_cndmask_b32 v{VE}, v13, v{VE}, vcc
        v_mov_b32 v13, 0x00003f80""")
        for b in K1B:
            a(f"v_cndmask_b32 v{b+1}, 0, v7, vcc\n v_cndmask_b32 v{b+2}, 0, v13, vcc\n v_mov_b32 v{b+3}, 0")
    else:
      for b in K1B:
        a(f"v_mov_b32 v{b+1}, 0x3f803f80\n v_mov_b32 v{b+2}, 0x00003f80\n v_mov_b32 v{b+3}, 0")
    a(f"v_cmp_gt_u32 vcc, 32, v0\n s_mov_b32 s{S_PASS}, 1")
    for t in range(4):
        if t: a(f"ds_read_b128 {vr(K0B[t],4)}, v9 offset:{1024*t}\n ds_read_b32 v{K1B[t]}, v11 offset:{2048+128*t}")
    a("s_waitcnt lgkmcnt(6)")
    for t in range(4):
        a(f"ds_read_b128 {vr(VB[t],4)}, v12 offset:{4*VS*t}\n ds_read_b128 {vr(VB[t]+4,4)}, v12 offset:{4*VS*t+2*VS}")
    for t in range(4): a(f"v_cndmask_b32 v{Q1+4*t}, 0, v{Q1+4*t}, vcc\n v_mov_b32 v{Q1+4*t+3}, 0")
    tail_ids(a,71,66,False)
    a(f"""s_and_b32 s38, s36, 1
    s_lshl_b32 s38, s38, 6
    s_mul_i32 s67, s71, {32*1152}
    s_add_u32 s67, s67, s38
    s_add_u32 s67, s67, 1024
    s_and_b32 s38, s36, 2
    s_cmp_eq_u32 s38, s{S_WAVE}
    s_cselect_b32 s68, 0, {OOB}
    s_mul_i32 s64, s37, {4*KVT}
    s_add_u32 s64, s64, s{S_KVB}
    s_add_u32 s49, s{S_KVB}, {64*KVT}""")
    for x in x_voff(14,7): a(x)
    EX=[]
    EX+=x_loads(14,66,XR)+x_loads(14,67,XR+8)
    T.stamp("kv0")
    a(f".L{label}_maxpass:")
    for t in range(4):
        a(f"v_mov_b32 v{Q1+4*t+1}, 0\n v_mov_b32 v{Q1+4*t+2}, 0\n v_mov_b32 v{MX+t}, 0xff800000")
    a(f"s_mov_b32 s{S_IT}, s{S_PASS}")
    a(f".L{label}_maxloop:")
    for t in range(4):
        S=OA+16*t
        a(f"v_mfma_f32_32x32x16_bf16 {vr(S,16)}, {vr(K0B[0],4)}, {vr(Q0+4*t,4)}, 0")
    for t in range(4):
        S=OA+16*t
        a(f"v_mfma_f32_32x32x16_bf16 {vr(S,16)}, {vr(K1B[0],4)}, {vr(Q1+4*t,4)}, {vr(S,16)}")
    a("s_nop 3")
    for t in range(4):
        S=OA+16*t
        if t==3: a("s_nop 3")
        for i in range(8): a(f"v_max3_f32 v{MX+t}, v{S+2*i}, v{S+2*i+1}, v{MX+t}")
    a(f"""s_sub_u32 s{S_IT}, s{S_IT}, 1
    s_cmp_lg_u32 s{S_IT}, 0
    s_cbranch_scc1 .L{label}_maxnext
    s_cmp_lg_u32 s{S_PASS}, 1
    s_cbranch_scc1 .L{label}_reload
    .L{label}_fold:""")
    a("v_cmp_gt_u32 vcc, 32, v0")
    for t in range(4): a(f"v_mov_b32 v{10+t}, v{MX+t}")
    a("s_nop 0")
    for t in range(4): a(f"v_permlane32_swap_b32 v{10+t}, v{MX+t}")
    for i in range(8): a(f"v_mov_b32 v{PB[1]+i}, 0")
    for t in range(4):
        m=MX+t; x=10+t
        a(f"""v_max_f32 v{x}, v{x}, v{m}
        v_sub_f32 v{x}, 0, v{x}
        v_and_b32 v7, 0xffff0000, v{x}
        v_sub_f32 v{x}, v{x}, v7
        v_and_b32 v9, 0xffff0000, v{x}
        v_sub_f32 v{x}, v{x}, v9
        v_lshrrev_b32 v7, 16, v7
        v_or_b32 v7, v7, v9
        v_lshrrev_b32 v{x}, 16, v{x}
        v_cndmask_b32 v{Q1+4*t+1}, 0, v7, vcc
        v_cndmask_b32 v{Q1+4*t+2}, 0, v{x}, vcc""")
        if t==0:
            a(f"""s_nop 1
            v_mfma_f32_32x32x16_bf16 {vr(SB[0],16)}, {vr(K0B[0],4)}, {vr(Q0,4)}, 0
            v_mfma_f32_32x32x16_bf16 {vr(SB[0],16)}, {vr(K1B[0],4)}, {vr(Q1,4)}, {vr(SB[0],16)}""")
    for i in range(64): a(f"v_mov_b32 v{OA+i}, 0")
    NIT=64//KT
    a(f"""s_add_u32 s{S_KVO}, s64, {3*KVT}
    s_mov_b32 s{S_IT}, 0
    s_waitcnt lgkmcnt(0)
    s_cmp_lg_u32 s{S_PASS}, 1
    s_cbranch_scc1 .L{label}_loop""")
    def iteration(first):
        ex=list(EX); vm=[]
        for k in range(KT):
            for t in range(4):
                u=4*k+t; S=SB[u%2]; S2=SB[(u+1)%2]; P=PB[u%2]; Pp=PB[(u+1)%2]
                nk,nt=(k,t+1) if t<3 else (k+1,0)
                pk_,pt=(k,t-1) if t>0 else (k-1,3)
                M=[f"v_mfma_f32_32x32x16_bf16 {vr(S2,16)}, {vr(K0B[nk%4],4)}, {vr(Q0+4*nt,4)}, 0",
                   f"v_mfma_f32_32x32x16_bf16 {vr(S2,16)}, {vr(K1B[nk%4],4)}, {vr(Q1+4*nt,4)}, {vr(S2,16)}",
                   f"v_mfma_f32_32x32x16_bf16 {vr(OA+16*pt,16)}, {vr(VB[pk_%4],4)}, {vr(Pp,4)}, {vr(OA+16*pt,16)}",
                   f"v_mfma_f32_32x32x16_bf16 {vr(OA+16*pt,16)}, {vr(VB[pk_%4]+4,4)}, {vr(Pp+4,4)}, {vr(OA+16*pt,16)}"]
                sh=[[],[],[],[]]
                L=ld_tile((k+3)%4,S_KVO)
                if first and k==0:
                    if t==0: M=M[:2]+[None,None]; sh[0]=[f"buffer_load_dword v15, v1, {WSR}, s39 offen sc1"]
                else:
                    if t==0: sh[0]=[L[0]]; sh[2]=[L[1]]
                    if t==1: sh[0]=[L[2]]; sh[2]=[L[3]]
                if t==2:
                    sh[0]=[f"s_add_u32 s{S_KVO}, s{S_KVO}, {KVT}"]
                    if k==0: sh[1]=[f"s_cmp_eq_u32 s{S_KVO}, s49"]; sh[2]=[f"s_cselect_b32 s{S_KVO}, s{S_KVB}, s{S_KVO}"]
                    if not first: sh[3]=["s_waitcnt vmcnt(8)"]
                    elif k==3: sh[3]=["W"]
                if k==KT-1 and t==3:
                    sh[0]=[f"s_add_u32 s{S_IT}, s{S_IT}, 1"]
                    if not first: sh[3]=[f"s_cmp_lg_u32 s{S_IT}, {NIT}"]
                if first and k>=1:
                    for q in range(4):
                        while ex and len(sh[q])<EXN and not any("s_cmp" in y for y in sh[q]) and not (sh[q] and "m0" in sh[q][-1] and is_vmem(ex[0])): sh[q].append(ex.pop(0))
                c=lambda i: f"v_cvt_pk_bf16_f32 v{P+i}, v{S+2*i}, v{S+2*i+1}"
                if first and (k,t)==(1,0):
                    a(f"""s_cmp_lg_u32 s{S_WAVE}, 0
                    s_cbranch_scc1 2f
                    s_mov_b32 s31, 0x40000
                    1:
                    s_waitcnt vmcnt(0)
                    v_readfirstlane_b32 s38, v15
                    s_cmp_ge_u32 s38, 16
                    s_cbranch_scc1 2f
                    s_sleep 2
                    buffer_load_dword v15, v1, {WSR}, s39 offen sc1
                    s_sub_u32 s31, s31, 1
                    s_cbranch_scc0 1b
                    2:
                    s_barrier""")
                    T.stamp(); T.stamp("polled")
                for q in range(4):
                    if M[q]: a(M[q])
                    for x in sh[q]:
                        if x=="W": x=f"s_waitcnt vmcnt({len(vm)-1-vm.index('t4')})"
                        a(x)
                        if is_vmem(x): vm.append('t4' if (k==1 and x==L[3]) else '')
                    for j in range(4): a(f"v_exp_f32 v{S+4*q+j}, v{S+4*q+j}")
                    if q>0: a(c(2*q-2)); a(c(2*q-1))
                a(c(6)); a(c(7))
        assert not (first and ex), ex
    iteration(True)
    a(f".L{label}_loop:")
    iteration(False)
    a(f"s_cbranch_scc1 .L{label}_loop")
    lk=KT-1
    a(f"""s_nop 1
    v_mfma_f32_32x32x16_bf16 {vr(OA+48,16)}, {vr(VB[lk%4],4)}, {vr(PB[1],4)}, {vr(OA+48,16)}
    v_mfma_f32_32x32x16_bf16 {vr(OA+48,16)}, {vr(VB[lk%4]+4,4)}, {vr(PB[1]+4,4)}, {vr(OA+48,16)}
    s_branch .L{label}_chk
    .L{label}_maxnext:
    s_add_u32 s{S_KVO}, s{S_KVO}, {KVT}
    .L{label}_maxld:""")
    for x in ld_tile(0,S_KVO)[:2]: a(x)
    a(f"""s_waitcnt vmcnt(0)
    s_cmp_eq_u32 s{S_KVO}, s{S_KVB}
    s_cbranch_scc1 .L{label}_maxpass
    s_branch .L{label}_maxloop
    .L{label}_reload:""")
    for b in range(3):
        a(f"s_add_u32 s38, s64, {b*KVT}")
        for x in ld_tile(b,38): a(x)
    for i in range(8): a(f"v_mov_b32 v{VB[3]+i}, 0")
    a(f"""s_waitcnt vmcnt(0)
    s_branch .L{label}_fold
    .L{label}_chk:
    s_nop 7
    s_nop 3
    v_add_f32 v11, v{OA+10}, v{OA+26}
    v_add_f32 v12, v{OA+42}, v{OA+58}
    v_add_f32 v11, v11, v12
    v_mov_b32 v12, {hexf(2.0**60)}
    v_cmp_nlt_f32 vcc, v11, v12
    s_nop 3
    s_and_b32 s38, vcc_lo, vcc_lo
    s_cbranch_scc0 .L{label}_ok
    s_cmp_lg_u32 s{S_PASS}, 1
    s_cbranch_scc1 .L{label}_ok
    s_mov_b32 s{S_PASS}, 64
    s_mov_b32 s{S_KVO}, s{S_KVB}
    s_waitcnt vmcnt(0)
    s_branch .L{label}_maxld
    .L{label}_ok:
    """)
    T.stamp(); T.stamp("loop")
    if CPF3: a(f"""s_getpc_b64 s[32:33]
    v_lshlrev_b32 v10, 7, v0
    s_lshl_b32 s38, s{S_WAVE}, 13
    v_add_u32 v10, s38, v10
    v_min_u32 v10, .Lk2_end-.L{label}_ok-64, v10
    v_mov_b32 v11, s33
    v_add_co_u32 v10, vcc, s32, v10
    v_addc_co_u32 v11, vcc, 0, v11, vcc
    global_load_dword a255, v[10:11], off""")
    a(f"""
    s_mul_i32 s38, s37, {4*36864}
    s_lshl_b32 s39, s50, 10
    s_add_u32 s60, s38, s39
    s_add_u32 s60, s60, {WS_O}
    s_mul_i32 s61, s51, 36864
    s_lshl_b32 s39, s36, 9
    s_add_u32 s61, s61, s39
    s_add_u32 s61, s61, {WS_O+32*1024}
    s_lshl_b32 s39, s{S_WAVE}, 2
    s_add_u32 s39, s39, {QX}
    v_add_u32 v7, s39, v{VK}
    s_lshl_b32 s39, s{S_WAVE}, 10
    s_add_u32 s39, s39, {QX}
    v_add_u32 v9, s39, v{VK}
    v_cmp_lt_u32 vcc, 31, v0
    v_mov_b32 v6, {OOB}
    """)
    for t in range(4): a(f"v_mov_b32 v{10+t}, v{OA+16*t+10}")
    a(f"v_cndmask_b32 v5, v{VK}, v6, vcc")
    for t in range(4): a(f"v_permlane32_swap_b32 v{OA+16*t+10}, v{10+t}")
    a("s_nop 0")
    for t in range(4): a(f"v_rcp_f32 v{10+t}, v{OA+16*t+10}")
    for t in range(4):
        O=OA+16*t
        for i in range(10): a(f"v_mul_f32 v{O+i}, v{O+i}, v{10+t}")
        for i in range(5): a(f"v_cvt_pk_bf16_f32 v{O+i}, v{O+2*i}, v{O+2*i+1}")
        a(f"buffer_store_dwordx4 {vr(O,4)}, v{VK}, {WSR}, s60 offen sc1")
        a(f"ds_write_b32 v7, v{O+4} offset:{1024*t}")
        if t<3: a(f"s_add_u32 s60, s60, 36864")
    a(f"""s_waitcnt lgkmcnt(0)
    s_barrier
    ds_read_b128 v[10:13], v9
    s_waitcnt lgkmcnt(0)
    buffer_store_dwordx4 v[10:13], v5, {WSR}, s61 offen sc1""")
    fin_part(a,r,T)

def fin_part(a, r, T):
    WSR=f"s[{S_WS}:{S_WS+3}]"; VK=4
    a(f"s_lshl_b32 s39, s37, 8\n s_add_u32 s39, s39, {CNT_O}")
    a("s_waitcnt vmcnt(5)")
    for x in x_expand(2)+sel_setup(7)+tail_addr(71,2,0,QX): a(x)
    a(f"""s_lshl_b32 s44, s36, 7
    s_lshl_b32 s38, s{S_WAVE}, 6
    s_add_u32 s44, s44, s38
    s_sub_u32 s44, s44, 64
    s_and_b32 s38, s36, 1
    s_lshl_b32 s38, s38, 6
    s_add_u32 s38, s38, 1024
    s_cmp_eq_u32 s{S_WAVE}, 3
    s_cselect_b32 s44, s38, s44
    s_mul_i32 s45, s{S_WAVE}, {SLOT}
    s_sub_u32 s45, s45, {SLOT}""")
    publish(a,39)
    T.stamp("opub")
    a(f"s_cmp_eq_u32 s{S_WAVE}, 0\n s_cbranch_scc1 .Lfin_wo\n s_mov_b32 m0, s45\n s_mov_b32 s46, s44")
    for i in range(36):
        if i==32: a(f"s_mov_b32 s46, s44")
        a(f"buffer_load_dwordx4 v{V_DMA_B if i<32 else V_WO2}, s[{S_WO}:{S_WO+3}], s46 offen lds")
        a(f"s_add_u32 m0, m0, 1024\n s_add_u32 s46, s46, {18*1152 if i<32 else 8*18*1152}")
    a("s_waitcnt vmcnt(0)\n .Lfin_wo:")
    a(f"""s_mul_i32 s44, s71, {18*2048}
    s_and_b32 s38, s36, 1
    s_lshl_b32 s38, s38, 11
    s_add_u32 s44, s44, s38
    s_add_u32 s44, s44, {WS_PART+16*2048}""")
    poll(a,39,8,also=None if paths.NOP1 else CNT_P-CNT_O)
    T.stamp(); T.stamp("opoll")
    tail(a,T,True,S_OUT,66,OSC)
    T.store()
```

```python
from paths import *
import paths
QX=3*SLOT
KL=4*SLOT; KEL=QX+18432; VL=0
XL01=4*SLOT; XL2=QX+20480
WOS=(0,1,2)
S_WO=S_SRD1; S_OUT=S_SRD2
V_WO2=8; V_OCB=13; NMG=1
def wo_dma(r, step):
    d=r.mk_dma(S_WO,V_DMA_B,S_TABD,False,step)
    d.loads=[(pre, x.replace(f"v{V_DMA_B},",f"v{V_WO2},") if i>=5 else x) for i,(pre,x) in enumerate(d.loads)]
    return d
def qkv_path(a, s_idx, T, **kw):
    sc="sc1"
    r=Ring(a,**kw)
    if T.on: a("s_memrealtime s[94:95]")
    T.stamp()
    a("s_load_dwordx4 s[4:7], s[0:1], 8\n s_load_dwordx2 s[8:9], s[0:1], 56")
    if paths.HX: a("s_load_dwordx4 s[40:43], s[0:1], 32")
    common_entry(a,s_idx)
    if paths.HX: srd(a,44,42,576*9216); srd(a,40,40,576*9216)
    W=S_SRD0
    srd(a,W,4,576*3456); srd(a,S_WO,6,576*1152); srd(a,S_OUT,8,2048*1152)
    coff=[2304,2368,2432,1152+128,1152+64,1152,128,64,0]
    a(f"""s_lshl_b32 s38, s2, 2
    s_add_u32 s38, s38, s{S_WAVE}
    s_cmp_eq_u32 s38, 32
    s_cselect_b32 s49, 0, {OOB}
    v_cmp_gt_u32 vcc, 40, v0
    v_lshlrev_b32 v12, 8, v0
    v_mov_b32 v13, {OOB}
    v_cndmask_b32 v12, v13, v12, vcc
    v_or_b32 v12, s49, v12
    v_mov_b32 v14, 0
    s_mov_b32 s38, {WS_CNT}""")
    r.emit(f"buffer_store_dword v14, v12, s[{S_WS}:{S_WS+3}], s38 offen sc1")
    r.emit(f"buffer_store_dword v14, v12, s[{S_WS}:{S_WS+3}], s38 offen offset:128 sc1")
    def flag():
        a(f"v_lshlrev_b32 v12, 8, v0\n v_or_b32 v12, s49, v12\n v_mov_b32 v14, 1")
        r.emit(f"buffer_store_dword v14, v12, s[{S_DBG}:{S_DBG+3}], 0 offen sc1")
    NW=64//NMG
    if PF:
        a(f"""s_lshr_b32 s75, s2, {4+NMG.bit_length()-1}
        s_lshl_b32 s75, s75, 2
        s_add_u32 s75, s75, s{S_WAVE}
        s_mul_i32 s64, s36, 144
        s_andn2_b32 s64, s64, 127""")
        for k in range((18+NW-1)//NW):
            a(f"s_add_u32 s38, s75, {k*NW}"); pf_calc(a,3456,128,18,2304,12)
            a("s_add_u32 s39, s39, s64")
            r.emit(f"buffer_load_dword a255, v12, s[{W}:{W+3}], s39 offen")
    def setup(a):
        lane_consts(a,3456)
        a(f"""
        s_mul_i32 s{S_DSLOT}, s{S_WAVE}, 9216
        s_mul_i32 s38, s{S_WAVE}, {9*16*3456}
        v_add_u32 v{V_DMA_A}, s38, v{V_DMA_A}
        s_mov_b32 s{S_SLOT}, 0
        s_mul_i32 s38, s36, 144
        s_and_b32 s38, s38, 63
        v_bfe_u32 v1, v0, 4, 1
        v_lshlrev_b32 v1, 5, v1
        v_and_b32 v10, 3, v0
        v_lshl_add_u32 v1, v10, 3, v1
        v_sub_u32 v{V_RDA}, v{V_RDA}, v1
        v_add_u32 v{V_OCB}, s38, v1
        v_bfe_u32 v1, v0, 3, 1
        v_bfe_u32 v10, v0, 4, 1
        v_lshl_add_u32 v1, v10, 2, v1
        v_lshrrev_b32 v10, 5, v0
        v_lshl_add_u32 v1, v10, 1, v1
        v_mul_u32_u24 v10, 18, v1
        v_bfe_u32 v1, v0, 2, 1
        v_add3_u32 v10, v10, v1, 16
        s_movk_i32 s38, 1152
        v_mul_lo_u32 v10, v10, s38
        v_and_b32 v1, 3, v0
        v_lshlrev_b32 v1, 4, v1
        v_add_u32 v10, v10, v1
        v_mov_b32 v{V_WO2}, v10
        """)
        for i in range(1,9): a(f"s_mov_b32 s{S_TABG+i}, {i*16*3456-1024*(i%4)}")
        ln_stats_setup(a)
    toks=ln_issue(a,r,51,capture(setup),LEAD,flag)
    T.stamp("issued")
    if PF:
        def pf_w(base, sub=None):
            for k in range((18+NW-1)//NW):
                a(f"s_add_u32 s38, s75, {k*NW}"); pf_calc(a,3456,128,18,base,12)
                a("s_add_u32 s39, s39, s64")
                if sub: a(f"v_subrev_u32 v12, s{sub}, v12")
                r.emit(f"buffer_load_dword a255, v12, s[{W}:{W+3}], s39 offen")
        def pf_wo():
            for k in range((18+NW-1)//NW):
                a(f"s_add_u32 s38, s75, {k*NW}\n s_lshl_b32 s3, s36, 7\n s_cmp_lt_u32 s38, 9\n s_cselect_b32 s3, s3, 1024"); pf_calc(a,1152,0,18,0,12)
                a("s_add_u32 s39, s39, s3")
                r.emit(f"buffer_load_dword a255, v12, s[{S_WO}:{S_WO+3}], s39 offen")
        pf_w(1152)
        if LATE<2: pf_w(0)
        if LATE<1: pf_wo()
        if LATE>=2: srd(a,4,4,576*3456)
    a(f"""
    s_mul_i32 s38, s36, 144
    s_andn2_b32 s38, s38, 63
    s_add_u32 s38, s38, {coff[0]}
    s_add_u32 s{W}, s{W}, s38
    s_addc_u32 s{W+1}, s{W+1}, 0
    s_sub_u32 s{W+2}, s{W+2}, s38
    """)
    dm=[r.mk_dma(W, V_DMA_A, S_TABG, True, (coff[p+1]-coff[p]) if p<8 else 0) for p in range(9)]
    ln_stats(a,r,toks,{1:dm[0], 3:dm[1]},T,LEAD)
    T.stamp(); T.stamp("stats")
    acc=[48,64,80,96,48,64,80,None]
    phs=[gu_phase(acc[p], xfirst=(p<3)) for p in range(7)]
    acc[7]=96; phs.append(gu_phase(96))
    WSR=f"s[{S_WS}:{S_WS+3}]"
    a(f"""
    s_mul_i32 s62, s36, {4*KVH}
    s_mul_i32 s38, s51, {KVT}
    s_add_u32 s62, s62, s38
    s_add_u32 s62, s62, {WS_KV}
    """)
    P=40
    def v_addr(i):
        L=[f"v_and_b32 v1, 31, v0", f"v_add_u32 v1, {32*i}, v1",
           f"v_mul_u32_u24 v9, 3641, v1", f"v_lshrrev_b32 v9, 16, v9",
           f"v_mul_u32_u24 v7, 18, v9", f"v_sub_u32 v7, v1, v7"]
        if i==2:
            L+=[f"v_cmp_le_u32 vcc, 72, v1", f"v_subrev_u32 v10, 72, v1", "s_nop 0",
                f"v_cndmask_b32 v9, v9, v10, vcc", f"v_mov_b32 v10, 18", "s_nop 0", f"v_cndmask_b32 v7, v7, v10, vcc"]
        L+=[f"v_lshlrev_b32 v7, 4, v7", f"v_lshrrev_b32 v10, 5, v0", f"v_mul_u32_u24 v10, {VS}, v10", f"v_add_u32 v7, v7, v10",
            f"s_mul_i32 s38, s{S_WAVE}, {4*VS}", f"v_mul_u32_u24 v11, {16*VS}, v9", f"v_add3_u32 v11, v11, v7, s38",
            f"s_mov_b32 s38, {KVH}", f"v_mul_lo_u32 v9, v9, s38", f"v_add_u32 v7, v7, v9"]
        if i==2:
            L+=[f"s_movk_i32 s38, 76", f"v_cmp_le_u32 s[32:33], s38, v1", f"v_mov_b32 v10, {OOB}", f"v_mov_b32 v9, {19*16}", f"v_cndmask_b32 v7, v7, v10, s[32:33]", f"v_cndmask_b32 v11, v11, v9, s[32:33]"]
        L+=[f"v_accvgpr_write_b32 a{26+i}, v11"]
        return L
    def v_pack(i):
        A_=acc[i]; L=[]
        if i==2: L+=["v_and_b32 v1, 31, v0", "v_cmp_le_u32 vcc, 8, v1", "v_mov_b32 v10, 0x3f803f80"]
        L+=[f"v_cvt_pk_bf16_f32 v{P+k}, v{A_+2*k}, v{A_+2*k+1}" for k in range(8)]
        if i==2: L+=[f"v_cndmask_b32 v{P+k}, v{P+k}, v10, vcc" for k in range(8)]
        L+=[f"v_accvgpr_write_b32 a{8*i+k}, v{P+k}" for k in range(8)]
        return L
    def v_st(i):
        return v_addr(i)+[f"buffer_store_dwordx4 a[{8*i}:{8*i+3}], v7, {WSR}, s62 offen offset:1152 {sc}",
            f"buffer_store_dwordx4 a[{8*i+4}:{8*i+7}], v7, {WSR}, s62 offen offset:{1152+2*VS} {sc}"]
    def piece_regs(isk):
        R=[]
        for p in range(9):
            gp = p + (9 if isk else 0)
            t=gp//4; j=gp%4
            base={0:acc[7],1:acc[6],2:acc[5],3:acc[4],4:acc[3]}[t]
            R.append(base+4*j)
        return R
    def qk_ep(isk, heads):
        R=piece_regs(isk); L=[]
        need={0:[0,1,2],1:[2,3,4],2:[4,5,6],3:[6,7,8]}
        return R,need
    def pack(R,p,scale):
        L=[]
        if scale: L+=[f"v_mul_f32 v{R[p]+i}, {hexf(QSCALE)}, v{R[p]+i}" for i in range(4)]
        L+=[f"v_cvt_pk_bf16_f32 v{R[p]}, v{R[p]}, v{R[p]+1}", f"v_cvt_pk_bf16_f32 v{R[p]+1}, v{R[p]+2}, v{R[p]+3}"]
        return L
    def mv(d,s): return [f"v_mov_b32 v{d}, v{s}", f"v_mov_b32 v{d+1}, v{s+1}"]
    def sel(d,lo,hi): return [f"v_cndmask_b32 v{d}, v{lo}, v{hi}, s[32:33]", f"v_cndmask_b32 v{d+1}, v{lo+1}, v{hi+1}, s[32:33]"]
    def quads(R): return [mv(P,R[0])+mv(P+2,R[1]), mv(P+4,R[3])+sel(P+6,R[4],R[2]), mv(P,R[5])+sel(P+2,R[6],R[4]), mv(P+4,R[7])+mv(P+6,R[8])]
    def ext_addr(he): return ["v_and_b32 v7, 31, v0","v_lshlrev_b32 v7, 2, v7","v_lshrrev_b32 v9, 5, v0", f"s_mov_b32 s38, {2*he}", "v_mul_lo_u32 v9, v9, s38", "v_add_u32 v7, v7, v9"]
    def k_store(heads):
        R=piece_regs(True)
        L=["v_cmp_lt_u32 s[32:33], 31, v0", "v_lshlrev_b32 v7, 4, v0", f"s_lshl_b32 s38, s{S_WAVE}, 10", f"s_add_u32 s38, s38, {KL}", "v_add_u32 v9, s38, v7"]
        for h in heads:
            L+=quads(R)[h]
            L+=[f"s_add_u32 s38, s62, {h*KVH}", f"buffer_store_dwordx4 {vr(P+4*(h%2),4)}, v7, {WSR}, s38 offen {sc}", f"ds_write_b128 v9, {vr(P+4*(h%2),4)} offset:{h*4096}"]
        if 0 in heads:
            L+=sel(10,R[2],R[6])+ext_addr(KVH)
            L+=[f"buffer_store_dword v10, v7, {WSR}, s62 offen offset:1024 {sc}", f"s_add_u32 s38, s62, {KVH}", f"buffer_store_dword v11, v7, {WSR}, s38 offen offset:1024 {sc}",
                "v_accvgpr_write_b32 a24, v10", "v_accvgpr_write_b32 a25, v11"]
        return L+["s_nop 1"]
    def own_lds():
        L=[f"v_accvgpr_read_b32 v{9+i}, a{26+i}" for i in range(3)]
        for i in range(3): L+=[f"ds_write_b128 v{9+i}, a[{8*i}:{8*i+3}]", f"ds_write_b128 v{9+i}, a[{8*i+4}:{8*i+7}] offset:{2*VS}"]
        L+=ext_addr(512)+[f"s_lshl_b32 s38, s{S_WAVE}, 7", f"s_add_u32 s38, s38, {QX+16384}", "v_add_u32 v12, s38, v7", "ds_write_b32 v12, a24 offset:2048", "ds_write_b32 v12, a25 offset:2560"]
        return L
    def q_store():
        R=piece_regs(False)
        L=["v_cmp_lt_u32 s[32:33], 31, v0", "v_lshlrev_b32 v7, 4, v0", f"s_lshl_b32 s38, s{S_WAVE}, 10", f"s_add_u32 s38, s38, {QX}", "v_add_u32 v7, s38, v7"]
        L+=sel(10,R[2],R[6])+["ds_write_b32 v12, v10", "ds_write_b32 v12, v11 offset:512"]
        for h in (3,2,1,0):
            L+=quads(R)[h]+[f"ds_write_b128 v7, {vr(P+4*(h%2),4)} offset:{h*4096}"]
        return L
    Rk=piece_regs(True); Rq=piece_regs(False)
    RN=15
    def rdcalc(p, t=10):
        L=[]
        if p==5:
            L+=["v_and_b32 v1, 0x12, v0", "v_cmp_eq_u32 vcc, 0, v1", f"v_add_u32 v{t}, 128, v{V_OCB}", f"v_add_u32 v1, -16, v{V_OCB}",
                f"v_cndmask_b32 v{t}, v1, v{t}, vcc", f"v_cndmask_b32 v1, 1, 0, vcc", f"v_lshrrev_b32 v{RN}, 6, v{t}", f"v_sub_u32 v{RN}, v1, v{RN}"]
        else:
            tb=[0,64,128,112,48,None,64,0][p]
            L+=[f"v_add_u32 v{t}, {tb}, v{V_OCB}", f"v_lshrrev_b32 v{RN}, 6, v{t}"]
            if p>=3: L+=[f"v_sub_u32 v{RN}, {1 if p<5 else 0}, v{RN}"]
        L+=[f"v_and_b32 v{RN}, 3, v{RN}", f"v_mul_u32_u24 v{RN}, {SLOT}, v{RN}", f"v_and_b32 v{t}, 63, v{t}", f"v_add3_u32 v{RN}, v{RN}, v{t}, v{V_RDA}"]
        return L
    for p,nw in enumerate([2,1,0,2,1,1,1,1]): phs[p].rdreg=RN; phs[p].nwait=nw
    for x in rdcalc(0): a(x)
    fx=first_phase_apply(a)
    t=A(); t(f"s_lshl_b32 s39, s36, 8\n s_add_u32 s39, s39, {CNT_KV}"); publish(t,39,True)
    r.run(phs[0],phs[1],[(rdcalc(1),20,30)],[(dm[2],(1,2),True),(dm[3],(19,2),True)],first=True,fixed=fx)
    T.stamp("p0")
    if PF and LATE>=2:
        W0=W; W=4; pf_w(0); W=W0
    r.run(phs[1],phs[2],[(v_pack(0),4,24),(rdcalc(2),24,31)],dm[4])
    T.stamp("p1")
    r.run(phs[2],phs[3],[(v_pack(1),4,24),(rdcalc(3),24,31)],dm[5])
    T.stamp("p2")
    if PF and LATE>=1: pf_wo()
    if paths.HX:
        a(f"s_mul_i32 s48, s36, 1152\n s_add_u32 s48, s48, 1088\n s_mov_b32 s38, s75"); pf_calc(a,9216,0,9,0,12)
        a("s_add_u32 s39, s39, s48")
        for m_ in (40,44): r.emit(f"buffer_load_dword a255, v12, s[{m_}:{m_+3}], s39 offen")
    r.run(phs[3],phs[4],[(v_pack(2),4,24),(rdcalc(4),24,31)],dm[6])
    T.stamp("p3")
    r.run(phs[4],phs[5],[(v_st(0)+v_st(1)+v_st(2)+init_load(),0,20),(pack(Rk,7,0)+pack(Rk,8,0)+rdcalc(5),20,31)],None)
    T.stamp("p4")
    r.run(phs[5],phs[6],[(sum([pack(Rk,p,0) for p in (3,4,5,6)],[])+rdcalc(6),2,18),(k_store((2,3)),18,30)],[(dm[7],(1,2),True)])
    T.stamp("p5")
    r.run(phs[6],phs[7],[(sum([pack(Rk,p,0) for p in (0,1,2)],[]),2,10),(k_store((0,1)),10,22),(rdcalc(7)+pack(Rq,8,1),22,31)],[(dm[8],(1,1),True)])
    T.stamp("p6")
    qfin=["s_nop 7"]+sum([pack(Rq,p,1) for p in (0,1,2,3)],[])+q_store()
    f7=[(sum([pack(Rq,p,1) for p in (4,5,6,7)],[]),2,PUBG),(own_lds(),PUBG+1,36)]; x7={PUBG:["s_waitcnt lgkmcnt(0)"]+[x.strip() for x in t.l]}
    if not paths.HX:
        r.run(phs[7],None,f7,None,fixed=x7)
        T.stamp(); T.stamp("qkv")
    else:
        a(f"""v_lshrrev_b32 v{V_DMA_A}, 2, v0
        v_mul_u32_u24 v{V_DMA_A}, 8064, v{V_DMA_A}
        v_add_u32 v{V_DMA_A}, v{V_DMA_A}, v{V_DMA_B}
        s_mul_i32 s38, s{S_WAVE}, {9*16*9216}
        s_add_u32 s48, s48, s38
        s_mul_i32 s{S_DSLOT}, s{S_WAVE}, 9216
        v_lshrrev_b32 v{V_RDA}, 5, v0
        v_lshlrev_b32 v{V_RDA}, 8, v{V_RDA}
        v_add_u32 v{V_RDA}, v{V_RDA}, v{V_RDB}""")
        def hdma(m_,sl):
            return Dma([([f"s_add_u32 m0, s{S_DSLOT}, {sl*SLOT+1024*i}", f"s_add_u32 s49, s48, {i*16*9216}"], f"buffer_load_dwordx4 v{V_DMA_A}, s[{m_}:{m_+3}], s49 offen lds") for i in range(9)],[])
        assert not r.dma_tok
        r.static=True; r.rslot=1
        G=[x.replace(f", v{V_C12}, 0x",", v7, 0x") for x in gelu1()]
        pg,pu=gu_phase(V_G),gu_phase(V_U)
        r.run(phs[7],pg,f7,[(hdma(40,1),(1,1),True),(hdma(44,2),(10,2),True)],fixed=x7)
        T.stamp(); T.stamp("qkv")
        r.run(pg,pu,[(qfin[1:]+[f"v_mov_b32 v7, {hexf(-C12)}"],3,34)],None)
        qfin=[]
        r.run(pu,None,[(G,3,36)],None)
        a(f"""s_lshl_b32 s38, s51, 3
        s_add_u32 s38, s38, s36
        s_lshl_b32 s38, s38, 11
        s_add_u32 s38, s38, {paths.WS_H}
        v_lshlrev_b32 v1, 4, v0
        s_nop 7""")
        for x in gelu2()+cvt_h(0)+cvt_h(1): a(x)
        if paths.D16:
            a("s_nop 1")
            for i in range(4): a(f"v_permlane16_swap_b32 v{V_H+i}, v{V_H+4+i}")
        a(f"""buffer_store_dwordx4 {vr(V_H,4)}, v1, {WSR}, s38 offen sc1
        buffer_store_dwordx4 {vr(V_H+4,4)}, v1, {WSR}, s38 offen offset:1024 sc1
        s_nop 1""")
        T.stamp("hx")
    return r,qfin
PUBG=30
OSC=''
CPF3=False
LATE=0
ZL=False
EXN=1

Q0=16; Q1=32; SB=(48,64); PB=(80,88); K0B=(96,100,104,108); K1B=(112,116,120,124); VB=(128,136,144,152); OA=160; MX=224
S_PASS=62; S_IT=63; S_KVO=61; S_KVB=60
XRAW=192
def attn_path(a, r, T, qfin, label="att"):
    WSR=f"s[{S_WS}:{S_WS+3}]"; KT=4
    VK,VE,VV=4,5,6
    def ld_tile(b, so):
        return [f"buffer_load_dwordx4 {vr(K0B[b],4)}, v{VK}, {WSR}, s{so} offen sc1",
                f"buffer_load_dword v{K1B[b]}, v{VE}, {WSR}, s{so} offen sc1",
                f"buffer_load_dwordx4 {vr(VB[b],4)}, v{VV}, {WSR}, s{so} offen sc1",
                f"buffer_load_dwordx4 {vr(VB[b]+4,4)}, v{VV}, {WSR}, s{so} offen offset:{2*VS} sc1"]
    a(f"""
    v_mov_b32 v2, v{V_RDB}
    s_lshl_b32 s50, s36, 2
    s_add_u32 s50, s50, s{S_WAVE}
    s_mul_i32 s{S_KVB}, s50, {KVH}
    s_add_u32 s{S_KVB}, s{S_KVB}, {WS_KV}
    v_lshlrev_b32 v{VK}, 4, v0
    v_and_b32 v7, 31, v0
    v_lshlrev_b32 v{VE}, 2, v7
    v_add_u32 v{VE}, 1024, v{VE}
    v_cmp_lt_u32 vcc, 15, v7
    v_and_b32 v9, 19, v7
    v_lshrrev_b32 v10, 5, v0
    v_cndmask_b32 v9, v7, v9, vcc
    v_mul_u32_u24 v10, {VS}, v10
    v_lshlrev_b32 v9, 4, v9
    v_add_u32 v9, v9, v10
    v_add_u32 v{VV}, 1152, v9
    s_lshl_b32 s39, s36, 8
    s_add_u32 s39, s39, {CNT_KV}
    s_cmp_eq_u32 s{S_WAVE}, 0
    s_cselect_b32 s38, 0, {OOB}
    v_mov_b32 v1, s38
    """)
    for x in qfin: a(x)
    a(f"""s_waitcnt lgkmcnt(0)
    s_barrier
    s_lshl_b32 s38, s{S_WAVE}, 12
    s_add_u32 s38, s38, {QX}
    v_add_u32 v10, s38, v{VK}
    v_add_u32 v9, {KL-QX}, v10
    s_lshl_b32 s38, s{S_WAVE}, 9
    s_add_u32 s38, s38, {QX+16384-1024}
    v_add_u32 v11, s38, v{VE}
    s_mul_i32 s38, s{S_WAVE}, {16*VS}
    s_sub_u32 s38, s38, {1152-VL}
    v_add_u32 v12, s38, v{VV}
    ds_read_b128 {vr(K0B[0],4)}, v9
    ds_read_b32 v{K1B[0]}, v11 offset:2048""")
    for t in range(4):
        a(f"ds_read_b128 {vr(Q0+4*t,4)}, v10 offset:{1024*t}")
        a(f"ds_read_b32 v{Q1+4*t}, v11 offset:{128*t}")
    if ZL:
        a(f"""v_and_b32 v7, 31, v0
        v_cmp_gt_u32 vcc, 19, v7
        v_mov_b32 v13, {OOB}
        v_cndmask_b32 v{VV}, v13, v{VV}, vcc
        v_cmp_gt_u32 vcc, 32, v0
        v_mov_b32 v7, 0x3f803f80
        v_cndmask_b32 v{VE}, v13, v{VE}, vcc
        v_mov_b32 v13, 0x00003f80""")
        for b in K1B:
            a(f"v_cndmask_b32 v{b+1}, 0, v7, vcc\n v_cndmask_b32 v{b+2}, 0, v13, vcc\n v_mov_b32 v{b+3}, 0")
    else:
      for b in K1B:
        a(f"v_mov_b32 v{b+1}, 0x3f803f80\n v_mov_b32 v{b+2}, 0x00003f80\n v_mov_b32 v{b+3}, 0")
    a(f"v_cmp_gt_u32 vcc, 32, v0\n s_mov_b32 s{S_PASS}, 1")
    for t in range(4):
        if t: a(f"ds_read_b128 {vr(K0B[t],4)}, v9 offset:{1024*t}\n ds_read_b32 v{K1B[t]}, v11 offset:{2048+128*t}")
    a("s_waitcnt lgkmcnt(6)")
    for t in range(4):
        a(f"ds_read_b128 {vr(VB[t],4)}, v12 offset:{4*VS*t}\n ds_read_b128 {vr(VB[t]+4,4)}, v12 offset:{4*VS*t+2*VS}")
    for t in range(4): a(f"v_cndmask_b32 v{Q1+4*t}, 0, v{Q1+4*t}, vcc\n v_mov_b32 v{Q1+4*t+3}, 0")
    tail_ids(a,71,66,False)
    a(f"""s_and_b32 s38, s36, 1
    s_lshl_b32 s38, s38, 6
    s_mul_i32 s67, s71, {32*1152}
    s_add_u32 s67, s67, s38
    s_add_u32 s67, s67, 1024
    s_and_b32 s38, s36, 2
    s_cmp_eq_u32 s38, s{S_WAVE}
    s_cselect_b32 s68, 0, {OOB}
    s_mul_i32 s64, s37, {4*KVT}
    s_add_u32 s64, s64, s{S_KVB}
    s_add_u32 s49, s{S_KVB}, {64*KVT}""")
    for x in x_voff(14,7): a(x)
    EX=[]
    EX+=x_loads(14,66,XR)+x_loads(14,67,XR+8)
    T.stamp("kv0")
    a(f".L{label}_maxpass:")
    for t in range(4):
        a(f"v_mov_b32 v{Q1+4*t+1}, 0\n v_mov_b32 v{Q1+4*t+2}, 0\n v_mov_b32 v{MX+t}, 0xff800000")
    a(f"s_mov_b32 s{S_IT}, s{S_PASS}")
    a(f".L{label}_maxloop:")
    for t in range(4):
        S=OA+16*t
        a(f"v_mfma_f32_32x32x16_bf16 {vr(S,16)}, {vr(K0B[0],4)}, {vr(Q0+4*t,4)}, 0")
    for t in range(4):
        S=OA+16*t
        a(f"v_mfma_f32_32x32x16_bf16 {vr(S,16)}, {vr(K1B[0],4)}, {vr(Q1+4*t,4)}, {vr(S,16)}")
    a("s_nop 3")
    for t in range(4):
        S=OA+16*t
        if t==3: a("s_nop 3")
        for i in range(8): a(f"v_max3_f32 v{MX+t}, v{S+2*i}, v{S+2*i+1}, v{MX+t}")
    a(f"""s_sub_u32 s{S_IT}, s{S_IT}, 1
    s_cmp_lg_u32 s{S_IT}, 0
    s_cbranch_scc1 .L{label}_maxnext
    s_cmp_lg_u32 s{S_PASS}, 1
    s_cbranch_scc1 .L{label}_reload
    .L{label}_fold:""")
    a("v_cmp_gt_u32 vcc, 32, v0")
    for t in range(4): a(f"v_mov_b32 v{10+t}, v{MX+t}")
    a("s_nop 0")
    for t in range(4): a(f"v_permlane32_swap_b32 v{10+t}, v{MX+t}")
    for i in range(8): a(f"v_mov_b32 v{PB[1]+i}, 0")
    for t in range(4):
        m=MX+t; x=10+t
        a(f"""v_max_f32 v{x}, v{x}, v{m}
        v_sub_f32 v{x}, 0, v{x}
        v_and_b32 v7, 0xffff0000, v{x}
        v_sub_f32 v{x}, v{x}, v7
        v_and_b32 v9, 0xffff0000, v{x}
        v_sub_f32 v{x}, v{x}, v9
        v_lshrrev_b32 v7, 16, v7
        v_or_b32 v7, v7, v9
        v_lshrrev_b32 v{x}, 16, v{x}
        v_cndmask_b32 v{Q1+4*t+1}, 0, v7, vcc
        v_cndmask_b32 v{Q1+4*t+2}, 0, v{x}, vcc""")
        if t==0:
            a(f"""s_nop 1
            v_mfma_f32_32x32x16_bf16 {vr(SB[0],16)}, {vr(K0B[0],4)}, {vr(Q0,4)}, 0
            v_mfma_f32_32x32x16_bf16 {vr(SB[0],16)}, {vr(K1B[0],4)}, {vr(Q1,4)}, {vr(SB[0],16)}""")
    for i in range(64): a(f"v_mov_b32 v{OA+i}, 0")
    NIT=64//KT
    a(f"""s_add_u32 s{S_KVO}, s64, {3*KVT}
    s_mov_b32 s{S_IT}, 0
    s_waitcnt lgkmcnt(0)
    s_cmp_lg_u32 s{S_PASS}, 1
    s_cbranch_scc1 .L{label}_loop""")
    def iteration(first):
        ex=list(EX); vm=[]
        for k in range(KT):
            for t in range(4):
                u=4*k+t; S=SB[u%2]; S2=SB[(u+1)%2]; P=PB[u%2]; Pp=PB[(u+1)%2]
                nk,nt=(k,t+1) if t<3 else (k+1,0)
                pk_,pt=(k,t-1) if t>0 else (k-1,3)
                M=[f"v_mfma_f32_32x32x16_bf16 {vr(S2,16)}, {vr(K0B[nk%4],4)}, {vr(Q0+4*nt,4)}, 0",
                   f"v_mfma_f32_32x32x16_bf16 {vr(S2,16)}, {vr(K1B[nk%4],4)}, {vr(Q1+4*nt,4)}, {vr(S2,16)}",
                   f"v_mfma_f32_32x32x16_bf16 {vr(OA+16*pt,16)}, {vr(VB[pk_%4],4)}, {vr(Pp,4)}, {vr(OA+16*pt,16)}",
                   f"v_mfma_f32_32x32x16_bf16 {vr(OA+16*pt,16)}, {vr(VB[pk_%4]+4,4)}, {vr(Pp+4,4)}, {vr(OA+16*pt,16)}"]
                sh=[[],[],[],[]]
                L=ld_tile((k+3)%4,S_KVO)
                if first and k==0:
                    if t==0: M=M[:2]+[None,None]; sh[0]=[f"buffer_load_dword v15, v1, {WSR}, s39 offen sc1"]
                else:
                    if t==0: sh[0]=[L[0]]; sh[2]=[L[1]]
                    if t==1: sh[0]=[L[2]]; sh[2]=[L[3]]
                if t==2:
                    sh[0]=[f"s_add_u32 s{S_KVO}, s{S_KVO}, {KVT}"]
                    if k==0: sh[1]=[f"s_cmp_eq_u32 s{S_KVO}, s49"]; sh[2]=[f"s_cselect_b32 s{S_KVO}, s{S_KVB}, s{S_KVO}"]
                    if not first: sh[3]=["s_waitcnt vmcnt(8)"]
                    elif k==3: sh[3]=["W"]
                if k==KT-1 and t==3:
                    sh[0]=[f"s_add_u32 s{S_IT}, s{S_IT}, 1"]
                    if not first: sh[3]=[f"s_cmp_lg_u32 s{S_IT}, {NIT}"]
                if first and k>=1:
                    for q in range(4):
                        while ex and len(sh[q])<EXN and not any("s_cmp" in y for y in sh[q]) and not (sh[q] and "m0" in sh[q][-1] and is_vmem(ex[0])): sh[q].append(ex.pop(0))
                c=lambda i: f"v_cvt_pk_bf16_f32 v{P+i}, v{S+2*i}, v{S+2*i+1}"
                if first and (k,t)==(1,0):
                    a(f"""s_cmp_lg_u32 s{S_WAVE}, 0
                    s_cbranch_scc1 2f
                    s_mov_b32 s31, 0x40000
                    1:
                    s_waitcnt vmcnt(0)
                    v_readfirstlane_b32 s38, v15
                    s_cmp_ge_u32 s38, 16
                    s_cbranch_scc1 2f
                    s_sleep 2
                    buffer_load_dword v15, v1, {WSR}, s39 offen sc1
                    s_sub_u32 s31, s31, 1
                    s_cbranch_scc0 1b
                    2:""")
                    if paths.HX: a("s_waitcnt vmcnt(0)")
                    a("s_barrier")
                    if paths.HX: a(f"""s_cmp_lg_u32 s{S_WAVE}, 0
                    s_cbranch_scc1 2f
                    s_lshl_b32 s38, s37, 8
                    s_add_u32 s38, s38, {CNT_O+128}
                    s_mov_b64 exec, 1
                    v_mov_b32 v15, 1
                    buffer_atomic_add v15, off, {WSR}, s38 sc1
                    s_mov_b64 exec, -1
                    2:""")
                    T.stamp(); T.stamp("polled")
                for q in range(4):
                    if M[q]: a(M[q])
                    for x in sh[q]:
                        if x=="W": x=f"s_waitcnt vmcnt({len(vm)-1-vm.index('t4')})"
                        a(x)
                        if is_vmem(x): vm.append('t4' if (k==1 and x==L[3]) else '')
                    for j in range(4): a(f"v_exp_f32 v{S+4*q+j}, v{S+4*q+j}")
                    if q>0: a(c(2*q-2)); a(c(2*q-1))
                a(c(6)); a(c(7))
        assert not (first and ex), ex
    iteration(True)
    a(f".L{label}_loop:")
    iteration(False)
    a(f"s_cbranch_scc1 .L{label}_loop")
    lk=KT-1
    a(f"""s_nop 1
    v_mfma_f32_32x32x16_bf16 {vr(OA+48,16)}, {vr(VB[lk%4],4)}, {vr(PB[1],4)}, {vr(OA+48,16)}
    v_mfma_f32_32x32x16_bf16 {vr(OA+48,16)}, {vr(VB[lk%4]+4,4)}, {vr(PB[1]+4,4)}, {vr(OA+48,16)}
    s_branch .L{label}_chk
    .L{label}_maxnext:
    s_add_u32 s{S_KVO}, s{S_KVO}, {KVT}
    .L{label}_maxld:""")
    for x in ld_tile(0,S_KVO)[:2]: a(x)
    a(f"""s_waitcnt vmcnt(0)
    s_cmp_eq_u32 s{S_KVO}, s{S_KVB}
    s_cbranch_scc1 .L{label}_maxpass
    s_branch .L{label}_maxloop
    .L{label}_reload:""")
    for b in range(3):
        a(f"s_add_u32 s38, s64, {b*KVT}")
        for x in ld_tile(b,38): a(x)
    for i in range(8): a(f"v_mov_b32 v{VB[3]+i}, 0")
    a(f"""s_waitcnt vmcnt(0)
    s_branch .L{label}_fold
    .L{label}_chk:
    s_nop 7
    s_nop 3
    v_add_f32 v11, v{OA+10}, v{OA+26}
    v_add_f32 v12, v{OA+42}, v{OA+58}
    v_add_f32 v11, v11, v12
    v_mov_b32 v12, {hexf(2.0**60)}
    v_cmp_nlt_f32 vcc, v11, v12
    s_nop 3
    s_and_b32 s38, vcc_lo, vcc_lo
    s_cbranch_scc0 .L{label}_ok
    s_cmp_lg_u32 s{S_PASS}, 1
    s_cbranch_scc1 .L{label}_ok
    s_mov_b32 s{S_PASS}, 64
    s_mov_b32 s{S_KVO}, s{S_KVB}
    s_waitcnt vmcnt(0)
    s_branch .L{label}_maxld
    .L{label}_ok:
    """)
    T.stamp(); T.stamp("loop")
    if CPF3: a(f"""s_getpc_b64 s[32:33]
    v_lshlrev_b32 v10, 7, v0
    s_lshl_b32 s38, s{S_WAVE}, 13
    v_add_u32 v10, s38, v10
    v_min_u32 v10, .Lk2_end-.L{label}_ok-64, v10
    v_mov_b32 v11, s33
    v_add_co_u32 v10, vcc, s32, v10
    v_addc_co_u32 v11, vcc, 0, v11, vcc
    global_load_dword a255, v[10:11], off""")
    a(f"""
    s_mul_i32 s38, s37, {4*36864}
    s_lshl_b32 s39, s50, 10
    s_add_u32 s60, s38, s39
    s_add_u32 s60, s60, {WS_O}
    s_mul_i32 s61, s51, 36864
    s_lshl_b32 s39, s36, 9
    s_add_u32 s61, s61, s39
    s_add_u32 s61, s61, {WS_O+32*1024}
    s_lshl_b32 s39, s{S_WAVE}, 2
    s_add_u32 s39, s39, {QX}
    v_add_u32 v7, s39, v{VK}
    s_lshl_b32 s39, s{S_WAVE}, 10
    s_add_u32 s39, s39, {QX}
    v_add_u32 v9, s39, v{VK}
    v_cmp_lt_u32 vcc, 31, v0
    v_mov_b32 v6, {OOB}
    """)
    for t in range(4): a(f"v_mov_b32 v{10+t}, v{OA+16*t+10}")
    a(f"v_cndmask_b32 v5, v{VK}, v6, vcc")
    for t in range(4): a(f"v_permlane32_swap_b32 v{OA+16*t+10}, v{10+t}")
    a("s_nop 0")
    for t in range(4): a(f"v_rcp_f32 v{10+t}, v{OA+16*t+10}")
    for t in range(4):
        O=OA+16*t
        for i in range(10): a(f"v_mul_f32 v{O+i}, v{O+i}, v{10+t}")
        for i in range(5): a(f"v_cvt_pk_bf16_f32 v{O+i}, v{O+2*i}, v{O+2*i+1}")
        a(f"buffer_store_dwordx4 {vr(O,4)}, v{VK}, {WSR}, s60 offen sc1")
        a(f"ds_write_b32 v7, v{O+4} offset:{1024*t}")
        if t<3: a(f"s_add_u32 s60, s60, 36864")
    a(f"""s_waitcnt lgkmcnt(0)
    s_barrier
    ds_read_b128 v[10:13], v9
    s_waitcnt lgkmcnt(0)
    buffer_store_dwordx4 v[10:13], v5, {WSR}, s61 offen sc1""")
    fin_part(a,r,T)

def fin_part(a, r, T):
    WSR=f"s[{S_WS}:{S_WS+3}]"; VK=4
    a(f"s_lshl_b32 s39, s37, 8\n s_add_u32 s39, s39, {CNT_O}")
    a("s_waitcnt vmcnt(5)")
    for x in x_expand(2)+sel_setup(7)+tail_addr(71,2,0,QX): a(x)
    a(f"""s_lshl_b32 s44, s36, 7
    s_lshl_b32 s38, s{S_WAVE}, 6
    s_add_u32 s44, s44, s38
    s_sub_u32 s44, s44, 64
    s_and_b32 s38, s36, 1
    s_lshl_b32 s38, s38, 6
    s_add_u32 s38, s38, 1024
    s_cmp_eq_u32 s{S_WAVE}, 3
    s_cselect_b32 s44, s38, s44
    s_mul_i32 s45, s{S_WAVE}, {SLOT}
    s_sub_u32 s45, s45, {SLOT}""")
    publish(a,39)
    T.stamp("opub")
    a(f"s_cmp_eq_u32 s{S_WAVE}, 0\n s_cbranch_scc1 .Lfin_wo\n s_mov_b32 m0, s45\n s_mov_b32 s46, s44")
    for i in range(36):
        if i==32: a(f"s_mov_b32 s46, s44")
        a(f"buffer_load_dwordx4 v{V_DMA_B if i<32 else V_WO2}, s[{S_WO}:{S_WO+3}], s46 offen lds")
        a(f"s_add_u32 m0, m0, 1024\n s_add_u32 s46, s46, {18*1152 if i<32 else 8*18*1152}")
    a("s_waitcnt vmcnt(0)\n .Lfin_wo:")
    a(f"""s_mul_i32 s44, s71, {18*2048}
    s_and_b32 s38, s36, 1
    s_lshl_b32 s38, s38, 11
    s_add_u32 s44, s44, s38
    s_add_u32 s44, s44, {WS_PART+16*2048}""")
    poll(a,39,8,also=None if paths.NOP1 else CNT_P-CNT_O)
    T.stamp(); T.stamp("opoll")
    tail(a,T,True,S_OUT,66,OSC)
    T.store()
```

```python
from asmlib import *
import math
SLOT=36864
USE_PK=True
V_DMA_A=2; V_DMA_B=3; V_RDA=4; V_RDB=5; V_RD=6; V_C12=8
V_T=10
V_AF=16
V_H=40; V_G=48; V_U=64; V_Y16=80; V_X=112
S_WAVE=28; S_SLOT=29; S_DSLOT=30; S_T2=35; S_CNT=34
S_SRD0=16; S_SRD1=20; S_SRD2=24
S_WS=52
S_TABD=40; S_TABG=66; DBIAS=3072

def is_trans(x): return x.startswith(("v_exp","v_rcp","v_rsq","v_sqrt","v_log"))
def is_vmem(x): return x.startswith(("buffer_","global_"))

class Phase:
    def __init__(self, ops, rdbase):
        self.ops=ops
        self.rdbase=rdbase
        self.rdreg=None
        self.nwait=1
        self.alt=None
class Dma:
    def __init__(self, loads, adv):
        self.loads=loads
        self.adv=adv

class Ring:
    def __init__(self, a, NB=6, D=5, wgrp=3, dmacost=4, dmapos=(2,3), stagger=0, dmafirst=False, static=False):
        self.a=a; self.NB=NB; self.D=D; self.W=wgrp; self.dmacost=dmacost; self.dmapos=dmapos
        self.s=Sched(a); self.fragno=0; self.pending=[]
        self.vm=0; self.dma_tok=[]
        self.maxused=[]; self.stagger=stagger; self.dmafirst=dmafirst; self.static=static; self.split=False; self.rslot=0; self.wslot=0
    def emit(self, x):
        if x=="P1": return
        self.a(x)
        if is_vmem(x): self.vm+=1
        if x.startswith("ds_"): self.s.ds_issued+=1
    def wait_vm(self, tok):
        n=self.vm-tok
        assert n<=63
        self.a(f"s_waitcnt vmcnt({n})")
    def mk_dma(self, srd_, vaddr, tab, tab0zero, step, slotadv=True):
        L=[]
        for i in range(9):
            pre=[]
            if i==0: pre.append(f"s_mov_b32 m0, s{S_DSLOT}")
            elif i%4==0: pre.append(f"s_add_u32 m0, m0, 4096")
            so = "0" if (i==0 and tab0zero) else f"s{tab+i}"
            L.append((pre,f"buffer_load_dwordx4 v{vaddr}, s[{srd_}:{srd_+3}], {so} offen offset:{1024*(i%4)} lds"))
        adv=[[f"s_add_u32 s{S_DSLOT}, s{S_DSLOT}, {SLOT}",
              f"s_cmp_ge_u32 s{S_DSLOT}, {4*SLOT}",
              f"s_cselect_b32 s{S_T2}, {4*SLOT}, 0",
              f"s_sub_u32 s{S_DSLOT}, s{S_DSLOT}, s{S_T2}"]]
        if step:
            if step>0: adv.append([f"s_add_u32 s{srd_}, s{srd_}, {step}", f"s_addc_u32 s{srd_+1}, s{srd_+1}, 0", f"s_sub_u32 s{srd_+2}, s{srd_+2}, {step}"])
            else: adv.append([f"s_sub_u32 s{srd_}, s{srd_}, {-step}", f"s_subb_u32 s{srd_+1}, s{srd_+1}, 0", f"s_add_u32 s{srd_+2}, s{srd_+2}, {-step}"])
        return Dma(L,adv)
    def mk_dma_static(self, srd_, vaddr, tab, vstep):
        L=[]; sl=self.wslot; self.wslot=(sl+1)%4
        for i in range(9):
            pre=[f"s_add_u32 m0, s{S_DSLOT}, {sl*SLOT+1024*i}"] if i%4==0 else []
            so = "0" if i==0 else f"s{tab+i}"
            L.append((pre,f"buffer_load_dwordx4 v{vaddr}, s[{srd_}:{srd_+3}], {so} offen offset:{1024*(i%4)} lds"))
        return Dma(L,[[f"v_add_u32 v{vaddr}, {vstep}, v{vaddr}"]] if vstep else [])
    def issue_dma_now(self, d):
        for pre,x in d.loads:
            for y in pre: self.a(y); self.a("s_nop 0")
            self.emit(x)
        self.dma_tok.append(self.vm)
        for g in d.adv:
            for x in g: self.a(x)
    def start_reads(self, ph):
        a=self.a
        tok=None
        for _ in range(ph.nwait): tok=self.dma_tok.pop(0)
        if tok is not None:
            self.wait_vm(tok)
        a("s_barrier")
        if self.stagger:
            for w in (1,2,3): a(f"s_cmp_lt_u32 s{S_WAVE}, {w}\n s_cbranch_scc1 9f\n s_nop {self.stagger-1}")
            a("9:")
        if ph.rdreg is not None: a(f"v_mov_b32 v{V_RD}, v{ph.rdreg}")
        elif self.static:
            a(f"v_add_u32 v{V_RD}, {self.rslot*SLOT}, v{ph.rdbase}"); self.rslot=(self.rslot+1)%4
        else: a(f"v_add_u32 v{V_RD}, s{S_SLOT}, v{ph.rdbase}")
        if ph.alt: a(f"v_xor_b32 v{ph.alt}, 32, v{V_RD}")
        if getattr(ph,"two",None):
            a(f"v_add_u32 v{ph.two}, {SLOT}, v{V_RD}"); self.rslot=(self.rslot+1)%4
    def slot_adv(self):
        if self.static: return []
        return [f"s_add_u32 s{S_SLOT}, s{S_SLOT}, {SLOT}", f"s_cmp_ge_u32 s{S_SLOT}, {4*SLOT}", f"s_cselect_b32 s{S_SLOT}, 0, s{S_SLOT}"]
    def read_frag(self, offs):
        b=V_AF+4*(self.fragno%self.NB); self.fragno+=1
        rg=offs[2] if len(offs)>2 else V_RD
        self.s.ds(f"ds_read_b64_tr_b16 {vr(b,2)}, v{rg} offset:{offs[0]}")
        tok=self.s.ds(f"ds_read_b64_tr_b16 {vr(b+2,2)}, v{rg} offset:{offs[1]}")
        self.pending.append((tok,b))
    def run(self, ph, nxt, fillers=(), dma=None, first=False, fixed=None, track=True):
        a=self.a; D=self.D; W=self.W; ops=ph.ops; N=len(ops)
        if first:
            self.start_reads(ph)
            if ph.rdreg is None:
                for x in self.slot_adv(): a(x)
            for g in range(D): self.read_frag(ops[g][1])
        dmas = [] if dma is None else (dma if isinstance(dma,list) else [(dma,self.dmapos,track)])
        used=[3.0+(1 if g%W==0 else 0) for g in range(N)]
        extra=[[] for g in range(N)]
        dmpos={}
        for d,pos,trk in dmas:
            for i,(pre,x) in enumerate(d.loads):
                g=pos[0]+pos[1]*i
                assert g not in dmpos
                dmpos[g]=(x, trk and i==len(d.loads)-1)
                used[g]+=self.dmacost
                extra[g-1]+=pre; used[g-1]+=len(pre)
            for grp in d.adv:
                if len(dmas)==1 and g+1<N: g+=1
                extra[g]+=grp; used[g]+=len(grp)
        if nxt:
            used[N-D]+=3
            if nxt.rdreg is None: extra[N-D+1]+=self.slot_adv(); used[N-D+1]+=len(self.slot_adv())
        fill=[[] for g in range(N)]
        if fixed:
            for g,L in fixed.items():
                fill[g]+=L; used[g]+=len(L)
        for (L,g0,g1) in fillers:
            if not L: continue
            cost=[2 if is_trans(x) else (3 if is_vmem(x) else 1) for x in L]
            tot=sum(cost); lo,hi=0,60
            for _ in range(40):
                mid=(lo+hi)/2
                if sum(max(0,mid-used[g]) for g in range(g0,g1))>=tot: hi=mid
                else: lo=mid
            cum=[]; c=0
            for g in range(g0,g1): c+=max(0,hi-used[g]); cum.append(c)
            acc=0; gi=0
            for x,cc in zip(L,cost):
                mid=acc+cc/2
                while gi<len(cum)-1 and cum[gi]<mid: gi+=1
                fill[g0+gi].append(x); used[g0+gi]+=cc; acc+=cc
        self.maxused.append(max(used))
        for g in range(N):
            tok,b=self.pending.pop(0)
            if g%W==0:
                k=min(W-1,len(self.pending))
                self.s.wait_ds(self.pending[k-1][0] if k>0 else tok)
            self.s.wait_ds(tok)
            mm=ops[g][0](vr(b,4)); m2=None
            if isinstance(mm,tuple): mm,m2=mm
            a(mm)
            n=g+D
            if g in dmpos and self.dmafirst:
                self.emit(dmpos[g][0])
                if dmpos[g][1]: self.dma_tok.append(self.vm)
                if m2 and self.dmafirst==2: a(m2); m2=None
            if m2 and self.split and n<N and g not in dmpos and len(fill[g])+len(extra[g])==0:
                b2=V_AF+4*(self.fragno%self.NB); self.fragno+=1; offs=ops[n][1]; rg=offs[2]
                self.s.ds(f"ds_read_b64_tr_b16 {vr(b2,2)}, v{rg} offset:{offs[0]}")
                a(m2)
                self.pending.append((self.s.ds(f"ds_read_b64_tr_b16 {vr(b2+2,2)}, v{rg} offset:{offs[1]}"),b2))
                continue
            if n<N: self.read_frag(ops[n][1])
            elif nxt:
                if n==N: self.start_reads(nxt)
                self.read_frag(nxt.ops[n-N][1])
            if m2: a(m2)
            if g in dmpos and not self.dmafirst:
                self.emit(dmpos[g][0])
                if dmpos[g][1]: self.dma_tok.append(self.vm)
            for x in fill[g]: self.emit(x)
            for x in extra[g]: a(x)
    def state(self):
        return (self.fragno%self.NB, len(self.pending), [self.vm-t for t in self.dma_tok])

def lane_consts(a, rowstride_a):
    a(f"""
    v_lshrrev_b32 v1, 2, v0
    v_and_b32 v10, 3, v0
    v_lshlrev_b32 v10, 4, v10
    s_movk_i32 s38, {rowstride_a}
    v_mul_lo_u32 v{V_DMA_A}, v1, s38
    v_add_u32 v{V_DMA_A}, v{V_DMA_A}, v10
    s_movk_i32 s38, 1152
    v_mul_lo_u32 v{V_DMA_B}, v1, s38
    v_add_u32 v{V_DMA_B}, v{V_DMA_B}, v10
    v_bfe_u32 v1, v0, 2, 2
    v_lshlrev_b32 v1, 6, v1
    v_bfe_u32 v10, v0, 4, 1
    v_lshlrev_b32 v10, 5, v10
    v_add_u32 v1, v1, v10
    v_and_b32 v10, 3, v0
    v_lshlrev_b32 v10, 3, v10
    v_add_u32 v1, v1, v10
    v_lshrrev_b32 v10, 5, v0
    v_lshlrev_b32 v11, 9, v10
    v_add_u32 v{V_RDA}, v1, v11
    v_lshlrev_b32 v11, 8, v10
    v_add_u32 v{V_RDB}, v1, v11
    """)

S_X=56
V_ST=40
XORD=[8,0,1,2,3,4,5,6,7]
def x_lds_base(cb):
    if cb==8: return (32*1024, SLOT)
    return ((cb>>1)*SLOT + (cb&1)*4096, 8192)
def groups(lines):
    G=[]
    for x in lines:
        x=x.strip()
        if not x: continue
        if x.startswith(("s_addc","s_subb","s_cselect")) and G: G[-1].append(x)
        else: G.append([x])
    return G
def capture(fn):
    t=A(); fn(t); return groups(t.l)
def x_dots(cb):
    L=[]
    for s in range(4*cb,4*cb+4):
        for i in range(4): L.append(f"v_dot2c_f32_bf16 v{V_ST+i}, v{V_X+4*s+i}, v11")
        for i in range(4): L.append(f"v_dot2c_f32_bf16 v{V_ST+4+i}, v{V_X+4*s+i}, v{V_X+4*s+i}")
    return L
def x_rd(r, toks, cb):
    VA=V_AF
    r.wait_vm(toks[cb])
    base,_=x_lds_base(cb)
    for k in range(4):
        s=4*cb+k
        if cb==8: reg,off=VA+8+k, base
        elif base<2*SLOT: reg,off=VA+k, base
        else: reg,off=VA+4+k, base-2*SLOT
        r.s.ds(f"ds_read_b128 {vr(V_X+4*s,4)}, v{reg} offset:{off}")
def ln_issue(a, r, s_tg, fill=(), lead=9, hook=None):
    a(f"""
    v_lshrrev_b32 v1, 3, v0
    s_movk_i32 s62, 1152
    v_mul_lo_u32 v7, v1, s62
    v_lshrrev_b32 v1, 4, v0
    v_and_b32 v9, 7, v0
    v_xor_b32 v1, v1, v9
    v_lshlrev_b32 v1, 4, v1
    v_add_u32 v7, v7, v1
    v_xor_b32 v9, 64, v7
    s_mul_i32 s62, s{s_tg}, {32*1152}
    s_mul_i32 s60, s{S_WAVE}, {SLOT}
    s_lshl_b32 s61, s{S_WAVE}, 13
    """)
    toks={}; fill=list(fill); n=0; k=0
    for ci,cb in enumerate(XORD):
        base,ws=x_lds_base(cb)
        D=[]
        if ci>=lead:
            if ci>lead: a("s_waitcnt lgkmcnt(0)"); r.s.ds_done=r.s.ds_issued; D=x_dots(XORD[ci-lead-1])
            x_rd(r,toks,XORD[ci-lead])
            if ci==lead and hook: hook()
        a(f"s_add_u32 m0, s{60 if cb==8 else 61}, {base}")
        for rb in range(4):
            a(f"s_add_u32 s63, s62, {rb*8*1152+cb*128-rb*1024}")
            r.emit(f"buffer_load_dwordx4 v{7 if rb%2==0 else 9}, s[{S_X}:{S_X+3}], s63 offen offset:{rb*1024} lds")
            n+=1
            while k < min(len(fill),len(fill)*n//(4*lead)):
                for x in fill[k]: a(x)
                k+=1
            for x in D[8*rb:8*rb+8]: a(x)
        toks[cb]=r.vm
    return toks
def ln_stats_setup(a):
    VA=V_AF
    a(f"""
    v_and_b32 v1, 31, v0
    v_lshrrev_b32 v10, 3, v1
    v_lshlrev_b32 v10, 10, v10
    v_and_b32 v11, 7, v1
    v_lshlrev_b32 v11, 7, v11
    v_add_u32 v10, v10, v11
    v_bfe_u32 v11, v1, 1, 3
    v_lshrrev_b32 v1, 5, v0
    v_xor_b32 v11, v11, v1
    v_lshlrev_b32 v11, 4, v11
    v_add_u32 v10, v10, v11
    v_add_u32 v{VA}, s61, v10
    v_add_u32 v{VA+8}, s60, v10
    v_add_u32 v{VA+4}, {2*SLOT}, v{VA}
    """)
    for k in range(1,4):
        a(f"v_xor_b32 v{VA+k}, {32*k}, v{VA}")
        a(f"v_xor_b32 v{VA+4+k}, {32*k}, v{VA+4}")
        a(f"v_xor_b32 v{VA+8+k}, {32*k}, v{VA+8}")
    for i in range(8): a(f"v_mov_b32 v{V_ST+i}, 0")
    a("v_mov_b32 v11, 0x3f803f80")
def ln_stats(a, r, toks, after_cb, T=None, lead=9):
    def dots(cb, d=None):
        L=x_dots(cb)
        if d is None:
            for x in L: a(x)
            return
        for i,(pre,x) in enumerate(d.loads):
            for y in pre: a(y)
            for y in L[(32*i)//9:(32*(i+1))//9]: a(y)
            r.emit(x)
        r.dma_tok.append(r.vm)
        for g in d.adv:
            for x in g: a(x)
    nd=9-lead
    prev=XORD[nd-1] if nd>0 else None
    pend=[]
    if nd>0:
        a("s_waitcnt lgkmcnt(0)"); r.s.ds_done=r.s.ds_issued
        pend=[after_cb[c] for c in XORD[:nd] if c in after_cb]
        if pend: a("s_barrier")
        if T: T.stamp("cbx")
    for cb in XORD[nd:]:
        x_rd(r,toks,cb)
        if prev is not None: dots(prev,pend.pop(0) if pend else None)
        a("s_waitcnt lgkmcnt(0)"); r.s.ds_done=r.s.ds_issued
        if cb in after_cb:
            a("s_barrier"); pend.append(after_cb[cb])
            if T: T.stamp(f"cb{cb}")
        prev=cb
    dots(prev,pend.pop(0) if pend else None)
    assert not pend
    S=V_ST
    a(f"""
    s_nop 2
    v_add_f32 v{S}, v{S}, v{S+1}
    v_add_f32 v{S+2}, v{S+2}, v{S+3}
    v_add_f32 v{S+4}, v{S+4}, v{S+5}
    v_add_f32 v{S+6}, v{S+6}, v{S+7}
    v_add_f32 v{S}, v{S}, v{S+2}
    v_add_f32 v{S+4}, v{S+4}, v{S+6}
    v_mov_b32 v{S+1}, v{S}
    v_mov_b32 v{S+5}, v{S+4}
    s_nop 1
    v_permlane32_swap_b32 v{S}, v{S+1}
    v_permlane32_swap_b32 v{S+4}, v{S+5}
    s_nop 1
    v_add_f32 v{S}, v{S}, v{S+1}
    v_add_f32 v{S+4}, v{S+4}, v{S+5}
    v_mul_f32 v{S}, {hexf(1/576)}, v{S}
    v_mul_f32 v{S+4}, {hexf(1/576)}, v{S+4}
    v_fma_f32 v{S+4}, -v{S}, v{S}, v{S+4}
    v_max_f32 v{S+4}, 0, v{S+4}
    v_cvt_pk_bf16_f32 v{S+1}, v{S}, v{S+4}
    v_lshlrev_b32 v{S}, 16, v{S+1}
    v_and_b32 v{S+4}, 0xffff0000, v{S+1}
    v_add_f32 v{S+4}, {hexf(1e-5)}, v{S+4}
    v_cvt_pk_bf16_f32 v{S+4}, v{S+4}, v{S+4}
    v_and_b32 v{S+4}, 0xffff0000, v{S+4}
    v_sqrt_f32 v{S+4}, v{S+4}
    s_nop 0
    v_cvt_pk_bf16_f32 v{S+4}, v{S+4}, v{S+4}
    v_and_b32 v{S+4}, 0xffff0000, v{S+4}
    v_rcp_f32 v12, v{S+4}
    s_nop 0
    v_mul_f32 v14, v{S}, v12
    v_sub_f32 v14, 0, v14
    """)
def ln_apply(s):
    L=[]
    for i in range(4):
        x=V_X+4*s+i; t=V_ST+2*i
        L.append(f"v_lshlrev_b32 v{t}, 16, v{x}")
        L.append(f"v_and_b32 v{t+1}, 0xffff0000, v{x}")
    for i in range(4):
        t=V_ST+2*i
        if USE_PK: L.append(f"v_pk_fma_f32 v[{t}:{t+1}], v[{t}:{t+1}], v[12:13], v[14:15] op_sel_hi:[1,0,0]")
        else: L+=[f"v_fma_f32 v{t}, v{t}, v12, v14", f"v_fma_f32 v{t+1}, v{t+1}, v12, v14"]
    for i in range(4):
        x=V_X+4*s+i; t=V_ST+2*i
        L.append(f"v_cvt_pk_bf16_f32 v{x}, v{t}, v{t+1}")
    return L
```

```python
from engine import *
WS_KV=0
KVT=2432; KVH=64*KVT; VS=320
S_DBG=96
WS_CNT=11<<20
CNT_KV=WS_CNT; CNT_O=WS_CNT+8*256; CNT_P=WS_CNT+24*256
OOB=0x7ff00000
WS_O=8<<20
WS_PART=12<<20
WS_TIME=200<<20
NSPLIT=8; FR=4608//NSPLIT; NC=FR//32
C1 = 2*math.sqrt(2/math.pi)*math.log2(math.e)
C12 = C1*0.044715
QSCALE = math.log2(math.e)/math.sqrt(18.0)
class Timer:
    def __init__(self,a,on,slot=0): self.a=a; self.on=on; self.n=0; self.slot=slot
    sel=None
    def stamp(self, name=None):
        if name is not None and (Timer.sel is None or name not in Timer.sel): return
        if name is None and Timer.sel is not None and self.n>0 and not getattr(self,"final",False): return
        if self.on:
            self.a(f"s_memrealtime s[{76+2*self.n}:{77+2*self.n}]" if self.n in (0,) and False else f"s_memtime s[{76+2*self.n}:{77+2*self.n}]"); self.n+=1
            assert self.n<=8
    def store(self, s_wg=2):
        if not self.on: return
        a=self.a
        a("s_waitcnt vmcnt(0)"); self.final=True; self.stamp()
        a("s_memrealtime s[92:93]")
        a("s_waitcnt lgkmcnt(0)")
        for i in range(1,self.n): a(f"s_sub_u32 s{76+2*i}, s{76+2*i}, s76")
        a(f"""s_lshl_b32 s38, s{s_wg}, 3
        s_add_u32 s38, s38, s{S_WAVE}
        s_lshl_b32 s38, s38, 6
        s_add_u32 s38, s38, {WS_TIME+self.slot*(1<<20)}
        v_mov_b32 v1, 0""")
        for i in range(8): a(f"v_mov_b32 v{16+i}, s{76+2*min(i,self.n-1)}")
        a("v_mov_b32 v16, s92")
        a("v_mov_b32 v24, s94\n v_mov_b32 v25, s2")
        a(f"buffer_store_dwordx4 v[16:19], v1, s[{S_WS}:{S_WS+3}], s38 offen")
        a(f"buffer_store_dwordx4 v[20:23], v1, s[{S_WS}:{S_WS+3}], s38 offen offset:16")
        a(f"buffer_store_dwordx2 v[24:25], v1, s[{S_WS}:{S_WS+3}], s38 offen offset:32")

def ytile(t): return (f"a[{16*t}:{16*t+15}]" if t<16 else f"v[{V_Y16+16*(t-16)}:{V_Y16+16*(t-16)+15}]")
def yreg(t,i): return (f"a{16*t+i}" if t<16 else f"v{V_Y16+16*(t-16)+i}")

def common_entry(a, s_idx):
    a(f"""
    s_load_dwordx2 s[10:11], s[0:1], 0
    s_load_dwordx4 s[12:15], s[0:1], 64
    v_lshrrev_b32 v1, 6, v0
    v_and_b32 v0, 63, v0
    v_readfirstlane_b32 s{S_WAVE}, v1
    s_and_b32 s36, s{s_idx}, 7
    s_lshr_b32 s37, s{s_idx}, 3
    s_lshl_b32 s38, s37, 2
    s_add_u32 s51, s38, s{S_WAVE}
    s_waitcnt lgkmcnt(0)
    """)
    srd(a,S_X,10,2048*1152); srd(a,S_WS,14,1<<28); srd(a,S_DBG,12,256)

def gu_phase(acc, xfirst=False):
    ops=[]
    for s in range(36):
        c = "0" if s==0 else vr(acc,16)
        if xfirst: ops.append((lambda af,s=s,c=c: f"v_mfma_f32_32x32x16_bf16 {vr(acc,16)}, {vr(V_X+4*s,4)}, {af}, {c}", (1024*s,1024*s+256)))
        else: ops.append((lambda af,s=s,c=c: f"v_mfma_f32_32x32x16_bf16 {vr(acc,16)}, {af}, {vr(V_X+4*s,4)}, {c}", (1024*s,1024*s+256)))
    return Phase(ops,V_RDA)
def d_phase(tile_major=False):
    ops=[]
    order=[(j,t) for t in range(18) for j in range(2)] if tile_major else [(j,t) for j in range(2) for t in range(18)]
    for j,t in order:
        o=t*2048+j*1024
        ops.append((lambda af,t=t,j=j: f"v_mfma_f32_32x32x16_bf16 {ytile(t)}, {af}, {vr(V_H+4*j,4)}, {ytile(t)}", (o,o+512)))
    return Phase(ops,V_RDB)
def gelu1():
    L=[]
    for q in range(0,16,4):
        e=list(range(q,q+4)); T=[V_T+i for i in range(4)]
        for i,x in enumerate(e): L.append(f"v_mul_f32 v{T[i]}, v{V_G+x}, v{V_G+x}")
        for i,x in enumerate(e): L.append(f"v_fmaak_f32 v{T[i]}, v{T[i]}, v{V_C12}, {hexf(-C1)}")
        for i,x in enumerate(e): L.append(f"v_mul_f32 v{T[i]}, v{T[i]}, v{V_G+x}")
        for i,x in enumerate(e): L.append(f"v_exp_f32 v{T[i]}, v{T[i]}")
        for i,x in enumerate(e): L.append(f"v_add_f32 v{T[i]}, 1.0, v{T[i]}")
        for i,x in enumerate(e): L.append(f"v_rcp_f32 v{T[i]}, v{T[i]}")
        for i,x in enumerate(e): L.append(f"v_mul_f32 v{V_G+x}, v{V_G+x}, v{T[i]}")
    return L
def gelu2(): return [f"v_mul_f32 v{V_U+x}, v{V_U+x}, v{V_G+x}" for x in range(16)]
def cvt_h(half): return [f"v_cvt_pk_bf16_f32 v{V_H+4*half+i}, v{V_U+8*half+2*i}, v{V_U+8*half+2*i+1}" for i in range(4)]

PF=True
PFF=True
LA=3
PFG=29
LEAD=4
def pf_calc(a, rowstride, colstride, nmax, base, vd):
    a(f"""s_mul_i32 s39, s38, 57
    s_lshr_b32 s39, s39, 9
    s_cmp_lt_u32 s38, {nmax}
    s_cselect_b32 s50, 0, {OOB}
    s_cselect_b32 s39, s39, 0
    s_cselect_b32 s38, s38, 0
    v_mov_b32 v{vd}, s50
    s_movk_i32 s50, {rowstride}
    v_mad_u32_u24 v{vd}, v0, s50, v{vd}
    s_mul_i32 s50, s39, 9
    s_sub_u32 s38, s38, s50
    s_mul_i32 s38, s38, {64*rowstride}
    s_mul_i32 s39, s39, {colstride}
    s_add_u32 s39, s39, s38""")
    if base: a(f"s_add_u32 s39, s39, {base}")
def init_load(): return [f"buffer_load_dword v14, off, s[{S_DBG}:{S_DBG+3}], 0"]
def publish(a, soff, chk=False, n=0):
    a(f"""s_waitcnt vmcnt({n})
    s_barrier
    s_cmp_lg_u32 s{S_WAVE}, 0
    s_cbranch_scc1 1f""")
    if chk:
        a(f"""s_mov_b32 s31, 0x40000
        3:
        v_readfirstlane_b32 s38, v14
        s_cmp_lg_u32 s38, 0
        s_cbranch_scc1 4f
        buffer_load_dword v14, off, s[{S_DBG}:{S_DBG+3}], 0 sc1
        {"v_mov_b32 v11, 0" if NOP1 else ""}
        s_waitcnt vmcnt(0)
        s_sub_u32 s31, s31, 1
        s_cbranch_scc0 3b
        4:""")
    a(f"""s_mov_b64 exec, 1
    v_mov_b32 v15, 1
    buffer_atomic_add v15, off, s[{S_WS}:{S_WS+3}], s{soff} sc1
    s_mov_b64 exec, -1
    1:""")
def poll(a, soff, n, sleep=2, also=None, pre=None, bar=True):
    a(f"""s_cmp_lg_u32 s{S_WAVE}, 0
    s_cbranch_scc1 2f
    s_mov_b32 s31, 0x40000""")
    if also: a(f"s_add_u32 s3, s{soff}, {also}")
    if pre: a(f"""v_min_u32 v15, v{pre[0]}, v{pre[1]}
    s_nop 0
    v_readfirstlane_b32 s38, v15
    s_cmp_ge_u32 s38, {n}
    s_cbranch_scc1 2f""")
    a(f"""1:
    buffer_load_dword v15, off, s[{S_WS}:{S_WS+3}], s{soff} sc1""")
    if also: a(f"buffer_load_dword v14, off, s[{S_WS}:{S_WS+3}], s3 sc1")
    a("s_waitcnt vmcnt(0)")
    if also: a("v_min_u32 v15, v15, v14\n s_nop 0")
    a(f"""v_readfirstlane_b32 s38, v15
    s_cmp_ge_u32 s38, {n}
    s_cbranch_scc1 2f
    s_sleep {sleep}
    s_sub_u32 s31, s31, 1
    s_cbranch_scc0 1b
    2:""")
    if bar: a("s_barrier")
D16=False
XR=232; XF=80; SEL=176; VK=4
def tail_ids(a, s_tg, s_xo, ffn):
    L=[f"s_lshr_b32 s38, s36, 1", "s_and_b32 s38, s38, 2"]+(["s_xor_b32 s38, s38, 2"] if ffn else [])
    L+=[f"s_lshr_b32 s{s_tg}, s{S_WAVE}, 1", f"s_add_u32 s{s_tg}, s{s_tg}, s38", "s_lshl_b32 s38, s37, 2", f"s_add_u32 s{s_tg}, s{s_tg}, s38",
        f"s_and_b32 s38, s{S_WAVE}, 1", "s_lshl_b32 s38, s38, 6", f"s_mul_i32 s{s_xo}, s{s_tg}, {32*1152}", f"s_add_u32 s{s_xo}, s{s_xo}, s38",
        "s_lshl_b32 s38, s36, 7", f"s_add_u32 s{s_xo}, s{s_xo}, s38"]
    if a is None: return L
    for x in L: a(x)
def x_voff(d,t): return [f"v_and_b32 v{t}, 31, v0", f"v_mul_u32_u24 v{d}, 1152, v{t}", f"v_lshrrev_b32 v{t}, 5, v0", f"v_lshl_add_u32 v{d}, v{t}, 3, v{d}"]
def x_loads(v,so,d): return [f"buffer_load_dwordx2 v[{d+2*j}:{d+2*j+1}], v{v}, s[{S_X}:{S_X+3}], s{so} offen offset:{16*j}" for j in range(4)]
def x_expand(n): return sum([[f"v_lshlrev_b32 v{XF+2*i}, 16, v{XR+i}", f"v_and_b32 v{XF+2*i+1}, 0xffff0000, v{XR+i}"] for i in range(8*n)],[])
def sel_setup(t):
    L=[f"v_and_b32 v{t}, 31, v0", "v_lshrrev_b32 v12, 5, v0", f"v_mul_u32_u24 v248, 1152, v{t}", "v_lshl_add_u32 v248, v12, 4, v248",
       f"v_lshlrev_b32 v12, {3 if D16 else 2}, v12", f"v_sub_u32 v{t}, v{t}, v12", "v_mov_b32 v10, 0x3f80", "v_mov_b32 v11, 0x3f800000"]
    for j in range(2):
        for q in range(4):
            r0=16*j+2*q if D16 else 16*j+8*(q>>1)+2*(q&1)
            L+=[f"v_cmp_eq_u32 vcc, {r0}, v{t}", f"v_cmp_eq_u32 s[32:33], {r0+1}, v{t}", "s_nop 1", "v_cndmask_b32 v12, 0, v10, vcc", f"v_cndmask_b32 v{SEL+4*j+q}, v12, v11, s[32:33]"]
    return L
def OREG(s): return vr(112+4*s if s<16 else 184+4*(s-16),4)
RB=(250,251,252); XW=253; XRD=254; VE_=255
def tail_addr(s_tg, rdb, slot0, xb):
    return [f"s_and_b32 s45, s{S_WAVE}, 1", f"s_mul_i32 s38, s45, {SLOT+18432}", f"s_add_u32 s38, s38, {slot0}", f"v_add_u32 v{RB[0]}, s38, v{rdb}",
        f"s_mul_i32 s38, s45, {SLOT-18432}", f"s_sub_u32 s38, {slot0+SLOT}, s38", f"v_add_u32 v{RB[1]}, s38, v{rdb}",
        f"s_mul_i32 s38, s45, 18432", f"s_add_u32 s46, s38, {2*SLOT}", f"v_add_u32 v{RB[2]}, s46, v{rdb}",
        f"s_mul_i32 s43, s{s_tg}, 36864", f"s_add_u32 s43, s43, s38", f"s_add_u32 s43, s43, {WS_O}",
        f"s_lshl_b32 s38, s{S_WAVE}, 13", f"s_add_u32 s38, s38, {xb}", f"v_add_u32 v{XW}, s38, v{VK}",
        f"s_lshl_b32 s38, s{S_WAVE}, 13", f"s_xor_b32 s38, s38, 8192", f"s_add_u32 s38, s38, {xb}", f"v_add_u32 v{XRD}, s38, v{VK}",
        f"s_mul_i32 s47, s{s_tg}, {18*2048}", f"s_lshl_b32 s38, s36, 12", f"s_add_u32 s47, s47, s38", f"s_lshl_b32 s38, s45, 11", f"s_add_u32 s47, s47, s38",
        f"s_add_u32 s47, s47, {WS_PART}", f"s_mov_b32 s42, s47",
        f"s_mul_i32 s38, s45, {OOB}", f"v_or_b32 v{VE_}, s38, v{VK}", f"s_mov_b32 s40, {hexf(-math.log2(math.e))}"]
def tail(a, T, att, s_out, s_xo, osc=""):
    WSR=f"s[{S_WS}:{S_WS+3}]"; lab="att" if att else "ffn"
    late=[] if att else sel_setup(13)+x_expand(1)
    AFR=[16,20,24,28,232,236,240,244] if att else [16,20,24,28,64,68,72,76]; SA=32; YA=128; TX=160; E=184; R=216; NU=3 if att else 2
    PB_=[72,136]
    def pload(u, so, v):
        for sp in range(8):
            for j in range(2):
                d=PB_[u]+8*sp+4*j
                a(f"buffer_load_dwordx4 a[{d}:{d+3}], v{v}, {WSR}, s{so} offen offset:{1024*j} sc1")
            if sp<7: a(f"s_add_u32 s{so}, s{so}, {64*18*2048}")
    oreg=lambda s: f"a[{4*s}:{4*s+3}]" if att or not OPI else OREG(s)
    for s in range(18 if att or not OPI else 0):
        a(f"buffer_load_dwordx4 a[{4*s}:{4*s+3}], v{VK}, {WSR}, s43 offen offset:{1024*(s%4)} sc1")
        if s%4==3: a("s_add_u32 s43, s43, 4096")
    NE=0 if NOP1 else 16
    if NE: pload(0,42,VE_)
    sc=Sched(a); pend=[]; N=18*NU
    uo=[1,2,0] if att else [1,0]
    def rd(n):
        s,u=divmod(n,NU); b=AFR[n%8]; u=uo[u]
        sc.ds(f"ds_read_b64_tr_b16 {vr(b,2)}, v{RB[u]} offset:{1024*s}")
        pend.append(sc.ds(f"ds_read_b64_tr_b16 {vr(b+2,2)}, v{RB[u]} offset:{1024*s+512}"))
    for n in range(6): rd(n)
    for n in range(N):
        s,u=divmod(n,NU); u=uo[u]
        if n%(2*NU)==0 and (att or not OPI): a(f"s_waitcnt vmcnt({NE+18-(s+2)})")
        if n==16 and not att and OPI: a(f"s_waitcnt vmcnt({NE})")
        sc.wait_ds(pend.pop(0))
        c="0" if s==0 else vr(SA+16*u,16)
        a(f"v_mfma_f32_32x32x16_bf16 {vr(SA+16*u,16)}, {vr(AFR[n%8],4)}, {oreg(s)}, {c}")
        if n+6<N: rd(n+6)
        if not att:
            for x in late[3*n:3*n+3]: a(x)
    T.stamp("sgemm")
    a(f"s_add_u32 s39, s39, {CNT_P+128-CNT_O}\n s_nop 7\n s_nop 1")
    for u in range(1,NU):
        for j in range(4): a(f"ds_write_b128 v{XW}, {vr(SA+16*u+4*j,4)} offset:{4096*(u-1)+1024*j}")
    poll(a,39,8,bar=False)
    a("s_waitcnt lgkmcnt(0)\n s_barrier")
    T.stamp(); T.stamp("ppoll")
    p=lambda b,i: f"v[{b+2*i}:{b+2*i+1}]"
    def xch(u): return [f"ds_read_b128 {vr(TX+4*j,4)}, v{XRD} offset:{4096*u+1024*j}" for j in range(4)]
    def ysum(u, later):
        L=[]
        for sp in range(8):
            if sp%2==0 and later is not None: L.append(f"s_waitcnt vmcnt({16-2*sp-4+later})")
            for j in range(2):
                d=PB_[u]+8*sp+4*j; c="0" if sp==0 and j==0 else vr(YA+16*u,16)
                L.append(f"v_mfma_f32_32x32x16_bf16 {vr(YA+16*u,16)}, {vr(SEL+4*j,4)}, a[{d}:{d+3}], {c}")
        S=SA+32*u
        return L+["s_waitcnt lgkmcnt(0)"]+[f"v_pk_add_f32 {p(S,i)}, {p(S,i)}, {p(TX,i)}" for i in range(8)]+["s_nop 3"]
    def comb(u):
        Y=YA+16*u; S=SA+32*u; X=XF+16*u; L=[]
        for i in range(8): L.append(f"v_pk_mul_f32 {p(E,i)}, {p(Y,i)}, s[40:41] op_sel_hi:[1,0]")
        for i in range(16): L.append(f"v_exp_f32 v{E+i}, v{E+i}")
        for i in range(8): L.append(f"v_pk_mul_f32 {p(Y,i)}, {p(Y,i)}, {p(S,i)}")
        for i in range(8): L.append(f"v_pk_add_f32 {p(E,i)}, {p(E,i)}, 1.0 op_sel_hi:[1,0]")
        for i in range(16): L.append(f"v_rcp_f32 v{E+i}, v{E+i}")
        L.append("s_nop 0")
        for i in range(8): L.append(f"v_pk_fma_f32 {p(Y,i)}, {p(Y,i)}, {p(E,i)}, {p(X,i)}")
        RR=R+8*u
        for i in range(8): L.append(f"v_cvt_pk_bf16_f32 v{RR+i}, v{Y+2*i}, v{Y+2*i+1}")
        L.append("s_nop 1")
        for jj in range(2):
            L.append(f"v_permlane32_swap_b32 v{RR+4*jj}, v{RR+4*jj+2}")
            L.append(f"v_permlane32_swap_b32 v{RR+4*jj+1}, v{RR+4*jj+3}")
        so=s_xo if u==0 else 67
        L.append(f"buffer_store_dwordx4 {vr(RR,4)}, v248, s[{s_out}:{s_out+3}], s{so} offen{osc}")
        L.append(f"buffer_store_dwordx4 {vr(RR+4,4)}, v248, s[{s_out}:{s_out+3}], s{so} offen offset:32{osc}")
        return L
    if NOP1:
        pload(0,47,VK)
        if att:
            a(f"s_cmp_lg_u32 s68, 0\n s_cbranch_scc1 .L{lab}_plain")
            pload(1,44,VK)
            for x in xch(0)+ysum(0,16)+xch(1)+comb(0)+ysum(1,2)+comb(1): a(x)
            a(f"s_branch .L{lab}_done\n .L{lab}_plain:")
        for x in xch(0)+ysum(0,0)+comb(0): a(x)
        a(f".L{lab}_done:")
        return
    a(f"s_bitcmp1_b32 s{S_WAVE}, 0\n s_cbranch_scc0 .L{lab}_even")
    pload(0,47,VK)
    for x in xch(0)+ysum(0,0)+comb(0): a(x)
    a(f"s_branch .L{lab}_done\n .L{lab}_even:")
    if att:
        a(f"s_cmp_lg_u32 s68, 0\n s_cbranch_scc1 .L{lab}_plain")
        pload(1,44,VK)
        for x in xch(0)+["s_waitcnt vmcnt(16)"]+ysum(0,None)+xch(1)+comb(0)+ysum(1,2)+comb(1): a(x)
        a(f"s_branch .L{lab}_done\n .L{lab}_plain:")
    for x in xch(0)+["s_waitcnt vmcnt(0)"]+ysum(0,None)+comb(0): a(x)
    a(f".L{lab}_done:")
def first_phase_apply(a):
    for x in ln_apply(0)+ln_apply(1): a(x)
    return {g: ln_apply(g+2) for g in range(34)}

TORD=[0,2,4,6,8,10,12,14,16,1,3,5,7,9,11,13,15,17]
N1=70
EXP=''
GPK=False
CPF2=False
NOP1=False
TSI=2
P1F=False
HX=False
WS_H=6<<20
UPF=0
MRG=False
DF=0
SPL=False
OPI=0
OSC=''
TLB=False
def ffn_path(a, s_idx, timing=False, label="ffn", tslot=1, **kw):
    r=Ring(a,static=True,**kw); T=Timer(a,timing,tslot)
    GA=(V_G,80); ST=(96,104)
    NC=17 if HX else 18; NG=2*NC; NP=NG+18; WSL=(NP%4)*SLOT; XB=(WSL+2*SLOT)%(4*SLOT)
    if timing: a("s_memrealtime s[94:95]")
    T.stamp()
    a(f"""
    s_load_dwordx4 s[4:7], s[0:1], 32
    s_load_dwordx2 s[8:9], s[0:1], 48
    """)
    common_entry(a,s_idx)
    a("s_load_dwordx2 s[34:35], s[0:1], 16\n s_load_dwordx2 s[64:65], s[0:1], 56")
    T.stamp("karg")
    WG,WU,WD=S_SRD0,S_SRD1,S_SRD2
    def setup(a):
        srd(a,WG,4,576*4608*2); srd(a,WU,6,576*4608*2); srd(a,WD,8,576*4608*2)
        a(f"""
        s_mul_i32 s38, s36, {FR*2}
        s_add_u32 s{WG}, s{WG}, s38
        s_addc_u32 s{WG+1}, s{WG+1}, 0
        s_sub_u32 s{WG+2}, s{WG+2}, s38
        s_add_u32 s{WU}, s{WU}, s38
        s_addc_u32 s{WU+1}, s{WU+1}, 0
        s_sub_u32 s{WU+2}, s{WU+2}, s38
        """)
        lane_consts(a,9216)
        a(f"v_mov_b32 v{V_C12}, {hexf(-C12)}\n s_mov_b32 s100, {hexf(-C12)}\n s_mov_b32 s101, {hexf(-C1)}")
        a(f"""
        s_mul_i32 s{S_DSLOT}, s{S_WAVE}, 9216
        s_mul_i32 s38, s{S_WAVE}, {9*16*9216}
        v_add_u32 v{V_DMA_A}, s38, v{V_DMA_A}
        s_mul_i32 s38, s{S_WAVE}, {9*16*1152}
        v_add_u32 v{V_DMA_B}, s38, v{V_DMA_B}
        s_and_b32 s38, s{S_WAVE}, 1
        s_lshl_b32 s38, s38, {5 if D16 else 31}
        s_and_b32 s38, s38, 32
        v_xor_b32 v{V_DMA_B}, s38, v{V_DMA_B}
        s_mul_i32 s38, s36, {FR*1152}
        s_add_u32 s{WD}, s{WD}, s38
        s_addc_u32 s{WD+1}, s{WD+1}, 0
        s_sub_u32 s{WD+2}, s{WD+2}, s38
        s_mov_b32 s{S_SLOT}, 0
        s_mul_i32 s49, s36, {64*18*2048}
        s_mul_i32 s38, s51, {18*2048}
        s_add_u32 s49, s49, s38
        s_add_u32 s49, s49, {WS_PART}
        """)
        for i in range(1,9):
            a(f"s_mov_b32 s{S_TABG+i}, {i*16*9216-1024*(i%4)}")
            a(f"s_mov_b32 s{S_TABD+i}, {i*16*1152-1024*(i%4)}")
        ln_stats_setup(a)
    toks=ln_issue(a,r,51,capture(setup),LEAD)
    T.stamp("issued")
    def pf(m, off):
        if not PFF: return []
        return [f"buffer_load_dword a253, v{9 if m==2 else 7}, s[{(WG,WU,WD)[m]}:{(WG,WU,WD)[m]+3}], 0 offen offset:{off}"]
    a(f"""s_mul_i32 s38, s51, 9
    v_add_u32 v9, s38, v0
    s_movk_i32 s38, 9216
    v_mul_lo_u32 v7, v9, s38
    v_mul_u32_u24 v9, 1152, v9
    v_cmp_gt_u32 vcc, 9, v0
    v_mov_b32 v1, {OOB}
    s_nop 0
    v_cndmask_b32 v7, v1, v7, vcc
    v_cndmask_b32 v9, v1, v9, vcc
    v_lshlrev_b32 v1, 4, v0""")
    if CPF2: a("""v_lshlrev_b32 v96, 7, v0
    v_add_u32 v96, 8192, v96
    v_mov_b32 v97, s33
    v_add_co_u32 v96, vcc, s32, v96
    v_addc_co_u32 v97, vcc, 0, v97, vcc""")
    for k in range(UPF if UPF else (LA+3)//2):
        for x in pf(0,128*k)+pf(1,128*k): r.emit(x)
    dm=[r.mk_dma_static((WG,WU)[p%2],V_DMA_A,S_TABG,64*(p%2)) for p in range(NG)]
    dm+=[r.mk_dma_static(WD,V_DMA_B,S_TABD,(TORD[i+1]-TORD[i])*64 if i<17 else 0) for i in range(18)]
    if D16:
        for d in dm[NG:NP]:
            d.loads=[(pre, x.replace(f"v{V_DMA_B},","v2,") if i%2 else x) for i,(pre,x) in enumerate(d.loads)]
            if d.adv: d.adv=[d.adv[0]+[d.adv[0][0].replace(f"v{V_DMA_B}","v2")]]
    for k in range(2):
        d=r.mk_dma_static(WG,200,S_TABG,0)
        d.loads=[(pre, x.replace("v200,","v201,") if i>=5 else x) for i,(pre,x) in enumerate(d.loads)]
        if k==0: d.adv=[["v_add_u32 v200, 64, v200","v_add_u32 v201, 64, v201"]]
        dm.append(d)
    def tail_setup():
        t=A(); srd(t,WG,34,576*1152); srd(t,WU,64,2048*1152); L=[x.strip() for x in t.l]+tail_ids(None,63,62,True)
        L+=["v_lshrrev_b32 v10, 2, v0", "v_mul_u32_u24 v200, 1152, v10", "v_and_b32 v11, 3, v0", f"s_mul_i32 s38, s{S_WAVE}, {9*20736}", "s_lshl_b32 s39, s36, 7",
            "v_lshl_add_u32 v11, v11, 4, s39", "v_add3_u32 v200, v200, v11, s38",
            "v_bfe_u32 v201, v0, 3, 1", "v_bfe_u32 v10, v0, 4, 1", "v_lshl_add_u32 v201, v10, 2, v201", "v_lshrrev_b32 v10, 5, v0", "v_lshl_add_u32 v201, v10, 1, v201",
            "v_mul_u32_u24 v10, 18, v201", "v_bfe_u32 v201, v0, 2, 1", "v_add3_u32 v10, v10, v201, 16", "v_mul_u32_u24 v10, 1152, v10", "v_add_u32 v10, v10, v11",
            "v_subrev_u32 v10, 3072, v10", f"s_cmp_eq_u32 s{S_WAVE}, 3\n s_cselect_b64 s[32:33], -1, 0", "v_cndmask_b32 v201, v200, v10, s[32:33]"]
        for i in range(1,9):
            x=f"s_mov_b32 s{S_TABG+i}, {i*20736-1024*(i%4)}"
            if i>=5: x+=f"\n s_cmp_eq_u32 s{S_WAVE}, 3\n s_cmov_b32 s{S_TABG+i}, {(i-5)*8*20736+3072-1024*(i%4)}"
            L.append(x)
        L+=[f"s_and_b32 s38, s{S_WAVE}, 1", "s_mul_i32 s38, s38, 18432", "s_mul_i32 s61, s63, 36864", "s_add_u32 s61, s61, s38", f"s_add_u32 s61, s61, {WS_O}"]
        return L+x_voff(9,12)
    def oload(s): return ([f"s_add_u32 s61, s61, 4096"] if s%4==0 and s else [])+[f"buffer_load_dwordx4 {OREG(s)}, v14, s[{S_WS}:{S_WS+3}], s61 offen offset:{1024*(s%4)} sc1"]
    ln_stats(a,r,toks,{1:dm[0], 3:dm[1]},T,LEAD)
    T.stamp(); T.stamp("stats")
    def gelu1(G):
        L=[]
        if GPK:
            for q in range(0,16,4):
                g=[f"v[{G+q+2*i}:{G+q+2*i+1}]" for i in range(2)]; t=[f"v[{V_T+2*i}:{V_T+2*i+1}]" for i in range(2)]
                for i in range(2): L.append(f"v_pk_mul_f32 {t[i]}, {g[i]}, {g[i]}")
                for i in range(2): L.append(f"v_pk_fma_f32 {t[i]}, {t[i]}, s[100:101], s[100:101] op_sel:[0,0,1] op_sel_hi:[1,0,1]")
                for i in range(2): L.append(f"v_pk_mul_f32 {t[i]}, {t[i]}, {g[i]}")
                for i in range(4): L.append(f"v_exp_f32 v{V_T+i}, v{V_T+i}")
                for i in range(2): L.append(f"v_pk_add_f32 {t[i]}, {t[i]}, 1.0 op_sel_hi:[1,0]")
                for i in range(4): L.append(f"v_rcp_f32 v{V_T+i}, v{V_T+i}")
                for i in range(2): L.append(f"v_pk_mul_f32 {g[i]}, {g[i]}, {t[i]}")
            return L
        for q in range(0,16,4):
            e=list(range(q,q+4)); T_=[V_T+i for i in range(4)]
            for i,x in enumerate(e): L.append(f"v_mul_f32 v{T_[i]}, v{G+x}, v{G+x}")
            for i,x in enumerate(e): L.append(f"v_fmaak_f32 v{T_[i]}, v{T_[i]}, v{V_C12}, {hexf(-C1)}")
            for i,x in enumerate(e): L.append(f"v_mul_f32 v{T_[i]}, v{T_[i]}, v{G+x}")
            for i,x in enumerate(e): L.append(f"v_exp_f32 v{T_[i]}, v{T_[i]}")
            for i,x in enumerate(e): L.append(f"v_add_f32 v{T_[i]}, 1.0, v{T_[i]}")
            for i,x in enumerate(e): L.append(f"v_rcp_f32 v{T_[i]}, v{T_[i]}")
            for i,x in enumerate(e): L.append(f"v_mul_f32 v{G+x}, v{G+x}, v{T_[i]}")
        return L
    def hfin(c):
        G=GA[c%2]
        L=gelu1(G)[N1:]+([f"v_pk_mul_f32 v[{V_U+x}:{V_U+x+1}], v[{V_U+x}:{V_U+x+1}], v[{G+x}:{G+x+1}]" for x in range(0,16,2)] if GPK else [f"v_mul_f32 v{V_U+x}, v{V_U+x}, v{G+x}" for x in range(16)])
        L+=[f"v_cvt_pk_bf16_f32 v{V_H+i}, v{V_U+2*i}, v{V_U+2*i+1}" for i in range(8)]
        if D16: L+=[f"v_permlane16_swap_b32 v{V_H+i}, v{V_H+4+i}" for i in range(4)]
        L+=[f"v_accvgpr_write_b32 a{8*c+i}, v{V_H+i}" for i in range(8)]
        return L
    def dphase(i):
        if D16:
            def mk(c,ch):
                m=lambda af,th: f"v_mfma_f32_16x16x32_bf16 {vr(GA[(i+NC)%2]+8*ch+4*th,4)}, {af}, a[{8*c+4*th}:{8*c+4*th+3}], {'0' if c==0 else vr(GA[(i+NC)%2]+8*ch+4*th,4)}"
                return (lambda af: (m(af,0),m(af,1)), (2048*c,2048*c+512,7 if ch else V_RD))
            ph=Phase([mk(c,ch) for c in range(18) for ch in range(2)],4); ph.alt=7
            return ph
        acc=vr(GA[(i+NC)%2],16)
        return Phase([(lambda af,s=s: f"v_mfma_f32_32x32x16_bf16 {acc}, {af}, a[{4*s}:{4*s+3}], {'0' if s==0 else acc}", (1024*s,1024*s+512)) for s in range(36)],V_RDB)
    def ycvt(i):
        L=[f"v_cvt_pk_bf16_f32 v{ST[i%2]+k}, v{GA[(i+NC)%2]+2*k}, v{GA[(i+NC)%2]+2*k+1}" for k in range(8)]
        if D16: L+=["s_nop 0"]+[f"v_permlane16_swap_b32 v{ST[i%2]+4*j+k}, v{ST[i%2]+4*j+2+k}" for j in range(2) for k in range(2)]
        return L
    def yst(i):
        if EXP=="nost": return [f"s_add_u32 s38, s49, {TORD[i]*2048}"]
        if EXP=="plain": return [f"s_add_u32 s38, s49, {TORD[i]*2048}", f"buffer_store_dwordx4 {vr(ST[i%2],4)}, v1, s[{S_WS}:{S_WS+3}], s38 offen",
                f"buffer_store_dwordx4 {vr(ST[i%2]+4,4)}, v1, s[{S_WS}:{S_WS+3}], s38 offen offset:1024"]
        return [f"s_add_u32 s38, s49, {TORD[i]*2048}", f"buffer_store_dwordx4 {vr(ST[i%2],4)}, v1, s[{S_WS}:{S_WS+3}], s38 offen sc1",
                f"buffer_store_dwordx4 {vr(ST[i%2]+4,4)}, v1, s[{S_WS}:{S_WS+3}], s38 offen offset:1024 sc1"]
    P=[]
    for c in range(NC): P+=[gu_phase(GA[c%2]), gu_phase(V_U)]
    P+=[dphase(i) for i in range(18)]+[None]
    fx=first_phase_apply(a)
    if MRG:
        ops=[]
        for s in range(36): ops+=[P[0].ops[s], (P[1].ops[s][0], P[1].ops[s][1]+(15,))]
        M=Phase(ops,V_RDA); M.nwait=2; M.two=15
        fm={}
        import engine
        engine.USE_PK=False
        for g in fx: L=ln_apply(g+2); fm[2*g]=L[:10]; fm[2*g+1]=L[10:]
        engine.USE_PK=True
        if CPF2: fm[70]=["global_load_dword a255, v[96:97], off","v_add_co_u32 v96, vcc, 0x2000, v96","v_addc_co_u32 v97, vcc, 0, v97, vcc"]
        r.run(M,P[2],[],[(dm[2],(2,3),True),(dm[3],(30,3),True)],first=True,fixed=fm)
        T.stamp()
    for p in range(2 if MRG else 0,NP):
        f=[]; fixed={}
        if p<NG:
            c=p//2
            if p==0: fixed=fx
            elif p==2 and MRG: f=[(gelu1(GA[0])[:N1]+hfin(0),3,36)]
            elif p%2==0: f=[(hfin(c-1),1,36)]
            else: f=[(gelu1(GA[c%2])[:N1],3,36)]
            if UPF and p<2:
                for k in range(UPF,(LA+3)//2): fixed[PFG+1+k-UPF]=fixed.get(PFG+1+k-UPF,[])+pf(p,128*k)
            la=c+2+LA
            if la<NC and la%2==0: fixed[PFG]=fixed.get(PFG,[])+pf(p%2,64*la)
        else:
            i=p-NG
            if i==0: f=[(hfin(NC-1),1,2*NC-4)]
            else:
                f=[(ycvt(i-1),3,26)]
                if i-1!=9 or NOP1 or P1F: fixed[27]=yst(i-1)
                if i==11 and P1F:
                    t=A(); t(f"s_lshl_b32 s39, s37, 8\n s_add_u32 s39, s39, {CNT_P}"); publish(t,39,True)
                    L=[x.strip() for x in t.l]; k=L.index("s_waitcnt vmcnt(0)"); assert L[k+1]=="s_barrier"
                    fixed[32]=["s_nop 0\n"+"\n".join(L[:k]+L[k+2:]), "P1"]
                elif i==11 and not NOP1:
                    t=A(); t(f"s_lshl_b32 s39, s37, 8\n s_add_u32 s39, s39, {CNT_P}"); publish(t,39,True)
                    fixed[0]=[x.strip() for x in t.l]+yst(9)
                if i==8: fixed[28]=init_load()
                if i==TSI: f.append((tail_setup(),3,26))
                if OPI and i==OPI-2:
                    f.append(([f"s_lshl_b32 s39, s37, 8", f"s_add_u32 s39, s39, {CNT_O}", f"s_add_u32 s3, s39, {CNT_P-CNT_O}"],3,26))
                    fixed[28]=[f"buffer_load_dword v12, off, s[{S_WS}:{S_WS+3}], s39 sc1", f"buffer_load_dword v13, off, s[{S_WS}:{S_WS+3}], s3 sc1"]
                if OPI and i==OPI-1:
                    fixed[32]=["s_waitcnt vmcnt(11)","v_min_u32 v15, v12, v13"]
                    fixed[33]=["v_readfirstlane_b32 s60, v15"]
                    fixed[34]=[f"s_cmp_ge_u32 s60, 8\n s_cselect_b32 s60, 0, {OOB}", "v_or_b32 v14, s60, v1"]
                if OPI==16 and i in (16,17):
                    for k in range(12 if i==OPI else 6): fixed[3*k]=fixed.get(3*k,[])+oload(k+12*(i-OPI))
                if OPI==17 and i==17:
                    for k in range(18): fixed[3*(k//2)+k%2]=fixed.get(3*(k//2)+k%2,[])+oload(k)
        if D16 and p==NG-2: fixed[0]=[f"v_xor_b32 v2, 32, v{V_DMA_B}"]
        if D16 and p==NG-1:
            f.append((["v_bfe_u32 v14, v0, 4, 1", "v_mul_u32_u24 v14, 1024, v14", f"v_add_u32 v4, v14, v{V_RDB}"],3,20))
        if CPF2 and p<NG and (p%4==1 or p==NG-2+(not HX)):
            fixed[PFG+2]=["global_load_dword a255, v[96:97], off","v_add_co_u32 v96, vcc, 0x2000, v96","v_addc_co_u32 v97, vcc, 0, v97, vcc"]
        if HX:
            WSR=f"s[{S_WS}:{S_WS+3}]"
            if p==18: fixed[28]=init_load()
            if p==20:
                fixed[32]=[f"""v_readfirstlane_b32 s38, v14
                s_cmp_lg_u32 s38, 0
                s_cbranch_scc1 4f
                s_mov_b32 s31, 0x40000
                3:
                buffer_load_dword v14, off, s[{S_DBG}:{S_DBG+3}], 0 sc1
                s_waitcnt vmcnt(0)
                v_readfirstlane_b32 s38, v14
                s_cmp_lg_u32 s38, 0
                s_cbranch_scc1 4f
                s_sub_u32 s31, s31, 1
                s_cbranch_scc0 3b
                4:""", "s_lshl_b32 s39, s37, 8", f"s_add_u32 s39, s39, {CNT_O+128}"]
            if p==21: fixed[28]=[f"buffer_load_dword v14, off, {WSR}, s39 sc1"]
            if p==23:
                fixed[32]=[f"""v_readfirstlane_b32 s38, v14
                s_cmp_ge_u32 s38, 8
                s_cbranch_scc1 4f
                s_mov_b32 s31, 0x40000
                3:
                buffer_load_dword v14, off, {WSR}, s39 sc1
                s_waitcnt vmcnt(0)
                v_readfirstlane_b32 s38, v14
                s_cmp_ge_u32 s38, 8
                s_cbranch_scc1 4f
                s_sleep 8
                s_sub_u32 s31, s31, 1
                s_cbranch_scc0 3b
                4:""", "s_lshl_b32 s38, s51, 3", "s_add_u32 s38, s38, s36", "s_lshl_b32 s39, s38, 11", f"s_add_u32 s39, s39, {WS_H}"]
            if p==24: fixed[28]=[f"buffer_load_dwordx4 a[136:139], v1, {WSR}, s39 offen sc1", f"buffer_load_dwordx4 a[140:143], v1, {WSR}, s39 offen offset:1024 sc1"]
        if TLB and p==31: fixed[PFG+3]=[f"buffer_load_dword a254, off, s[{S_WS}:{S_WS+3}], s49"]
        j=p-(NG-10)
        if 0<=j<9: fixed[PFG+1]=pf(2,128*j)
        if p==NG: r.dmafirst=DF; r.split=SPL
        r.run(P[p],P[p+1],f,[(dm[4],(8,3),True)] if p==2 and MRG else dm[p+2],first=(p==0),fixed=fixed)
        if p==0: T.stamp("g0")
        if p==1: T.stamp()
        if p==NG-1: T.stamp(); T.stamp("gu")
    T.stamp()
    a("s_nop 7\n s_nop 3")
    for x in ycvt(17)+["s_nop 1"]+yst(17)+["v_mov_b32 v4, v1"]: a(x)
    T.stamp("epi")
    if OPI:
        a(f"s_add_u32 s39, s39, {CNT_P+128-CNT_O}")
        for x in tail_addr(63,V_RDB,WSL,XB): a(x)
        publish(a,39)
        T.stamp("fpub")
        a(f"""s_sub_u32 s39, s39, {CNT_P+128-CNT_O}
        s_cmp_eq_u32 s60, 0
        s_cbranch_scc1 .Lffn_have_o
        s_mov_b32 s31, 0x40000
        1:
        buffer_load_dword v12, off, s[{S_WS}:{S_WS+3}], s39 sc1
        buffer_load_dword v13, off, s[{S_WS}:{S_WS+3}], s3 sc1
        s_waitcnt vmcnt(0)
        v_min_u32 v15, v12, v13
        s_nop 0
        v_readfirstlane_b32 s38, v15
        s_cmp_ge_u32 s38, 8
        s_cbranch_scc1 2f
        s_sleep 4
        s_sub_u32 s31, s31, 1
        s_cbranch_scc0 1b
        2:
        s_sub_u32 s61, s61, 16384
        v_mov_b32 v14, v1""")
        for k in range(18):
            for x in oload(k): a(x)
        a("s_waitcnt vmcnt(0)\n .Lffn_have_o:")
        for x in x_loads(9,62,XR): a(x)
    else:
        a(f"""s_cmp_eq_u32 s{S_WAVE}, 0
        s_cselect_b32 s38, 0, {OOB}
        v_mov_b32 v10, s38
        s_lshl_b32 s39, s37, 8
        s_add_u32 s3, s39, {CNT_O}
        s_add_u32 s39, s39, {CNT_P+128}
        buffer_load_dword v11, v10, s[{S_WS}:{S_WS+3}], s3 offen sc1
        s_add_u32 s3, s3, {0 if NOP1 else CNT_P-CNT_O}
        buffer_load_dword v12, v10, s[{S_WS}:{S_WS+3}], s3 offen sc1""")
        for x in tail_addr(63,V_RDB,WSL,XB): a(x)
        publish(a,39,NOP1,0)
        for x in x_loads(9,62,XR): a(x)
        T.stamp("fpub")
        a(f"s_sub_u32 s39, s39, {CNT_P+128-CNT_O}")
        poll(a,39,8,also=None if NOP1 else CNT_P-CNT_O,pre=(11,12))
    T.stamp("opoll")
    tail(a,T,False,WU,62,OSC)
    T.store()
    return r
```

```python
import sys
from att2 import *
import paths, att2, engine
timing = "-t" in sys.argv
out = sys.argv[1]
if "-s" in sys.argv: Timer.sel=sys.argv[sys.argv.index("-s")+1].split(",")
if "-nopf" in sys.argv: paths.PF=False; att2.PF=False
if "-fma" in sys.argv: engine.USE_PK=False
if "-exp" in sys.argv: paths.EXP=sys.argv[sys.argv.index("-exp")+1]
if "-gpk" in sys.argv: paths.GPK=True; paths.N1=48
if "-nopff" in sys.argv: paths.PFF=False
if "-la" in sys.argv: paths.LA=int(sys.argv[sys.argv.index("-la")+1])
NAME="recurrent_scan__mha_block__geglu_ffn__prompt_kernel"
hdr_src=open("recurrent_scan__mha_block__geglu_ffn__prompt.s.ref").read().split("\n")
hdr="\n".join(l for l in hdr_src if l.startswith(";") and "@launch" not in l and "Override" not in l and "grid=ceil" not in l)+"\n"
a=A(); a("""s_getpc_b64 s[32:33]
 s_cmp_ge_u32 s2, 256
 s_cbranch_scc1 .Lk2_end""")
CPF="-cpf" in sys.argv
if "-p1f" in sys.argv: paths.P1F=True
if "-hx" in sys.argv: paths.HX=True
if "-late" in sys.argv: att2.LATE=int(sys.argv[sys.argv.index("-late")+1])
if "-upf" in sys.argv: paths.UPF=int(sys.argv[sys.argv.index("-upf")+1])
if "-mrg" in sys.argv: paths.MRG=True
if "-df" in sys.argv: paths.DF=int(sys.argv[sys.argv.index("-df")+1])
if "-spl" in sys.argv: paths.SPL=True
if "-d16" in sys.argv: paths.D16=True
if "-zl" in sys.argv: att2.ZL=True
if "-nop1" in sys.argv: paths.NOP1=True; paths.TORD=list(range(18))
if "-opi" in sys.argv: paths.OPI=int(sys.argv[sys.argv.index("-opi")+1])
if "-exn" in sys.argv: att2.EXN=int(sys.argv[sys.argv.index("-exn")+1])
if "-cpf3" in sys.argv: att2.CPF3=True
if "-osc" in sys.argv: att2.OSC=paths.OSC=" "+sys.argv[sys.argv.index("-osc")+1].replace("_"," ")
if "-cpf2" in sys.argv: paths.CPF2=True
if "-tlb" in sys.argv: paths.TLB=True; att2.TLB=True
if CPF:
    a(f"""s_lshr_b32 s3, s2, 3
 s_lshl_b32 s3, s3, 15
 s_cmp_ge_u32 s3, .Lk2_end-{NAME}
 s_cbranch_scc1 .Lk2_nopf
 v_lshlrev_b32 v1, 7, v0
 v_add_u32 v1, s3, v1
 v_min_u32 v1, .Lk2_end-{NAME}-8, v1
 v_mov_b32 v3, s33
 v_add_co_u32 v2, vcc, s32, v1
 v_addc_co_u32 v3, vcc, 0, v3, vcc
 global_load_dword a255, v[2:3], off
 .Lk2_nopf:""")
a("s_and_b32 s3, s2, 8")
NMG=int(sys.argv[sys.argv.index("-nmg")+1]) if "-nmg" in sys.argv else 1
NMGA=int(sys.argv[sys.argv.index("-nmga")+1]) if "-nmga" in sys.argv else NMG
att2.NMG=NMGA
def wgmap(NMG):
  LG=NMG.bit_length()-1
  a(f"""s_lshr_b32 s65, s2, 4
 s_and_b32 s38, s2, 7
 s_and_b32 s39, s65, {NMG-1}
 s_lshr_b32 s65, s65, {LG}
 s_and_b32 s36, s38, {NMG-1}
 s_lshl_b32 s36, s36, {4-LG}
 s_add_u32 s65, s65, s36
 s_lshl_b32 s65, s65, 3
 s_andn2_b32 s38, s38, {NMG-1}
 s_add_u32 s65, s65, s38
 s_add_u32 s65, s65, s39""")
a("s_cmp_lg_u32 s3, 0\n s_cbranch_scc1 .Lk2_att")
wgmap(NMG)
kw=eval(sys.argv[sys.argv.index('-kw')+1]) if '-kw' in sys.argv else {}
r=ffn_path(a,65,timing,tslot=0,**kw); print("ffn slots",r.maxused)
a("s_endpgm\n.Lk2_att:")
wgmap(NMGA)
T=Timer(a,timing,0)
r,qfin=qkv_path(a,65,T); print("qkv slots",r.maxused)
attn_path(a,r,T,qfin)
a(".Lk2_end:")
k2=kernel_text(NAME,a.text(),512,256)
hdr+=f"; @launch kernel={NAME} grid=(256,1,1) block=(256,1,1) lds=163840\n" if "-list" in sys.argv else "; @launch grid=(256,1,1) block=(256,1,1) lds=163840\n"
open(out,"w").write(hdr+'.amdgcn_target "amdgcn-amd-amdhsa--gfx950"\n.text\n'+k2)
```
